```python
import torch

def _softmax(x, axis=-1):
    return torch.softmax(x, dim=axis)
def _gelu(x):
    return torch.nn.functional.gelu(x, approximate="tanh")
def _silu(x):
    return torch.nn.functional.silu(x)
def _sigmoid(x):
    return torch.sigmoid(x)
def _layernorm(x, axis=-1, eps=1e-5):
    m = x.mean(dim=axis, keepdim=True)
    v = x.var(dim=axis, keepdim=True, unbiased=False)
    return (x - m) / torch.sqrt(v + eps)
def _scatter_add(tgt, idx, src, axis=0):
    return tgt.clone().index_add_(axis, idx, src)
def _segment_sum(src, seg, n):
    out = torch.zeros((n,) + src.shape[1:], dtype=src.dtype)
    return out.index_add_(0, seg, src)
def _pad(x, pw):
    flat = tuple(v for pair in reversed(pw) for v in pair)
    return torch.nn.functional.pad(x, flat)

kernel_name = 'parallel_sum__softmax_full_mha__swiglu_ffn__prompt'

def setup_inputs():

    _w = (lambda a: (lambda t: t.to(torch.bfloat16) if t.is_floating_point() else t)(torch.as_tensor(a)))
    def _A_setup():
        B, S, D = 1, 2048, 512
        return {
            "x": _w((lambda *s: torch.randn(*s, dtype=torch.bfloat16) * 0.05)(B, S, D)),
            "wqkv": _w((lambda *s: torch.randn(*s, dtype=torch.bfloat16) * 0.2)(D, 3 * D)),
            "wo": _w((lambda *s: torch.randn(*s, dtype=torch.bfloat16) * 0.1)(D, D)),
        }
    _A_in = _A_setup()

    def _B_setup():
        B, S, D, F = 1, 2048, 512, 1792
        return {
            "x": _w((lambda *s: torch.randn(*s, dtype=torch.bfloat16) * 0.05)(B, S, D)),
            "w_gate": _w((lambda *s: torch.randn(*s, dtype=torch.bfloat16) * 0.1)(D, F)),
            "w_up": _w((lambda *s: torch.randn(*s, dtype=torch.bfloat16) * 0.1)(D, F)),
            "w_down": _w((lambda *s: torch.randn(*s, dtype=torch.bfloat16) * 0.1)(F, D)),
        }
    _B_in = _B_setup()

    return {
        "A_x": _A_in["x"],
        "A_wqkv": _A_in["wqkv"],
        "A_wo": _A_in["wo"],
        "B_x": _B_in["x"],
        "B_w_gate": _B_in["w_gate"],
        "B_w_up": _B_in["w_up"],
        "B_w_down": _B_in["w_down"],
    }

def reference(A_x, A_wqkv, A_wo, B_x, B_w_gate, B_w_up, B_w_down):
    def _A_ref(x, wqkv, wo):
        B, S, D = x.shape
        H = 32; Dh = D // H
        qkv = (lambda x, *d: x.permute(*d))((x @ wqkv).reshape(B, S, 3, H, Dh), 2, 0, 3, 1, 4)
        q, k, v = qkv[0], qkv[1], qkv[2]
        scale = Dh ** -0.5
        scores = torch.einsum("bhqd,bhkd->bhqk", q, k) * scale
        p = _softmax(scores, axis=-1)
        o = torch.einsum("bhqk,bhkd->bhqd", p, v)
        return (lambda x, *d: x.permute(*d))(o, 0, 2, 1, 3).reshape(B, S, D) @ wo

    def _B_ref(x, w_gate, w_up, w_down):
        g = _silu(x @ w_gate)
        u = x @ w_up
        return (g * u) @ w_down

    x = A_x
    xn = _layernorm(x, axis=-1)
    return x + _A_ref(xn, A_wqkv, A_wo) + _B_ref(xn, B_w_gate, B_w_up, B_w_down)
```

```python
import re

class Asm:
    def __init__(self):
        self.lines = []
        self.vm = []
        self.lgkm = []
    def e(self, s):
        for l in s.split("\n"):
            l = l.strip()
            if l: self.lines.append("    " + l)
    def c(self, s): self.lines.append("    ; " + s)
    def label(self, s): self.lines.append(s + ":")
    def raw(self, s): self.lines.append(s)
    def vmem(self, s, tag=None):
        self.e(s); self.vm.append(tag)
        assert len(self.vm) <= 63, "too many vmem outstanding"
    def lds(self, s, tag=None):
        self.e(s); self.lgkm.append(tag)
    def _cnt(self, q, tags):
        if not isinstance(tags, (list, tuple, set)): tags = [tags]
        idx = [i for i, t in enumerate(q) if t in tags]
        if not idx: return None
        return len(q) - 1 - max(idx)
    def wait(self, vm=None, lgkm=None):
        parts = []
        if vm is not None:
            n = 0 if vm == "all" else self._cnt(self.vm, vm)
            if n is not None and (vm == "all" or n < len(self.vm)):
                parts.append(f"vmcnt({n})"); self.vm = self.vm[len(self.vm) - n:] if n else []
        if lgkm is not None:
            n = 0 if lgkm == "all" else self._cnt(self.lgkm, lgkm)
            if n is not None:
                n = min(n, 15)
                parts.append(f"lgkmcnt({n})"); self.lgkm = self.lgkm[len(self.lgkm) - n:] if n else []
        if parts: self.e("s_waitcnt " + " ".join(parts))
    def text(self): return "\n".join(self.lines) + "\n"

def v(a, n=1): return f"v{a}" if n == 1 else f"v[{a}:{a+n-1}]"
def s(a, n=1): return f"s{a}" if n == 1 else f"s[{a}:{a+n-1}]"
def a_(a, n=1): return f"a{a}" if n == 1 else f"a[{a}:{a+n-1}]"

def _regs(op):
    op = op.strip()
    op = re.sub(r"^-|^\|(.*)\|$|^abs\((.*)\)$", lambda m: (m.group(1) or m.group(2) or ""), op)
    m = re.fullmatch(r"([vas])(\d+)", op)
    if m: return {(m.group(1), int(m.group(2)))}
    m = re.fullmatch(r"([vas])\[(\d+):(\d+)\]", op)
    if m: return {(m.group(1), i) for i in range(int(m.group(2)), int(m.group(3)) + 1)}
    if op == "vcc": return {("s", 106), ("s", 107)}
    if op == "vcc_lo": return {("s", 106)}
    if op == "vcc_hi": return {("s", 107)}
    if op == "exec": return {("s", 126), ("s", 127)}
    if op == "m0": return {("s", 124)}
    return set()

TRANS = ("v_exp_f32", "v_log_f32", "v_rcp_f32", "v_rsq_f32", "v_sqrt_f32", "v_sin_f32", "v_cos_f32", "v_exp_f16", "v_rcp_iflag_f32")

class I:
    def __init__(self, text, ln):
        self.text = text; self.ln = ln
        t = text.split(";")[0].strip()
        parts = t.split(None, 1)
        self.op = re.sub(r"_e32$|_e64$", "", parts[0])
        rest = parts[1] if len(parts) > 1 else ""
        ops = [o.strip() for o in re.split(r",(?![^\[]*\])", rest)] if rest else []
        mods = ""
        if ops:
            sp = ops[-1].split(None, 1)
            ops[-1] = sp[0]; mods = sp[1] if len(sp) > 1 else ""
        self.ops = ops; self.mods = mods
        op = self.op
        R = [_regs(o) for o in ops]
        self.w = set(); self.r = set(); self.kind = "other"
        self.srcC = set(); self.srcAB = set(); self.data = set(); self.passes = 0
        if op.startswith("v_mfma") or op.startswith("v_smfmac"):
            self.kind = "mfma"; self.w = R[0]; self.srcAB = R[1] | R[2]; self.srcC = R[3] if op.startswith("v_mfma") else R[0]
            self.r = self.srcAB | self.srcC | R[3]
            self.passes = 8 if "32x32" in op else 4
        elif op.startswith("v_cmp"):
            self.kind = "valu"; self.w = R[0]; self.r = set().union(*R[1:])
            if op.startswith("v_cmpx"): self.w |= _regs("exec")
        elif op.startswith("v_permlane") and "swap" in op:
            self.kind = "valu"; self.w = R[0] | R[1]; self.r = R[0] | R[1]
        elif op in ("v_add_co_u32", "v_sub_co_u32", "v_addc_co_u32", "v_subb_co_u32"):
            self.kind = "valu"; self.w = R[0] | R[1]; self.r = set().union(*R[2:])
        elif op.startswith("v_"):
            self.kind = "valu"; self.w = R[0] if R else set(); self.r = set().union(*R[1:]) if len(R) > 1 else set()
            if op.startswith(("v_fmac", "v_dot2c", "v_writelane")) or "UNUSED_PRESERVE" in mods: self.r |= R[0]
        elif op.startswith("ds_read") or op.startswith("ds_bpermute") or op.startswith("ds_swizzle"):
            self.kind = "ds"; self.w = R[0]; self.r = set().union(*R[1:])
        elif op.startswith("ds_"):
            self.kind = "ds"; self.r = set().union(*R)
            if "rtn" in op: self.w = R[0]; self.r = set().union(*R[1:])
        elif op.startswith("buffer_load"):
            self.kind = "vmem"
            if "lds" in mods.split(): self.r = set().union(*R) | _regs("m0"); self.dma = True
            else: self.w = R[0]; self.r = set().union(*R[1:])
        elif op.startswith("buffer_store") or op.startswith("buffer_atomic"):
            self.kind = "vmem"; self.r = set().union(*R)
            if "x3" in op or "x4" in op: self.data = R[0]
            if op.startswith("buffer_atomic") and "sc0" in mods.split(): self.w = R[0]
        elif op.startswith("s_"):
            self.kind = "salu"
            if op.startswith(("s_cmp", "s_cbranch", "s_branch", "s_waitcnt", "s_nop", "s_barrier", "s_endpgm", "s_sleep", "s_setprio", "s_bitcmp")):
                self.r = set().union(*R) if R else set()
            else:
                self.w = R[0] if R else set(); self.r = set().union(*R[1:]) if len(R) > 1 else set()
                if "saveexec" in op: self.w |= _regs("exec")
        self.states = 1
        if op == "s_nop": self.states = int(ops[0], 0) + 1
        self.trans = op in TRANS
        self.dot = op.startswith("v_dot")

def need(p, c):
    n = 0
    vw = {x for x in p.w if x[0] in "va"}; sw = {x for x in p.w if x[0] == "s"}
    if p.kind == "valu":
        if c.kind == "mfma" and vw & c.r: n = max(n, 3 if p.dot else 2)
        if c.kind == "mfma" and sw & _regs("exec"): n = max(n, 4)
        if c.kind == "vmem" and sw & c.r: n = max(n, 5)
        if c.kind == "valu" and sw & c.r: n = max(n, 4 if c.op in ("v_readlane_b32", "v_writelane_b32") else 2)
        if c.kind == "valu" and c.op.startswith("v_cndmask") and len(c.ops) == 4 and sw & _regs(c.ops[3]): n = max(n, 2)
        if c.op in ("v_readfirstlane_b32", "v_readlane_b32") and vw & c.r: n = max(n, 1)
        if c.op.startswith("v_permlane") and vw & c.r: n = max(n, 2)
        if c.kind == "valu" and "dpp" in c.text and vw & c.r: n = max(n, 2)
        if p.trans and c.kind in ("valu",) and not c.trans and vw & c.r: n = max(n, 1)
        if p.trans and c.kind in ("vmem", "ds") and vw & c.r: n = max(n, 1)
        if p.dot:
            if c.op == p.op:
                ab = set().union(*[_regs(o) for o in c.ops[1:3]])
                if vw & ab: n = max(n, 3)
            elif vw & (c.r | c.w): n = max(n, 3)
        if ("op_sel" in p.mods or "sdwa" in p.op) and c.kind == "valu" and vw & (c.r | c.w) and not p.op.startswith("v_pk"): n = max(n, 1)
        if sw & _regs("exec") and c.op in ("v_readfirstlane_b32", "v_readlane_b32", "v_writelane_b32") : n = max(n, 4)
        if sw & _regs("exec") and c.op.startswith("v_permlane"): n = max(n, 4)
    if p.kind == "mfma":
        big = {4: 8, 8: 12}[p.passes]
        if c.kind == "mfma":
            if p.w & c.srcAB: n = max(n, big)
            if p.w & c.srcC and not (p.w == c.srcC and p.passes == c.passes): n = max(n, {4: 6, 8: 10}[p.passes])
            if p.w & c.w and not (p.w == c.srcC): n = max(n, {4: 6, 8: 10}[p.passes])
        elif c.kind in ("valu", "vmem", "ds"):
            if p.w & (c.r | c.w): n = max(n, big)
        if c.kind == "valu" and p.srcC & c.w: n = max(n, {4: 3, 8: 7}[p.passes])
        if c.kind in ("ds", "vmem") and p.srcC & c.w: n = max(n, {4: 3, 8: 7}[p.passes])
    if p.kind == "vmem" and p.data:
        if c.kind == "valu" and p.data & c.w: n = max(n, 2)
        elif p.data & c.w: n = max(n, 1)
    if p.kind == "salu" and ("s", 124) in p.w and c.kind == "vmem" and ("s", 124) in c.r: n = max(n, 1)
    return n

def check_hazards(text, verbose=True):
    ins = []; labels = {}
    for ln, l in enumerate(text.split("\n"), 1):
        t = l.split(";")[0].strip()
        if not t or t.startswith("."): continue
        if t.endswith(":"): labels[t[:-1]] = len(ins); continue
        ins.append(I(t, ln))
    problems = []
    def succ(i):
        x = ins[i]
        if x.op == "s_endpgm": return []
        if x.op == "s_branch": return [labels[x.ops[0]]]
        if x.op.startswith("s_cbranch"): return [i + 1, labels[x.ops[0]]]
        return [i + 1]
    for i, p in enumerate(ins):
        if p.kind not in ("valu", "mfma", "vmem", "salu"): continue
        if p.kind == "salu" and ("s", 124) not in p.w: continue
        if p.kind == "vmem" and not p.data: continue
        stack = [(j, 0) for j in succ(i)]
        seen = set()
        while stack:
            j, d = stack.pop()
            if j >= len(ins) or d >= 13 or (j, d) in seen: continue
            seen.add((j, d))
            c = ins[j]
            n = need(p, c)
            if n > d: problems.append((p, c, n, d))
            for k in succ(j): stack.append((k, d + c.states))
    if verbose:
        for p, c, n, d in problems[:40]:
            print(f"HAZARD need {n} have {d}: L{p.ln}: {p.text}  ->  L{c.ln}: {c.text}")
    return problems

KD = """.section .rodata,"a"
.p2align 6
.amdhsa_kernel {name}
  .amdhsa_next_free_vgpr {nvgpr}
  .amdhsa_next_free_sgpr {nsgpr}
  .amdhsa_accum_offset {accum}
  .amdhsa_group_segment_fixed_size 0
  .amdhsa_kernarg_size 80
  .amdhsa_user_sgpr_count 2
  .amdhsa_user_sgpr_kernarg_segment_ptr 1
  .amdhsa_system_sgpr_workgroup_id_x 1
  .amdhsa_float_denorm_mode_32 3
.end_amdhsa_kernel
"""
```

```python
import sys
from asmlib import *

QF, KF, VF, XNF, ACTF = 0, 2 << 20, 4 << 20, 6 << 20, 8 << 20
WS_SIZE = 32 << 20
KA = dict(x=0, wqkv=8, wo=16, bx=24, wg=32, wu=40, wd=48, out=56, dbg=64, ws=72)
SZ = dict(x=2048*512*2, wqkv=512*1536*2, wo=512*512*2, wg=512*1792*2, wu=512*1792*2, wd=1792*512*2, out=2048*512*2, ws=WS_SIZE, dbg=256)
LOG2E = 1.4426950408889634
import struct
def f2u(f): return struct.unpack("<I", struct.pack("<f", f))[0]
def hx(f): return "0x%08x" % f2u(f)

def kstart(A, name):
    A.raw(".text"); A.raw(f".globl {name}"); A.raw(".p2align 8"); A.raw(f".type {name},@function"); A.label(name)

def load_srds(A, items, tmp=80):
    for n, b in items:
        A.e(f"s_load_dwordx2 s[{b}:{b+1}], s[0:1], {KA[n]}")
    for n, b in items:
        A.e(f"s_mov_b32 s{b+2}, {SZ[n]}")
        A.e(f"s_mov_b32 s{b+3}, 0x00020000")

def xhalf_add(A, r, t):
    A.e(f"v_mov_b32 v{t}, v{r}")
    A.e("s_nop 1")
    A.e(f"v_permlane32_swap_b32 v{r}, v{t}")
    A.e("s_nop 0")
    A.e(f"v_add_f32 v{r}, v{r}, v{t}")

def gen_qkv(A):
    name = "qkv_kernel"
    kstart(A, name)
    A.e("s_cmp_ge_u32 s2, 256"); A.e("s_cbranch_scc1 L_qkv_end")
    SX, SW, SWS = 4, 8, 12
    load_srds(A, [("x", SX), ("wqkv", SW), ("ws", SWS)])
    sRB, sG, sWV, sTB, sONE, sST, sXO, sWO, sXM, sWM, sT0, sT1, sSLOT = range(16, 29)
    A.e(f"s_and_b32 s{sT0}, s2, 7")
    A.e(f"s_lshr_b32 s{sT1}, s2, 3")
    A.e(f"s_and_b32 s{sRB}, s{sT0}, 3"); A.e(f"s_lshl_b32 s{sRB}, s{sRB}, 2")
    A.e(f"s_and_b32 s{sG}, s{sT1}, 3"); A.e(f"s_add_u32 s{sRB}, s{sRB}, s{sG}")
    A.e(f"s_lshr_b32 s{sG}, s{sT0}, 2"); A.e(f"s_lshl_b32 s{sG}, s{sG}, 3")
    A.e(f"s_lshr_b32 s{sT1}, s{sT1}, 2"); A.e(f"s_add_u32 s{sG}, s{sG}, s{sT1}")
    L, T0, T1, T2, T3 = 1, 2, 3, 4, 5
    A.e(f"v_lshrrev_b32 v{T0}, 6, v0")
    A.e(f"v_and_b32 v{L}, 63, v0")
    A.e(f"v_readfirstlane_b32 s{sWV}, v{T0}")
    ACC = [16, 32, 48]
    XF = [64, 68]
    WF = [[72, 76, 80], [84, 88, 92]]
    SXA, SXX, CS = [96, 97], [98, 99], [[100, 101], [102, 103], [104, 105]]
    XD, WD, XRB, WRB, XRC, WRC = 106, 110, 113, 117, 118, 122
    XN = 124
    TMP = 132
    A.e(f"v_lshrrev_b32 v{T0}, 3, v{L}")
    A.e(f"v_lshlrev_b32 v{T0}, 10, v{T0}")
    A.e(f"v_lshrrev_b32 v{T1}, 4, v{L}")
    A.e(f"v_and_b32 v{T2}, 7, v{L}")
    A.e(f"v_xor_b32 v{T1}, v{T1}, v{T2}")
    A.e(f"v_lshl_add_u32 v{XD}, v{T1}, 4, v{T0}")
    A.e(f"v_xor_b32 v{T1}, 4, v{T1}")
    A.e(f"v_lshl_add_u32 v{XD+1}, v{T1}, 4, v{T0}")
    A.e(f"v_add_u32 v{XD+1}, {7168}, v{XD+1}")
    A.e(f"v_add_u32 v{XD+2}, {2*7168}, v{XD}")
    A.e(f"v_add_u32 v{XD+3}, {2*7168}, v{XD+1}")
    for u in range(3):
        A.e(f"v_add_u32 v{T0}, {64*u}, v{L}")
        A.e(f"v_mul_u32_u24 v{T1}, 43691, v{T0}")
        A.e(f"v_lshrrev_b32 v{T1}, 19, v{T1}")
        A.e(f"v_mul_u32_u24 v{T2}, 12, v{T1}")
        A.e(f"v_sub_u32 v{T2}, v{T0}, v{T2}")
        A.e(f"v_mul_u32_u24 v{T1}, 3072, v{T1}")
        A.e(f"v_lshrrev_b32 v{T3}, 2, v{T2}")
        A.e(f"v_lshl_add_u32 v{T1}, v{T3}, 10, v{T1}")
        A.e(f"v_and_b32 v{T3}, 3, v{T2}")
        A.e(f"v_lshl_add_u32 v{WD+u}, v{T3}, 4, v{T1}")
        if u: A.e(f"v_subrev_u32 v{WD+u}, {1024*u}, v{WD+u}")
    A.e(f"s_lshl_b32 s{sTB}, s{sRB}, 2"); A.e(f"s_add_u32 s{sTB}, s{sTB}, s{sWV}")
    A.e(f"s_lshl_b32 s{sXO}, s{sTB}, 15")
    A.e(f"s_mul_i32 s{sWO}, s{sWV}, {16*3072}")
    A.e(f"s_lshl_b32 s{sT0}, s{sG}, 6"); A.e(f"s_add_u32 s{sWO}, s{sWO}, s{sT0}")
    A.e(f"s_mul_i32 s{sXM}, s{sWV}, 20480")
    A.e(f"s_mul_i32 s{sWM}, s{sWV}, 3072"); A.e(f"s_add_u32 s{sWM}, s{sWM}, 81920")
    A.e("s_waitcnt lgkmcnt(0)")
    def issue_stage(slot_x, slot_w):
        A.e(f"s_add_u32 m0, s{sXM}, {slot_x}")
        A.e("s_nop 0")
        for u in range(4):
            A.e(f"buffer_load_dwordx4 v{XD+u}, s[{SX}:{SX+3}], s{sXO} offen offset:{1024*u} lds")
        A.e(f"s_add_u32 m0, s{sWM}, {slot_w}")
        A.e(f"s_add_u32 s{sXO}, s{sXO}, 128")
        for u in range(3):
            A.e(f"buffer_load_dwordx4 v{WD+u}, s[{SW}:{SW+3}], s{sWO} offen offset:{1024*u} lds")
        A.e(f"s_add_u32 s{sWO}, s{sWO}, {64*3072}")
    A.e(f"v_and_b32 v{T0}, 31, v{L}")
    A.e(f"v_lshlrev_b32 v{T0}, 10, v{T0}")
    A.e(f"v_lshrrev_b32 v{T1}, 5, v{L}")
    A.e(f"v_lshl_add_u32 v{T0}, v{T1}, 4, v{T0}")
    A.e(f"s_lshl_b32 s{sT0}, s{sG}, 6"); A.e(f"s_add_u32 s{sT0}, s{sT0}, s{sXO}")
    issue_stage(0, 0)
    A.e(f"buffer_load_dwordx4 v[{XN}:{XN+3}], v{T0}, s[{SX}:{SX+3}], s{sT0} offen")
    A.e(f"buffer_load_dwordx4 v[{XN+4}:{XN+7}], v{T0}, s[{SX}:{SX+3}], s{sT0} offen offset:32")
    for st in range(1, 4): issue_stage(st * 4096, st * 12288)
    A.e(f"v_and_b32 v{T0}, 31, v{L}")
    A.e(f"v_lshrrev_b32 v{T1}, 1, v{T0}"); A.e(f"v_and_b32 v{T1}, 7, v{T1}")
    A.e(f"v_lshrrev_b32 v{T2}, 5, v{L}")
    A.e(f"v_xor_b32 v{T1}, v{T1}, v{T2}")
    A.e(f"v_lshlrev_b32 v{T0}, 7, v{T0}")
    A.e(f"v_add_u32 v{T0}, s{sXM}, v{T0}")
    for kk in range(4):
        A.e(f"v_xor_b32 v{T3}, {2*kk}, v{T1}")
        A.e(f"v_lshl_add_u32 v{XRB+kk}, v{T3}, 4, v{T0}")
    A.e(f"v_bfe_u32 v{T0}, v{L}, 2, 2")
    A.e(f"v_lshl_add_u32 v{T0}, v{T2}, 3, v{T0}")
    A.e(f"v_mul_u32_u24 v{T0}, 192, v{T0}")
    A.e(f"v_bfe_u32 v{T1}, v{L}, 4, 1")
    A.e(f"v_lshl_add_u32 v{T0}, v{T1}, 5, v{T0}")
    A.e(f"v_and_b32 v{T1}, 3, v{L}")
    A.e(f"v_lshl_add_u32 v{T0}, v{T1}, 3, v{T0}")
    A.e(f"v_add_u32 v{WRB}, 81920, v{T0}")
    for r in list(range(16, 64)) + list(range(96, 106)): A.e(f"v_mov_b32 v{r}, 0")
    A.e(f"s_mov_b32 s{sONE}, 0x3f803f80")
    A.e(f"s_mov_b32 s{sST}, 0")
    A.e(f"s_mov_b32 s{sSLOT}, 0")
    A.raw("    .p2align 6")
    A.label("L_qkv_loop")
    A.e(f"s_lshl_b32 s{sT0}, s{sSLOT}, 12")
    A.e(f"s_mul_i32 s{sT1}, s{sSLOT}, 12288")
    for kk in range(4): A.e(f"v_add_u32 v{XRC+kk}, s{sT0}, v{XRB+kk}")
    A.e(f"v_add_u32 v{WRC}, s{sT1}, v{WRB}")
    A.e(f"s_add_u32 s{sT0}, s{sSLOT}, 4"); A.e(f"s_sub_u32 s{sT1}, s{sSLOT}, 1")
    A.e(f"s_cmp_eq_u32 s{sSLOT}, 0"); A.e(f"s_cselect_b32 s{sT0}, s{sT0}, s{sT1}")
    A.e(f"s_mul_i32 s{sT1}, s{sT0}, 12288"); A.e(f"s_lshl_b32 s{sT0}, s{sT0}, 12")
    A.e(f"s_cmp_ge_u32 s{sST}, 4"); A.e(f"s_cselect_b32 s{sXO}, 0x7f000000, s{sXO}")
    A.e("s_waitcnt vmcnt(21)")
    A.e("s_barrier")
    def reads(kk):
        b = kk & 1
        A.lds(f"ds_read_b128 v[{XF[b]}:{XF[b]+3}], v{XRC+kk}", ("r", kk))
        for sg in range(3):
            for p in range(2):
                A.lds(f"ds_read_b64_tr_b16 v[{WF[b][sg]+2*p}:{WF[b][sg]+2*p+1}], v{WRC} offset:{kk*3072 + p*768 + sg*64}", ("r", kk))
    reads(0)
    issue_stage(f"s{sT0}", f"s{sT1}")
    for kk in range(4):
        b = kk & 1
        if kk < 3: reads(kk + 1)
        A.wait(lgkm=[("r", kk)])
        x = f"v[{XF[b]}:{XF[b]+3}]"
        for sg in range(3):
            w = f"v[{WF[b][sg]}:{WF[b][sg]+3}]"
            acc = f"v[{ACC[sg]}:{ACC[sg]+15}]"
            if sg < 2: A.e(f"v_mfma_f32_32x32x16_bf16 {acc}, {w}, {x}, {acc}")
            else: A.e(f"v_mfma_f32_32x32x16_bf16 {acc}, {x}, {w}, {acc}")
            for i in range(4): A.e(f"v_dot2c_f32_bf16 v{CS[sg][i&1]}, s{sONE}, v{WF[b][sg]+i}")
            if sg < 2:
                for i in range(2):
                    A.e(f"v_dot2c_f32_bf16 v{SXA[i]}, s{sONE}, v{XF[b]+2*sg+i}")
                    A.e(f"v_dot2c_f32_bf16 v{SXX[i]}, v{XF[b]+2*sg+i}, v{XF[b]+2*sg+i}")
    A.e(f"s_add_u32 s{sSLOT}, s{sSLOT}, 1"); A.e(f"s_cmp_eq_u32 s{sSLOT}, 5"); A.e(f"s_cselect_b32 s{sSLOT}, 0, s{sSLOT}")
    A.e(f"s_add_u32 s{sST}, s{sST}, 1"); A.e(f"s_cmp_lt_u32 s{sST}, 8"); A.e("s_cbranch_scc1 L_qkv_loop")
    MEAN, VAR, MB, SD, R, E = TMP, TMP+1, TMP+2, TMP+3, TMP+4, TMP+8
    assert E % 4 == 0
    A.e("s_nop 2")
    A.e(f"v_add_f32 v{MEAN}, v{SXA[0]}, v{SXA[1]}")
    A.e(f"v_add_f32 v{VAR}, v{SXX[0]}, v{SXX[1]}")
    xhalf_add(A, MEAN, T0); xhalf_add(A, VAR, T1)
    A.e(f"v_mul_f32 v{MEAN}, {hx(1/512)}, v{MEAN}")
    A.e(f"v_mul_f32 v{VAR}, {hx(1/512)}, v{VAR}")
    A.e(f"v_fma_f32 v{VAR}, -v{MEAN}, v{MEAN}, v{VAR}")
    A.e(f"v_max_f32 v{VAR}, 0, v{VAR}")
    def rbf(r):
        A.e(f"v_cvt_pk_bf16_f32 v{r}, v{r}, v{r}")
        A.e(f"v_lshlrev_b32 v{r}, 16, v{r}")
    A.e(f"v_mov_b32 v{MB}, v{MEAN}"); rbf(MB)
    rbf(VAR)
    A.e(f"v_add_f32 v{VAR}, {hx(1e-5)}, v{VAR}"); rbf(VAR)
    A.e(f"v_sqrt_f32 v{SD}, v{VAR}"); A.e("s_nop 0"); rbf(SD)
    A.e(f"v_rcp_f32 v{R}, v{SD}")
    A.e(f"v_cvt_pk_bf16_f32 v{E}, -v{MB}, -v{MB}")
    A.e(f"v_cvt_pk_bf16_f32 v{E+1}, -v{MB}, 0")
    A.e(f"v_mov_b32 v{E+2}, 0"); A.e(f"v_mov_b32 v{E+3}, 0")
    A.e(f"s_lshl_b32 s{sT0}, s{sWV}, 7"); A.e(f"s_add_u32 s{sT0}, s{sT0}, 143360")
    A.e(f"v_and_b32 v{T0}, 31, v{L}")
    A.e(f"v_lshl_add_u32 v{T0}, v{T0}, 2, s{sT0}")
    A.e(f"ds_write_b32 v{T0}, v{R}")
    A.e(f"v_lshrrev_b32 v{T1}, 5, v{L}")
    A.e(f"v_lshl_add_u32 v{T1}, v{T1}, 4, s{sT0}")
    RV = 64
    A.e("s_waitcnt lgkmcnt(0)")
    for q in range(4): A.e(f"ds_read_b128 v[{RV+4*q}:{RV+4*q+3}], v{T1} offset:{32*q}")
    WE = [80, 84, 88]
    for sg in range(3):
        c, e = CS[sg][0], WE[sg]
        A.e(f"v_add_f32 v{c}, v{c}, v{CS[sg][1]}")
        A.e(f"v_cvt_pk_bf16_f32 v{T0}, v{c}, v{c}")
        A.e(f"v_lshlrev_b32 v{T0}, 16, v{T0}")
        A.e(f"v_sub_f32 v{T0}, v{c}, v{T0}")
        A.e(f"v_cvt_pk_bf16_f32 v{e}, v{c}, v{T0}")
        A.e(f"v_and_b32 v{T2}, 0xffff0000, v{e}")
        A.e(f"v_sub_f32 v{T0}, v{T0}, v{T2}")
        A.e(f"v_cvt_pk_bf16_f32 v{e+1}, v{T0}, 0")
        A.e(f"v_mov_b32 v{e+2}, 0"); A.e(f"v_mov_b32 v{e+3}, 0")
    A.e("s_nop 1")
    for sg in range(3):
        acc = f"v[{ACC[sg]}:{ACC[sg]+15}]"; w = f"v[{WE[sg]}:{WE[sg]+3}]"; x = f"v[{E}:{E+3}]"
        if sg < 2: A.e(f"v_mfma_f32_32x32x16_bf16 {acc}, {w}, {x}, {acc}")
        else: A.e(f"v_mfma_f32_32x32x16_bf16 {acc}, {x}, {w}, {acc}")
    A.e("s_waitcnt vmcnt(28)")
    for i in range(8):
        r = XN + i
        A.e(f"v_lshlrev_b32 v{T0}, 16, v{r}")
        A.e(f"v_and_b32 v{T1}, 0xffff0000, v{r}")
        A.e(f"v_sub_f32 v{T0}, v{T0}, v{MB}"); A.e(f"v_sub_f32 v{T1}, v{T1}, v{MB}")
        A.e(f"v_cvt_pk_bf16_f32 v{r}, v{T0}, v{T1}")
        A.e(f"v_lshlrev_b32 v{T0}, 16, v{r}")
        A.e(f"v_and_b32 v{T1}, 0xffff0000, v{r}")
        A.e(f"v_mul_f32 v{T2}, v{T0}, v{R}"); A.e(f"v_mul_f32 v{T3}, v{T1}, v{R}")
        A.e(f"v_fma_f32 v{T0}, -v{T2}, v{SD}, v{T0}"); A.e(f"v_fma_f32 v{T1}, -v{T3}, v{SD}, v{T1}")
        A.e(f"v_fma_f32 v{T2}, v{T0}, v{R}, v{T2}"); A.e(f"v_fma_f32 v{T3}, v{T1}, v{R}, v{T3}")
        A.e(f"v_cvt_pk_bf16_f32 v{r}, v{T2}, v{T3}")
    LO = 6
    A.e(f"v_lshlrev_b32 v{LO}, 4, v{L}")
    A.e(f"s_lshl_b32 s{sT0}, s{sTB}, 15"); A.e(f"s_lshl_b32 s{sT1}, s{sG}, 11")
    A.e(f"s_add_u32 s{sT0}, s{sT0}, s{sT1}"); A.e(f"s_add_u32 s{sT0}, s{sT0}, {XNF}")
    A.e(f"buffer_store_dwordx4 v[{XN}:{XN+3}], v{LO}, s[{SWS}:{SWS+3}], s{sT0} offen")
    A.e(f"buffer_store_dwordx4 v[{XN+4}:{XN+7}], v{LO}, s[{SWS}:{SWS+3}], s{sT0} offen offset:1024")
    RQ = TMP + 5
    A.e(f"v_mul_f32 v{RQ}, {hx(0.25*LOG2E)}, v{R}")
    A.e(f"s_lshl_b32 s{sT0}, s{sG}, 17"); A.e(f"s_lshl_b32 s{sT1}, s{sTB}, 10"); A.e(f"s_add_u32 s{sT0}, s{sT0}, s{sT1}")
    P = 96
    PK = [96, 104, 112]
    for sg, base, sc in ((0, QF, RQ), (1, KF, R)):
        a = ACC[sg]
        for i in range(16): A.e(f"v_mul_f32 v{a+i}, v{a+i}, v{sc}")
        for i in range(8): A.e(f"v_cvt_pk_bf16_f32 v{PK[sg]+i}, v{a+2*i}, v{a+2*i+1}")
        A.e(f"s_add_u32 s{sT1}, s{sT0}, {base}")
        A.e(f"buffer_store_dwordx4 v[{PK[sg]}:{PK[sg]+3}], v{LO}, s[{SWS}:{SWS+3}], s{sT1} offen")
        A.e(f"s_add_u32 s{sT1}, s{sT0}, {base + 65536}")
        A.e(f"buffer_store_dwordx4 v[{PK[sg]+4}:{PK[sg]+7}], v{LO}, s[{SWS}:{SWS+3}], s{sT1} offen")
    a = ACC[2]
    A.e("s_waitcnt lgkmcnt(0)")
    for i in range(16): A.e(f"v_mul_f32 v{a+i}, v{a+i}, v{RV+i}")
    for i in range(8): A.e(f"v_cvt_pk_bf16_f32 v{PK[2]+i}, v{a+2*i}, v{a+2*i+1}")
    A.e(f"v_bfe_u32 v{T0}, v{L}, 4, 1"); A.e(f"v_lshlrev_b32 v{T0}, 16, v{T0}")
    A.e(f"v_lshrrev_b32 v{T1}, 5, v{L}"); A.e(f"v_lshl_add_u32 v{T0}, v{T1}, 8, v{T0}")
    A.e(f"v_and_b32 v{T1}, 15, v{L}"); A.e(f"v_lshl_add_u32 v{T0}, v{T1}, 4, v{T0}")
    A.e(f"s_add_u32 s{sT1}, s{sT0}, {VF}")
    A.e(f"buffer_store_dwordx4 v[{PK[2]}:{PK[2]+3}], v{T0}, s[{SWS}:{SWS+3}], s{sT1} offen")
    A.e(f"buffer_store_dwordx4 v[{PK[2]+4}:{PK[2]+7}], v{T0}, s[{SWS}:{SWS+3}], s{sT1} offen offset:512")
    A.label("L_qkv_end")
    A.e("s_endpgm")
    A.lgkm = []; A.vm = []
    return dict(name=name, nvgpr=144, nsgpr=40, accum=144, grid=256, block=256, lds=143872)

def gen_gateup(A):
    name = "gateup_kernel"
    kstart(A, name)
    A.e("s_cmp_ge_u32 s2, 224"); A.e("s_cbranch_scc1 L_gu_end")
    SG, SU, SWS = 4, 8, 12
    load_srds(A, [("wg", SG), ("wu", SU), ("ws", SWS)])
    sJ, sCG, sWV, sTB, sT0, sT1, sWO, sM, sI = range(16, 25)
    A.e(f"s_and_b32 s{sT0}, s2, 7"); A.e(f"s_lshr_b32 s{sT1}, s2, 3")
    A.e(f"s_and_b32 s{sJ}, s{sT0}, 3"); A.e(f"s_lshl_b32 s{sJ}, s{sJ}, 1")
    A.e(f"s_and_b32 s{sCG}, s{sT1}, 1"); A.e(f"s_add_u32 s{sJ}, s{sJ}, s{sCG}")
    A.e(f"s_lshr_b32 s{sCG}, s{sT0}, 2"); A.e(f"s_mul_i32 s{sCG}, s{sCG}, 14")
    A.e(f"s_lshr_b32 s{sT1}, s{sT1}, 1"); A.e(f"s_add_u32 s{sCG}, s{sCG}, s{sT1}")
    L, T0, T1, T2, T3, LO = 1, 2, 3, 4, 5, 6
    A.e(f"v_lshrrev_b32 v{T0}, 6, v0"); A.e(f"v_and_b32 v{L}, 63, v0")
    A.e(f"v_readfirstlane_b32 s{sWV}, v{T0}")
    A.e(f"v_lshlrev_b32 v{LO}, 4, v{L}")
    GD, UD, RA = 8, 9, 10
    ACC = [16, 32, 48, 64]
    WF = [[80, 84, 88, 92], [96, 100, 104, 108]]
    XF = 112
    A.e(f"v_lshrrev_b32 v{T0}, 3, v{L}")
    A.e(f"v_mul_u32_u24 v{T0}, 3584, v{T0}")
    A.e(f"v_and_b32 v{T1}, 1, v{L}"); A.e(f"v_lshl_add_u32 v{T0}, v{T1}, 4, v{T0}")
    A.e(f"v_bfe_u32 v{T1}, v{L}, 1, 2"); A.e(f"v_bfe_u32 v{T2}, v{L}, 4, 1")
    A.e(f"v_xor_b32 v{T1}, v{T1}, v{T2}")
    A.e(f"v_lshl_add_u32 v{GD}, v{T1}, 5, v{T0}")
    A.e(f"v_xor_b32 v{T1}, 2, v{T1}")
    A.e(f"v_lshl_add_u32 v{UD}, v{T1}, 5, v{T0}")
    A.e(f"s_lshl_b32 s{sTB}, s{sJ}, 3"); A.e(f"s_add_u32 s{sTB}, s{sTB}, s{sWV}")
    A.e("s_waitcnt lgkmcnt(0)")
    A.e(f"s_mul_i32 s{sWO}, s{sWV}, {8*3584}"); A.e(f"s_lshl_b32 s{sT0}, s{sCG}, 7"); A.e(f"s_add_u32 s{sWO}, s{sWO}, s{sT0}")
    A.e(f"s_lshr_b32 s{sM}, s{sWV}, 1"); A.e(f"s_lshl_b32 s{sM}, s{sM}, 12")
    A.e(f"s_and_b32 s{sT0}, s{sWV}, 1"); A.e(f"s_lshl_b32 s{sT0}, s{sT0}, 10"); A.e(f"s_add_u32 s{sM}, s{sM}, s{sT0}")
    A.e(f"s_lshl_b32 s{sT1}, s{sTB}, 15"); A.e(f"s_add_u32 s{sT1}, s{sT1}, {XNF}")
    for c in range(8):
        A.e(f"s_add_u32 m0, s{sM}, {c*16384}")
        A.e("s_nop 0")
        A.vmem(f"buffer_load_dwordx4 v{GD}, s[{SG}:{SG+3}], s{sWO} offen lds", ("c", c))
        A.e(f"s_add_u32 m0, s{sM}, {c*16384+2048}")
        A.e("s_nop 0")
        A.vmem(f"buffer_load_dwordx4 v{UD}, s[{SU}:{SU+3}], s{sWO} offen lds", ("c", c))
        A.e(f"s_add_u32 s{sWO}, s{sWO}, {64*3584}")
        for kk in range(4):
            ks = 4*c + kk
            A.vmem(f"buffer_load_dwordx4 v[{XF+4*ks}:{XF+4*ks+3}], v{LO}, s[{SWS}:{SWS+3}], s{sT1} offen offset:{kk*1024}", ("c", c))
        A.e(f"s_add_u32 s{sT1}, s{sT1}, 4096")
    A.e(f"v_bfe_u32 v{T0}, v{L}, 4, 1")
    A.e(f"v_lshrrev_b32 v{T1}, 5, v{L}")
    A.e(f"v_lshl_add_u32 v{T1}, v{T0}, 1, v{T1}")
    A.e(f"v_lshlrev_b32 v{T1}, 10, v{T1}")
    A.e(f"v_bfe_u32 v{T2}, v{L}, 2, 2")
    A.e(f"v_lshl_add_u32 v{T1}, v{T2}, 7, v{T1}")
    A.e(f"v_and_b32 v{T3}, 3, v{L}")
    A.e(f"v_lshl_add_u32 v{T1}, v{T3}, 3, v{T1}")
    A.e(f"v_lshrrev_b32 v{T2}, 1, v{T2}")
    A.e(f"v_lshl_add_u32 v{T2}, v{T0}, 1, v{T2}")
    for t in range(4):
        A.e(f"v_xor_b32 v{T3}, {t}, v{T2}")
        A.e(f"v_lshl_add_u32 v{RA+t}, v{T3}, 5, v{T1}")
    for r in range(16, 80): A.e(f"v_mov_b32 v{r}, 0")
    def reads(ks):
        b = ks & 1
        for t in range(4):
            for p in range(2):
                A.lds(f"ds_read_b64_tr_b16 v[{WF[b][t]+2*p}:{WF[b][t]+2*p+1}], v{RA+t} offset:{(ks%16)*4096 + p*512}", ("r", ks))
    for c in range(8):
        A.wait(vm=[("c", c)])
        A.e("s_barrier")
        if c == 4:
            for t in range(4): A.e(f"v_add_u32 v{RA+t}, 65536, v{RA+t}")
        reads(4*c)
        for kk in range(4):
            ks = 4*c + kk; b = ks & 1
            if kk < 3: reads(ks + 1)
            A.wait(lgkm=[("r", ks)])
            for t in range(4):
                acc = v(ACC[t], 16)
                A.e(f"v_mfma_f32_32x32x16_bf16 {acc}, {v(WF[b][t],4)}, {v(XF+4*ks,4)}, {acc}")
    A.e("s_nop 7"); A.e("s_nop 3")
    sNL, sONEF = 26, 28
    A.e(f"s_mov_b32 s{sNL}, {hx(-LOG2E)}"); A.e(f"s_mov_b32 s{sNL+1}, {hx(-LOG2E)}")
    A.e(f"s_mul_i32 s{sT0}, s{sTB}, {144*1024}"); A.e(f"s_lshl_b32 s{sT1}, s{sCG}, 12")
    A.e(f"s_add_u32 s{sT0}, s{sT0}, s{sT1}"); A.e(f"s_add_u32 s{sT0}, s{sT0}, {ACTF}")
    for t in range(4):
        a = ACC[t]; E = 80 + 8*t; H = 112 + 4*t
        for i in range(0, 8, 2): A.e(f"v_pk_mul_f32 {v(E+i,2)}, {v(a+i,2)}, s[{sNL}:{sNL+1}]")
        for i in range(8): A.e(f"v_exp_f32 v{E+i}, v{E+i}")
        for i in range(0, 8, 2): A.e(f"v_pk_mul_f32 {v(a+i,2)}, {v(a+i,2)}, {v(a+8+i,2)}")
        for i in range(0, 8, 2): A.e(f"v_pk_add_f32 {v(E+i,2)}, {v(E+i,2)}, 1.0 op_sel_hi:[1,0]")
        for i in range(8): A.e(f"v_rcp_f32 v{E+i}, v{E+i}")
        A.e("s_nop 0")
        for i in range(0, 8, 2): A.e(f"v_pk_mul_f32 {v(a+i,2)}, {v(a+i,2)}, {v(E+i,2)}")
        for i in range(4): A.e(f"v_cvt_pk_bf16_f32 v{H+i}, v{a+2*i}, v{a+2*i+1}")
        A.e(f"buffer_store_dwordx4 {v(H,4)}, v{LO}, s[{SWS}:{SWS+3}], s{sT0} offen offset:{t*1024}")
    A.label("L_gu_end")
    A.e("s_endpgm")
    A.lgkm = []; A.vm = []
    return dict(name=name, nvgpr=240, nsgpr=40, accum=240, grid=224, block=512, lds=131072)

VBASE = 65536
def gen_attn(A):
    name = "attn_kernel"
    kstart(A, name)
    A.e("s_cmp_ge_u32 s2, 256"); A.e("s_cbranch_scc1 L_at_end")
    SWS = 4
    load_srds(A, [("ws", SWS)])
    sHD, sJ, sWV, sTB, sT0, sT1, sI, sFB, sKO, sVO = range(16, 26)
    A.e(f"s_and_b32 s{sT0}, s2, 7"); A.e(f"s_lshr_b32 s{sT1}, s2, 3")
    A.e(f"s_lshl_b32 s{sHD}, s{sT0}, 2"); A.e(f"s_and_b32 s{sJ}, s{sT1}, 3"); A.e(f"s_add_u32 s{sHD}, s{sHD}, s{sJ}")
    A.e(f"s_lshr_b32 s{sJ}, s{sT1}, 2")
    L, T0, T1, T2, T3, LO = 1, 2, 3, 4, 5, 6
    KA_, VA0, VA1 = 7, 8, 9
    Q = 12
    S = [16, 32]; P = [48, 56]; O = 64; C = 80; KFR = [96, 100]; VFR = [[104, 108], [112, 116]]
    A.e(f"v_lshrrev_b32 v{T0}, 6, v0"); A.e(f"v_and_b32 v{L}, 63, v0")
    A.e(f"v_readfirstlane_b32 s{sWV}, v{T0}")
    A.e(f"v_lshlrev_b32 v{LO}, 4, v{L}")
    A.e(f"s_lshl_b32 s{sTB}, s{sJ}, 3"); A.e(f"s_add_u32 s{sTB}, s{sTB}, s{sWV}")
    A.e(f"s_lshl_b32 s{sT0}, s{sHD}, 16")
    A.e(f"s_lshl_b32 s{sT1}, s{sTB}, 10"); A.e(f"s_add_u32 s{sT1}, s{sT1}, s{sT0}")
    A.e(f"s_lshl_b32 s{sKO}, s{sWV}, 10"); A.e(f"s_add_u32 s{sKO}, s{sKO}, s{sT0}")
    A.e(f"s_add_u32 s{sVO}, s{sKO}, {VF}"); A.e(f"s_add_u32 s{sKO}, s{sKO}, {KF}")
    A.e("s_waitcnt lgkmcnt(0)")
    A.vmem(f"buffer_load_dwordx4 {v(Q,4)}, v{LO}, s[{SWS}:{SWS+3}], s{sT1} offen", ("c", 0))
    A.e(f"s_lshl_b32 s{sT0}, s{sWV}, 10")
    A.e(f"s_mul_i32 s{sT1}, s{sWV}, 1040"); A.e(f"s_add_u32 s{sT1}, s{sT1}, {VBASE}")
    for c in range(8):
        A.e(f"s_add_u32 m0, s{sT0}, {c*8192}")
        A.e("s_nop 0")
        A.vmem(f"buffer_load_dwordx4 v{LO}, s[{SWS}:{SWS+3}], s{sKO} offen lds", ("c", c))
        A.e(f"s_add_u32 m0, s{sT1}, {c*8*1040}")
        A.e(f"s_add_u32 s{sKO}, s{sKO}, 8192")
        A.vmem(f"buffer_load_dwordx4 v{LO}, s[{SWS}:{SWS+3}], s{sVO} offen lds", ("c", c))
        A.e(f"s_add_u32 s{sVO}, s{sVO}, 8192")
    for i in range(4): A.e(f"v_mov_b32 v{S[0]+i}, 0x3f803f80")
    A.e(f"v_mul_u32_u24 v{T0}, 1040, v{L}"); A.e(f"v_add_u32 v{T0}, {VBASE+1024}, v{T0}")
    A.e(f"ds_write_b128 v{T0}, {v(S[0],4)}")
    A.e(f"v_lshrrev_b32 v{T0}, 5, v{L}"); A.e(f"v_lshlrev_b32 v{T0}, 8, v{T0}")
    A.e(f"v_and_b32 v{T1}, 15, v{L}"); A.e(f"v_lshl_add_u32 v{T0}, v{T1}, 4, v{T0}")
    A.e(f"v_add_u32 v{T0}, {VBASE}, v{T0}"); A.e(f"v_add_u32 v{T1}, 512, v{T0}")
    A.e(f"v_mov_b32 v{T2}, {VBASE+1024}")
    A.e(f"v_and_b32 v{T3}, 16, v{L}")
    A.e(f"v_cmp_eq_u32 vcc, 0, v{T3}")
    A.e("s_nop 1")
    A.e(f"v_cndmask_b32 v10, v{T2}, v{T0}, vcc")
    A.e(f"v_cndmask_b32 v11, v{T2}, v{T1}, vcc")
    A.e(f"s_mov_b32 s{sFB}, 0")
    A.wait(vm=[("c", 0)]); A.e("s_waitcnt lgkmcnt(0)")
    A.e("s_barrier")
    A.e(f"ds_read_b128 {v(KFR[0],4)}, v{LO}")
    A.e(f"ds_read_b128 {v(KFR[1],4)}, v{LO} offset:1024")
    A.e("s_waitcnt lgkmcnt(0)")
    for b in range(2): A.e(f"v_mfma_f32_32x32x16_bf16 {v(S[b],16)}, {v(KFR[b],4)}, {v(Q,4)}, 0")
    A.e("s_nop 7"); A.e("s_nop 3")
    A.e(f"v_max_f32 v{T0}, v{S[0]}, v{S[0]+1}")
    for i in range(2, 32, 2): A.e(f"v_max3_f32 v{T0}, v{T0}, v{S[0]+i}, v{S[0]+i+1}")
    A.e(f"v_add_f32 v{T0}, {hx(80.0)}, v{T0}")
    A.label("L_at_restart")
    A.e(f"v_mov_b32 v{T1}, v{T0}"); A.e("s_nop 1")
    A.e(f"v_permlane32_swap_b32 v{T0}, v{T1}"); A.e("s_nop 0")
    A.e(f"v_max_f32 v{T0}, v{T0}, v{T1}")
    for i in range(16): A.e(f"v_sub_f32 v{C+i}, 0, v{T0}")
    for i in range(16): A.e(f"v_mov_b32 v{O+i}, 0")
    for i in range(8): A.e(f"v_mov_b32 v{P[1]+i}, 0")
    for i in range(8): A.e(f"v_mov_b32 v{VFR[1][0]+i}, 0")
    A.e(f"v_mov_b32 v{KA_}, v{LO}"); A.e(f"v_mov_b32 v{VA0}, v10"); A.e(f"v_mov_b32 v{VA1}, v11")
    A.e(f"ds_read_b128 {v(KFR[0],4)}, v{KA_}")
    A.e(f"ds_read_b128 {v(KFR[1],4)}, v{KA_} offset:1024")
    A.e("s_waitcnt lgkmcnt(0)")
    A.e(f"v_mfma_f32_32x32x16_bf16 {v(S[0],16)}, {v(KFR[0],4)}, {v(Q,4)}, {v(C,16)}")
    A.e(f"s_mov_b32 s{sI}, 0")
    A.e("s_nop 7"); A.e("s_nop 3")
    U = 8
    A.raw("    .p2align 6")
    A.label("L_at_loop")
    for u in range(U):
        b = u & 1; nb = b ^ 1
        if u == U - 2:
            A.e(f"s_cmp_lg_u32 s{sFB}, 0"); A.e(f"s_cbranch_scc1 L_at_nosync")
            A.e(f"s_cmp_ge_u32 s{sI}, 3"); A.e(f"s_cbranch_scc1 L_at_nosync")
            A.e(f"s_cmp_eq_u32 s{sI}, 0"); A.e(f"s_cbranch_scc1 L_at_sync0")
            A.e(f"s_cmp_eq_u32 s{sI}, 1"); A.e(f"s_cbranch_scc1 L_at_sync1")
            A.e("s_waitcnt vmcnt(0)")
            A.label("L_at_sync1"); A.e("s_waitcnt vmcnt(10)")
            A.label("L_at_sync0"); A.e("s_waitcnt vmcnt(12)")
            A.e("s_barrier")
            A.label("L_at_nosync")
        ex = [f"v_exp_f32 v{S[b]+i}, v{S[b]+i}" for i in range(16)]
        cv = [f"v_cvt_pk_bf16_f32 v{P[b]+i}, v{S[b]+2*i}, v{S[b]+2*i+1}" for i in range(8)]
        A.e("s_waitcnt lgkmcnt(0)")
        A.e(f"v_mfma_f32_32x32x16_bf16 {v(S[nb],16)}, {v(KFR[nb],4)}, {v(Q,4)}, {v(C,16)}")
        A.e(f"ds_read_b128 {v(KFR[b],4)}, v{KA_} offset:{(u+2)*1024}")
        A.e(f"ds_read_b128 {v(VFR[b][0],4)}, v{VA0} offset:{u*1040}")
        A.e(f"ds_read_b128 {v(VFR[b][1],4)}, v{VA1} offset:{u*1040}")
        for x in ex[:6]: A.e(x)
        A.e(f"v_mfma_f32_32x32x16_bf16 {v(O,16)}, {v(VFR[nb][0],4)}, {v(P[nb],4)}, {v(O,16)}")
        for x in ex[6:12]: A.e(x)
        A.e(f"v_mfma_f32_32x32x16_bf16 {v(O,16)}, {v(VFR[nb][1],4)}, {v(P[nb]+4,4)}, {v(O,16)}")
        for x in ex[12:]: A.e(x)
        for x in cv: A.e(x)
    A.e(f"v_add_u32 v{KA_}, {U*1024}, v{KA_}")
    A.e(f"v_add_u32 v{VA0}, {U*1040}, v{VA0}")
    A.e(f"v_add_u32 v{VA1}, {U*1040}, v{VA1}")
    A.e(f"s_add_u32 s{sI}, s{sI}, 1"); A.e(f"s_cmp_lt_u32 s{sI}, {64//U}"); A.e("s_cbranch_scc1 L_at_loop")
    A.e("s_waitcnt lgkmcnt(0)")
    A.e(f"v_mfma_f32_32x32x16_bf16 {v(O,16)}, {v(VFR[1][0],4)}, {v(P[1],4)}, {v(O,16)}")
    A.e(f"v_mfma_f32_32x32x16_bf16 {v(O,16)}, {v(VFR[1][1],4)}, {v(P[1]+4,4)}, {v(O,16)}")
    A.e("s_nop 7"); A.e("s_nop 3")
    A.e(f"s_cmp_lg_u32 s{sFB}, 0"); A.e("s_cbranch_scc1 L_at_fin")
    A.e(f"v_mov_b32 v{T0}, v{O+8}")
    for i in range(8): A.e(f"v_fma_f32 v{T0}, v{O+i}, 0, v{T0}")
    A.e(f"v_mov_b32 v{T1}, {hx(2.0**100)}")
    A.e(f"v_cmp_nlt_f32 vcc, v{T0}, v{T1}")
    A.e("s_nop 4")
    A.e("s_cbranch_vccz L_at_fin")
    A.e(f"s_mov_b32 s{sFB}, 1")
    A.e(f"s_mov_b32 s{sI}, 0")
    A.e(f"v_mov_b32 v{KA_}, v{LO}")
    A.e(f"v_mov_b32 v{T0}, 0xff800000")
    A.label("L_at_maxloop")
    A.e(f"ds_read_b128 {v(KFR[0],4)}, v{KA_}")
    A.e("s_waitcnt lgkmcnt(0)")
    A.e(f"v_mfma_f32_32x32x16_bf16 {v(S[0],16)}, {v(KFR[0],4)}, {v(Q,4)}, 0")
    A.e("s_nop 7"); A.e("s_nop 3")
    for i in range(0, 16, 2): A.e(f"v_max3_f32 v{T0}, v{T0}, v{S[0]+i}, v{S[0]+i+1}")
    A.e(f"v_add_u32 v{KA_}, 1024, v{KA_}")
    A.e(f"s_add_u32 s{sI}, s{sI}, 1"); A.e(f"s_cmp_lt_u32 s{sI}, 64"); A.e("s_cbranch_scc1 L_at_maxloop")
    A.e("s_branch L_at_restart")
    A.label("L_at_fin")
    A.e(f"v_rcp_f32 v{T0}, v{O+8}"); A.e("s_nop 0")
    for i in range(8): A.e(f"v_mul_f32 v{O+i}, v{O+i}, v{T0}")
    for i in range(4): A.e(f"v_cvt_pk_bf16_f32 v{P[0]+i}, v{O+2*i}, v{O+2*i+1}")
    A.e(f"s_mul_i32 s{sT0}, s{sTB}, 144"); A.e(f"s_add_u32 s{sT0}, s{sT0}, s{sHD}"); A.e(f"s_lshl_b32 s{sT0}, s{sT0}, 10")
    A.e(f"s_add_u32 s{sT0}, s{sT0}, {ACTF + 112*1024}")
    A.e(f"buffer_store_dwordx4 {v(P[0],4)}, v{LO}, s[{SWS}:{SWS+3}], s{sT0} offen")
    A.label("L_at_end")
    A.e("s_endpgm")
    A.lgkm = []; A.vm = []
    return dict(name=name, nvgpr=120, nsgpr=40, accum=120, grid=256, block=512, lds=VBASE + 64*1040 + 2048)

def gen_final(A):
    name = "final_kernel"
    kstart(A, name)
    A.e("s_cmp_ge_u32 s2, 256"); A.e("s_cbranch_scc1 L_fi_end")
    SD_, SO, SWS, SX, SOUT = 4, 8, 12, 16, 20
    load_srds(A, [("wd", SD_), ("wo", SO), ("ws", SWS), ("x", SX), ("out", SOUT)])
    sTM, sTN, sWV, sT0, sT1, sM, sWD, sWOo, sA0, sA1 = range(24, 34)
    A.e(f"s_and_b32 s{sT0}, s2, 7"); A.e(f"s_lshr_b32 s{sT1}, s2, 3")
    A.e(f"s_and_b32 s{sTM}, s{sT0}, 3"); A.e(f"s_lshl_b32 s{sTM}, s{sTM}, 3")
    A.e(f"s_and_b32 s{sTN}, s{sT1}, 7"); A.e(f"s_add_u32 s{sTM}, s{sTM}, s{sTN}")
    A.e(f"s_lshr_b32 s{sTN}, s{sT0}, 2"); A.e(f"s_lshl_b32 s{sTN}, s{sTN}, 2")
    A.e(f"s_lshr_b32 s{sT1}, s{sT1}, 3"); A.e(f"s_add_u32 s{sTN}, s{sTN}, s{sT1}")
    L, T0, T1, T2, T3, LO = 1, 2, 3, 4, 5, 6
    WD0, WD1, RA = 8, 9, 10
    XR = 12
    ACC = [[16, 32], [48, 64]]
    WF = [[80, 84], [88, 92]]
    AF = 96
    A.e(f"v_lshrrev_b32 v{T0}, 6, v0"); A.e(f"v_and_b32 v{L}, 63, v0")
    A.e(f"v_readfirstlane_b32 s{sWV}, v{T0}")
    A.e(f"v_lshlrev_b32 v{LO}, 4, v{L}")
    A.e(f"v_lshrrev_b32 v{T0}, 3, v{L}"); A.e(f"v_lshlrev_b32 v{T0}, 10, v{T0}")
    A.e(f"v_and_b32 v{T1}, 3, v{L}"); A.e(f"v_lshl_add_u32 v{T0}, v{T1}, 4, v{T0}")
    A.e(f"v_bfe_u32 v{T1}, v{L}, 2, 1"); A.e(f"v_bfe_u32 v{T2}, v{L}, 4, 1"); A.e(f"v_xor_b32 v{T1}, v{T1}, v{T2}")
    A.e(f"v_lshl_add_u32 v{WD0}, v{T1}, 6, v{T0}")
    A.e(f"v_add_u32 v{WD1}, {8192-1024}, v{WD0}")
    A.e(f"s_mul_i32 s{sM}, s{sWV}, {9*2048}")
    A.e(f"s_lshl_b32 s{sT0}, s{sTN}, 7")
    A.e(f"s_mul_i32 s{sWD}, s{sWV}, {14*16384}"); A.e(f"s_add_u32 s{sWD}, s{sWD}, s{sT0}")
    A.e(f"s_lshl_b32 s{sWOo}, s{sWV}, 16"); A.e(f"s_add_u32 s{sWOo}, s{sWOo}, s{sT0}")
    A.e(f"s_mul_i32 s{sA0}, s{sTM}, {2*144*1024}"); A.e(f"s_add_u32 s{sA0}, s{sA0}, {ACTF}")
    A.e(f"s_lshl_b32 s{sT0}, s{sWV}, 12"); A.e(f"s_add_u32 s{sA1}, s{sA0}, s{sT0}"); A.e(f"s_add_u32 s{sA1}, s{sA1}, {112*1024}")
    A.e(f"s_mul_i32 s{sT0}, s{sWV}, {14*1024}"); A.e(f"s_add_u32 s{sA0}, s{sA0}, s{sT0}")
    A.e(f"v_add_u32 v7, {144*1024}, v{LO}")
    A.e("s_waitcnt lgkmcnt(0)")
    A.e(f"v_lshrrev_b32 v{T0}, 3, v0"); A.e(f"v_lshlrev_b32 v{T0}, 10, v{T0}")
    A.e(f"v_and_b32 v{T1}, 7, v0"); A.e(f"v_lshl_add_u32 v{168}, v{T1}, 4, v{T0}")
    A.e(f"s_lshl_b32 s34, s{sTM}, 16"); A.e(f"s_lshl_b32 s{sT0}, s{sTN}, 7"); A.e(f"s_add_u32 s34, s34, s{sT0}")
    A.vmem(f"buffer_load_dwordx4 {v(XR,4)}, v168, s[{SX}:{SX+3}], s34 offen", "x")
    def issue(k):
        slot = k % 9
        srd, so, sa = (SD_, sWD, sA0) if k < 14 else (SO, sWOo, sA1)
        A.e(f"s_add_u32 m0, s{sM}, {slot*2048}")
        A.e("s_nop 0")
        A.vmem(f"buffer_load_dwordx4 v{WD0}, s[{srd}:{srd+3}], s{so} offen lds", ("k", k))
        A.vmem(f"buffer_load_dwordx4 v{WD1}, s[{srd}:{srd+3}], s{so} offen offset:1024 lds", ("k", k))
        A.vmem(f"buffer_load_dwordx4 {v(AF+8*slot,4)}, v{LO}, s[{SWS}:{SWS+3}], s{sa} offen", ("k", k))
        A.vmem(f"buffer_load_dwordx4 {v(AF+8*slot+4,4)}, v7, s[{SWS}:{SWS+3}], s{sa} offen", ("k", k))
        A.e(f"s_add_u32 s{so}, s{so}, 16384")
        A.e(f"s_add_u32 s{sa}, s{sa}, 1024")
    for k in range(9): issue(k)
    A.e(f"v_lshrrev_b32 v{T0}, 5, v{L}"); A.e(f"v_bfe_u32 v{T1}, v{L}, 2, 2")
    A.e(f"v_lshl_add_u32 v{T0}, v{T0}, 2, v{T1}"); A.e(f"v_lshlrev_b32 v{T0}, 7, v{T0}")
    A.e(f"v_bfe_u32 v{T2}, v{L}, 4, 1"); A.e(f"v_lshl_add_u32 v{T0}, v{T2}, 5, v{T0}")
    A.e(f"v_and_b32 v{T2}, 3, v{L}"); A.e(f"v_lshl_add_u32 v{T0}, v{T2}, 3, v{T0}")
    A.e(f"v_add_u32 v{T0}, s{sM}, v{T0}")
    A.e(f"v_lshrrev_b32 v{T1}, 1, v{T1}")
    A.e(f"v_lshl_add_u32 v{RA}, v{T1}, 6, v{T0}")
    A.e(f"v_xor_b32 v{T1}, 1, v{T1}")
    A.e(f"v_lshl_add_u32 v{RA+1}, v{T1}, 6, v{T0}")
    for r in range(16, 80): A.e(f"v_mov_b32 v{r}, 0")
    for k in range(18):
        slot = k % 9; b = k & 1
        A.wait(vm=[("k", k)])
        for t in range(2):
            for p in range(2):
                A.e(f"ds_read_b64_tr_b16 {v(WF[b][t]+2*p,2)}, v{RA+t} offset:{slot*2048 + p*1024}")
        A.e("s_waitcnt lgkmcnt(0)")
        for t in range(2):
            for tb2 in range(2):
                acc = v(ACC[t][tb2], 16)
                A.e(f"v_mfma_f32_32x32x16_bf16 {acc}, {v(WF[b][t],4)}, {v(AF+8*slot+4*tb2,4)}, {acc}")
        if k + 9 < 18: issue(k + 9)
    A.e("s_nop 7"); A.e("s_nop 3")
    A.e("s_barrier")
    A.e(f"v_and_b32 v{T0}, 31, v{L}"); A.e(f"v_lshrrev_b32 v{T1}, 5, v{L}")
    A.e(f"v_and_b32 v{T2}, 7, v{L}"); A.e(f"v_xor_b32 v{T1}, v{T1}, v{T2}")
    A.e(f"v_lshlrev_b32 v{T0}, 8, v{T0}")
    A.e(f"s_lshl_b32 s{sT0}, s{sWV}, 14"); A.e(f"v_add_u32 v{T0}, s{sT0}, v{T0}")
    for q in range(4):
        A.e(f"v_xor_b32 v{T3}, {2*q}, v{T1}")
        A.e(f"v_lshl_add_u32 v{80+q}, v{T3}, 4, v{T0}")
    for t in range(2):
        for tb2 in range(2):
            for q in range(4):
                A.e(f"ds_write_b128 v{80+q}, {v(ACC[t][tb2]+4*q,4)} offset:{tb2*8192 + t*128}")
    A.e("s_waitcnt lgkmcnt(0)")
    A.e("s_barrier")
    A.e(f"v_lshrrev_b32 v{T0}, 3, v0")
    A.e(f"v_and_b32 v{T1}, 7, v{T0}")
    A.e(f"v_and_b32 v{T2}, 7, v{L}"); A.e(f"v_lshlrev_b32 v{T2}, 1, v{T2}")
    A.e(f"v_xor_b32 v{T2}, v{T2}, v{T1}")
    A.e(f"v_lshlrev_b32 v{T0}, 8, v{T0}")
    A.e(f"v_lshl_add_u32 v80, v{T2}, 4, v{T0}")
    A.e(f"v_xor_b32 v81, 16, v80")
    A.e(f"v_add_u32 v82, 65536, v80"); A.e(f"v_add_u32 v83, 65536, v81")
    for w in range(8):
        hi = 2 if w >= 4 else 0
        A.e(f"ds_read_b128 {v(16+8*w,4)}, v{80+hi} offset:{(w%4)*16384}")
        A.e(f"ds_read_b128 {v(20+8*w,4)}, v{81+hi} offset:{(w%4)*16384}")
    A.e("s_waitcnt vmcnt(0)")
    for i in range(4):
        A.e(f"v_lshlrev_b32 v{84+2*i}, 16, v{XR+i}")
        A.e(f"v_and_b32 v{85+2*i}, 0xffff0000, v{XR+i}")
    A.e("s_waitcnt lgkmcnt(0)")
    for w in range(8):
        for i in range(8): A.e(f"v_add_f32 v{84+i}, v{84+i}, v{16+8*w+i}")
    for i in range(4): A.e(f"v_cvt_pk_bf16_f32 v{XR+i}, v{84+2*i}, v{85+2*i}")
    A.e(f"buffer_store_dwordx4 {v(XR,4)}, v168, s[{SOUT}:{SOUT+3}], s34 offen")
    A.label("L_fi_end")
    A.e("s_endpgm")
    A.lgkm = []; A.vm = []
    return dict(name=name, nvgpr=176, nsgpr=40, accum=176, grid=256, block=512, lds=8*9*2048)

HEADER = open("parallel_sum__softmax_full_mha__swiglu_ffn__prompt.s.ref").read().split("; Override")[0]

def build(gens, order=None):
    A = Asm()
    infos = [g(A) for g in gens]
    body = A.text()
    probs = check_hazards(body)
    byname = {i["name"]: i for i in infos}
    order = order or [i["name"] for i in infos]
    out = HEADER
    for n in order:
        i = byname[n]
        out += f"; @launch kernel={n} grid=({i['grid']},1,1) block=({i['block']},1,1) lds={i['lds']}\n"
    out += '.amdgcn_target "amdgcn-amd-amdhsa--gfx950"\n' + body
    for i in infos: out += KD.format(**i)
    return out, probs

if __name__ == "__main__":
    out, probs = build([gen_qkv, gen_gateup, gen_attn, gen_final])
    open(sys.argv[1] if len(sys.argv) > 1 else "k0.s", "w").write(out)
    print("hazards:", len(probs), "bytes:", len(out))
```

```python
import sys, struct, copy
from asmlib import *

QF, KF, VF, ACTF = 0, 2 << 20, 4 << 20, 8 << 20
FLG = 20 << 20
F1, F2, F3, EPOCH = FLG, FLG + 8192, FLG + 16384 + 8192, FLG + 4096
PROF = 24 << 20
WS_SIZE = 32 << 20
KA = dict(x=0, wqkv=8, wo=16, bx=24, wg=32, wu=40, wd=48, out=56, dbg=64, ws=72)
SZ = dict(x=2048*512*2, wqkv=512*1536*2, wo=512*512*2, wg=512*1792*2, wu=512*1792*2, wd=1792*512*2, out=2048*512*2, ws=WS_SIZE)
LOG2E = 1.4426950408889634
def f2u(f): return struct.unpack("<I", struct.pack("<f", f))[0]
def hx(f): return "0x%08x" % f2u(f)
NAME = "parallel_sum__softmax_full_mha__swiglu_ffn__prompt_kernel"
INSTR = False
OPT = dict(prio=True, split=7)

W0, W1, ZS, XR0 = 0, 32768, 65536, 98304
RING = 131072
SLOT = [(ZS, 4096), (XR0, 8192), (XR0 + 4096, 8192), (W0, 4096), (W1, 4096), (ZS, 4096), (XR0, 8192), (XR0 + 4096, 8192)]

SX, SQ, SG, SU, SD, SO, SOUT, SWS = 4, 8, 12, 16, 20, 24, 28, 32
SCUR = 36
(sRB, sGI, sHD, sJ, sTM, sTN, sW, sTQ, sKH, sROT, sTAG, sT0, sT1, sT2, sXB, sXO, sRO0, sRO1, sONE, sTB, sI,
 sKO, sVO, sWSO, sHSO, sRNG, sSPIN, sXCD, sLA, sLB) = range(40, 70)
sMSK = 70
sNL = 72
MF = "v_mfma_f32_32x32x16_bf16"
def srd(b): return f"s[{b}:{b+3}]"

STAMPS = []
SKIP = ("pre", "wt")
def stamp(A, name, dyn=0):
    if not INSTR: return
    if INSTR != "all" and name.startswith(SKIP): return
    if name not in STAMPS:
        STAMPS.append(name)
        for i in range(1, dyn): STAMPS.append(f"{name}+{i}")
    i = STAMPS.index(name) + 4
    assert i + dyn < 64
    A.e("s_memtime s[76:77]")
    if dyn: A.e(f"s_add_u32 s78, s{sI}, {i}")
    A.e("s_waitcnt lgkmcnt(0)"); A.lgkm = []
    A.e(f"v_writelane_b32 v127, s76, {'s78' if dyn else i}" if not dyn else "s_mov_b32 s79, m0\ns_mov_b32 m0, s78\ns_nop 0\nv_writelane_b32 v127, s76, m0\ns_mov_b32 m0, s79")

class Side:
    def __init__(self, A): self.q = []; self.A = A
    def add(self, fn_or_str): self.q.append(fn_or_str)
    def pull(self, n):
        for _ in range(n):
            if not self.q: return
            x = self.q.pop(0)
            if callable(x): x()
            else: self.A.e(x)
    def flush(self): self.pull(len(self.q))

def poll(A, label, vaddr, vtmp, issue_first=True):
    A.label(label)
    A.e(f"buffer_load_dword v{vtmp}, v{vaddr}, {srd(SWS)}, 0 offen sc1")
    A.e("s_waitcnt vmcnt(0)"); A.vm = []
    A.e(f"v_cmp_ne_u32 vcc, s{sTAG}, v{vtmp}")
    A.e(f"s_cmp_eq_u32 s{sSPIN}, 0")
    A.e(f"s_cbranch_scc1 {label}_out")
    A.e(f"s_sub_u32 s{sSPIN}, s{sSPIN}, 1")
    A.e("s_nop 0")
    A.e(f"s_cbranch_vccz {label}_out")
    A.e("s_sleep 2")
    A.e(f"s_branch {label}")
    A.label(label + "_out")

def gen():
    A = Asm()
    A.raw(".text"); A.raw(f".globl {NAME}"); A.raw(".p2align 8"); A.raw(f".type {NAME},@function"); A.label(NAME)
    A.e("s_cmp_ge_u32 s2, 256"); A.e("s_cbranch_scc1 L_end")
    if INSTR:
        A.e("s_memrealtime s[74:75]")
        A.e("v_mov_b32 v127, 0")
        stamp(A, "start")
    items = [("x", SX), ("ws", SWS), ("wqkv", SQ), ("wg", SG), ("wu", SU), ("wd", SD), ("wo", SO), ("out", SOUT)]
    for n, b in items: A.e(f"s_load_dwordx2 s[{b}:{b+1}], s[0:1], {KA[n]}")
    for n, b in items:
        A.e(f"s_mov_b32 s{b+2}, {SZ[n]}"); A.e(f"s_mov_b32 s{b+3}, 0x00020000")
    L, T0, T1, T2, T3, LO = 1, 2, 3, 4, 5, 6
    A.e(f"v_lshrrev_b32 v{T0}, 6, v0"); A.e(f"v_and_b32 v{L}, 63, v0")
    A.e(f"v_readfirstlane_b32 s{sW}, v{T0}")
    A.e(f"v_lshlrev_b32 v{LO}, 4, v{L}")
    A.e(f"s_and_b32 s{sXCD}, s2, 7"); A.e(f"s_lshr_b32 s{sT1}, s2, 3")
    A.e(f"s_and_b32 s{sRB}, s{sXCD}, 1"); A.e(f"s_lshl_b32 s{sRB}, s{sRB}, 3")
    A.e(f"s_and_b32 s{sT0}, s{sT1}, 7"); A.e(f"s_add_u32 s{sRB}, s{sRB}, s{sT0}")
    A.e(f"s_and_b32 s{sTM}, s{sXCD}, 3"); A.e(f"s_lshl_b32 s{sTM}, s{sTM}, 3"); A.e(f"s_add_u32 s{sTM}, s{sTM}, s{sT0}")
    A.e(f"s_lshr_b32 s{sT0}, s{sT1}, 3")
    A.e(f"s_lshr_b32 s{sTN}, s{sXCD}, 2"); A.e(f"s_lshl_b32 s{sTN}, s{sTN}, 2"); A.e(f"s_add_u32 s{sTN}, s{sTN}, s{sT0}")
    A.e(f"s_add_u32 s{sROT}, s{sT0}, s{sRB}"); A.e(f"s_and_b32 s{sROT}, s{sROT}, 3")
    A.e(f"s_lshr_b32 s{sT2}, s{sXCD}, 1")
    A.e(f"s_mul_i32 s{sGI}, s{sT2}, 3"); A.e(f"s_add_u32 s{sGI}, s{sGI}, s{sT0}")
    A.e(f"s_add_u32 s{sT2}, s{sT2}, 12")
    A.e(f"s_cmp_eq_u32 s{sT0}, 3"); A.e(f"s_cselect_b32 s{sGI}, s{sT2}, s{sGI}")
    A.e(f"s_lshl_b32 s{sHD}, s{sXCD}, 2"); A.e(f"s_and_b32 s{sT0}, s{sT1}, 3"); A.e(f"s_add_u32 s{sHD}, s{sHD}, s{sT0}")
    A.e(f"s_lshr_b32 s{sJ}, s{sT1}, 2")
    A.e(f"s_and_b32 s{sTQ}, s{sW}, 3"); A.e(f"s_lshr_b32 s{sKH}, s{sW}, 2")
    A.e(f"s_lshl_b32 s{sTB}, s{sRB}, 2"); A.e(f"s_add_u32 s{sTB}, s{sTB}, s{sTQ}")
    A.e(f"s_lshl_b32 s{sXB}, s{sW}, 13"); A.e(f"s_add_u32 s{sXB}, s{sXB}, {XR0}")
    A.e(f"s_lshl_b32 s{sXO}, s{sTB}, 15"); A.e(f"s_lshl_b32 s{sT0}, s{sKH}, 9"); A.e(f"s_add_u32 s{sXO}, s{sXO}, s{sT0}")
    A.e(f"s_mov_b32 s{sSPIN}, 0x40000")
    A.e(f"s_mov_b32 s{sONE}, 0x3f803f80")
    XD = 8
    XRD = 12
    ACC1, ACCA, ACCB = 16, 32, 64
    WF = [96, 100, 104, 108]
    QD, GD, UD = 112, 113, 114
    QRP, GR0, GR1 = 115, 116, 117
    RC0, RC1 = 118, 119
    VOWN, VPAR, VE = 120, 121, 122
    R_, NM = 123, 124
    XO, XP = 128, 192
    A.e(f"v_lshrrev_b32 v{T0}, 3, v{L}"); A.e(f"v_lshlrev_b32 v{T0}, 10, v{T0}")
    A.e(f"v_lshrrev_b32 v{T1}, 4, v{L}"); A.e(f"v_and_b32 v{T2}, 7, v{L}"); A.e(f"v_xor_b32 v{T1}, v{T1}, v{T2}")
    A.e(f"v_lshl_add_u32 v{XD}, v{T1}, 4, v{T0}")
    A.e(f"v_xor_b32 v{T1}, 4, v{T1}")
    A.e(f"v_lshl_add_u32 v{XD+1}, v{T1}, 4, v{T0}")
    A.e(f"v_add_u32 v{XD+1}, 7168, v{XD+1}")
    A.e(f"v_add_u32 v{XD+2}, {2*7168}, v{XD}"); A.e(f"v_add_u32 v{XD+3}, {2*7168}, v{XD+1}")
    A.e(f"v_mov_b32 v{T3}, {EPOCH}")
    A.e("s_waitcnt lgkmcnt(0)")
    A.vmem(f"buffer_load_dword v{VE}, v{T3}, {srd(SWS)}, 0 offen sc1", "E")
    def x_issue(c):
        A.e(f"s_add_u32 s{sT0}, s{sROT}, {c}"); A.e(f"s_and_b32 s{sT0}, s{sT0}, 3"); A.e(f"s_lshl_b32 s{sT0}, s{sT0}, 7")
        A.e(f"s_add_u32 m0, s{sXB}, {(c&1)*4096}")
        A.e(f"s_add_u32 s{sT0}, s{sT0}, s{sXO}")
        for u in range(4):
            A.vmem(f"buffer_load_dwordx4 v{XD+u}, {srd(SX)}, s{sT0} offen offset:{1024*u} lds", ("x", c))
    stamp(A, "karg")
    x_issue(0); x_issue(1)
    stamp(A, "xi")
    A.e(f"v_and_b32 v{T0}, 31, v{L}")
    A.e(f"v_bfe_u32 v{T1}, v{L}, 1, 3")
    A.e(f"v_lshrrev_b32 v{T2}, 5, v{L}")
    A.e(f"v_xor_b32 v{T1}, v{T1}, v{T2}")
    A.e(f"v_lshlrev_b32 v{T0}, 7, v{T0}"); A.e(f"v_add_u32 v{T0}, s{sXB}, v{T0}")
    for kk in range(4):
        A.e(f"v_xor_b32 v{T3}, {2*kk}, v{T1}")
        A.e(f"v_lshl_add_u32 v{XRD+kk}, v{T3}, 4, v{T0}")
    A.e(f"v_lshrrev_b32 v{T0}, 3, v{L}")
    A.e(f"v_bfe_u32 v{T1}, v{L}, 2, 1"); A.e(f"v_bfe_u32 v{T3}, v{L}, 4, 1"); A.e(f"v_xor_b32 v{T1}, v{T1}, v{T3}")
    A.e(f"v_lshlrev_b32 v{T1}, 2, v{T1}"); A.e(f"v_and_or_b32 v{T1}, v{L}, 3, v{T1}")
    A.e(f"v_mul_u32_u24 v{QD}, 3072, v{T0}"); A.e(f"v_lshl_add_u32 v{QD}, v{T1}, 4, v{QD}")
    A.e(f"v_lshlrev_b32 v7, 10, v{T0}"); A.e(f"v_lshl_add_u32 v7, v{T1}, 4, v7")
    A.e(f"v_mul_u32_u24 v{T0}, 3584, v{T0}")
    A.e(f"v_and_b32 v{T1}, 1, v{L}"); A.e(f"v_lshl_add_u32 v{T0}, v{T1}, 4, v{T0}")
    A.e(f"v_bfe_u32 v{T1}, v{L}, 1, 2"); A.e(f"v_xor_b32 v{T1}, v{T1}, v{T3}")
    A.e(f"v_lshl_add_u32 v{GD}, v{T1}, 5, v{T0}")
    A.e(f"v_xor_b32 v{T1}, 2, v{T1}"); A.e(f"v_lshl_add_u32 v{UD}, v{T1}, 5, v{T0}")
    for e, sr in ((0, sRO0), (1, sRO1)):
        A.e(f"s_add_u32 s{sr}, s{sKH}, s{sROT}")
        if e: A.e(f"s_add_u32 s{sr}, s{sr}, 2")
        A.e(f"s_and_b32 s{sr}, s{sr}, 3"); A.e(f"s_lshl2_add_u32 s{sr}, s{sr}, s{sTQ}"); A.e(f"s_lshl_b32 s{sr}, s{sr}, 4")
    def w1_issue(c):
        A.e(f"s_add_u32 s{sT0}, s{sROT}, {c}"); A.e(f"s_and_b32 s{sT0}, s{sT0}, 3")
        A.e(f"s_lshl2_add_u32 s{sT0}, s{sT0}, s{sTQ}"); A.e(f"s_lshl4_add_u32 s{sT0}, s{sKH}, s{sT0}")
        A.e(f"s_mul_i32 s{sT0}, s{sT0}, {16*3072}")
        A.e(f"s_lshl_b32 s{sT1}, s{sGI}, 7"); A.e(f"s_add_u32 s{sT0}, s{sT0}, s{sT1}")
        A.e(f"s_lshl4_add_u32 s{sT1}, s{sKH}, s{sTQ}"); A.e(f"s_lshl_b32 s{sT1}, s{sT1}, 11")
        A.e(f"s_add_u32 m0, s{sT1}, {W0 + c*8192}")
        A.e("s_nop 0")
        A.vmem(f"buffer_load_dwordx4 v{QD}, {srd(SQ)}, s{sT0} offen lds", ("w1", c))
        A.e(f"s_add_u32 m0, s{sT1}, {W0 + c*8192 + 1024}")
        A.e(f"s_add_u32 s{sT0}, s{sT0}, {8*3072}")
        A.vmem(f"buffer_load_dwordx4 v{QD}, {srd(SQ)}, s{sT0} offen lds", ("w1", c))
    A.e(f"v_bfe_u32 v{T0}, v{L}, 2, 2")
    A.e(f"v_lshlrev_b32 v{T1}, 10, v{T2}"); A.e(f"v_lshl_add_u32 v{T1}, v{T0}, 7, v{T1}")
    A.e(f"v_and_b32 v{GR0}, 3, v{L}"); A.e(f"v_lshl_add_u32 v{T1}, v{GR0}, 3, v{T1}")
    A.e(f"v_lshrrev_b32 v{T0}, 1, v{T0}")
    A.e(f"v_xor_b32 v{QRP}, s{sKH}, v{T0}"); A.e(f"v_lshl_add_u32 v{QRP}, v{QRP}, 6, v{T1}")
    A.e(f"v_lshl_add_u32 v{QRP}, v{T3}, 5, v{QRP}")
    A.e(f"v_lshl_add_u32 v{T1}, v{T3}, 11, v{T1}")
    A.e(f"v_lshl_add_u32 v{T0}, v{T3}, 1, v{T0}")
    A.e(f"s_lshl_b32 s{sT0}, s{sKH}, 1")
    A.e(f"v_xor_b32 v{T0}, s{sT0}, v{T0}")
    A.e(f"v_lshl_add_u32 v{GR0}, v{T0}, 5, v{T1}")
    A.e(f"v_xor_b32 v{GR1}, 32, v{GR0}")
    A.e(f"v_add_u32 v{VOWN}, s{sXB}, v{LO}")
    A.e(f"s_xor_b32 s{sT0}, s{sW}, 4"); A.e(f"s_lshl_b32 s{sT0}, s{sT0}, 13"); A.e(f"s_add_u32 s{sT0}, s{sT0}, {XR0}")
    A.e(f"v_add_u32 v{VPAR}, s{sT0}, v{LO}")
    SA, SB = [16, 17], [18, 19]
    for r in SA + SB: A.e(f"v_mov_b32 v{r}, 0")
    A.e(f"s_lshl_b32 s{sLA}, s{sGI}, 8")
    A.e(f"s_add_u32 s{sLB}, s{sLA}, 128")
    A.e(f"s_cmp_ge_u32 s{sGI}, 12"); A.e("s_cbranch_scc0 L_lines")
    A.e(f"s_sub_u32 s{sLA}, s{sLA}, {8*128}")
    A.e(f"s_add_u32 s{sLB}, s{sGI}, 12"); A.e(f"s_lshl_b32 s{sLB}, s{sLB}, 7")
    A.label("L_lines")
    for c in range(4):
        A.wait(vm=[("x", c)])
        stamp(A, f"x{c}")
        for kk in range(4):
            A.lds(f"ds_read_b128 {v(XO+16*c+4*kk,4)}, v{XRD+kk} offset:{(c&1)*4096}", "xr")
        A.wait(lgkm="all")
        if c < 2: x_issue(c + 2)
        if c == 1: w1_issue(0); w1_issue(1)
        if c == 2: w1_issue(2); w1_issue(3)
        for i in range(16):
            r = XO + 16*c + i
            A.e(f"v_dot2c_f32_bf16 v{SA[i&1]}, s{sONE}, v{r}")
            A.e(f"v_dot2c_f32_bf16 v{SB[i&1]}, v{r}, v{r}")
    A.e(f"v_readfirstlane_b32 s{sTAG}, v{VE}")
    A.e("s_nop 1")
    A.e(f"v_add_f32 v20, v{SA[0]}, v{SA[1]}"); A.e(f"v_add_f32 v21, v{SB[0]}, v{SB[1]}")
    A.e(f"s_mul_i32 s{sTAG}, s{sTAG}, 1664525"); A.e(f"s_add_u32 s{sTAG}, s{sTAG}, 1013904223")
    A.e("v_mov_b32 v22, v20"); A.e("v_mov_b32 v23, v21"); A.e("s_nop 1")
    A.e("v_permlane32_swap_b32 v20, v22"); A.e("v_permlane32_swap_b32 v21, v23"); A.e("s_nop 0")
    A.e("v_add_f32 v20, v20, v22"); A.e("v_add_f32 v21, v21, v23")
    A.e(f"ds_write_b64 v{VOWN}, v[20:21]")
    stamp(A, "stats")
    A.wait(vm=[("w1", 1)]); A.e("s_waitcnt lgkmcnt(0)")
    stamp(A, "w1")
    A.e("s_barrier")
    stamp(A, "B1")
    A.e(f"ds_read_b64 v[22:23], v{VPAR}")
    A.e(f"s_lshl_b32 s{sT0}, s{sKH}, 15")
    A.e(f"v_add_u32 v{RC0}, s{sT0}, v{QRP}")
    A.e(f"v_xor_b32 v{RC1}, 0x8000, v{RC0}")
    def w1_read(q):
        rc = RC0 if q < 16 else RC1
        for p in range(2):
            A.lds(f"ds_read_b64_tr_b16 {v(WF[q&3]+2*p,2)}, v{rc} offset:{(q&15)*2048 + p*512}", ("w", q))
    A.e("s_waitcnt lgkmcnt(0)")
    w1_read(0); w1_read(1)
    A.e("v_add_f32 v20, v20, v22"); A.e("v_add_f32 v21, v21, v23")
    A.e(f"v_mul_f32 v20, {hx(1/512)}, v20"); A.e(f"v_mul_f32 v21, {hx(1/512)}, v21")
    A.e("v_fma_f32 v21, -v20, v20, v21"); A.e("v_max_f32 v21, 0, v21")
    A.e("v_cvt_pk_bf16_f32 v22, v20, v21")
    A.e("v_lshlrev_b32 v20, 16, v22"); A.e("v_and_b32 v21, 0xffff0000, v22")
    A.e(f"v_add_f32 v21, {hx(1e-5)}, v21")
    A.e("v_cvt_pk_bf16_f32 v21, v21, v21"); A.e("v_lshlrev_b32 v21, 16, v21")
    A.e("v_sqrt_f32 v21, v21"); A.e("s_nop 0")
    A.e("v_cvt_pk_bf16_f32 v21, v21, v21"); A.e("v_lshlrev_b32 v21, 16, v21")
    A.e(f"v_rcp_f32 v{R_}, v21"); A.e("s_nop 0")
    A.e(f"v_mul_f32 v{NM}, v20, v{R_}")
    def norm(s_):
        for i in range(0, 4, 2):
            r = XO + 4*s_ + i
            A.e(f"v_lshlrev_b32 v{T0}, 16, v{r}"); A.e(f"v_and_b32 v{T1}, 0xffff0000, v{r}")
            A.e(f"v_lshlrev_b32 v{T2}, 16, v{r+1}"); A.e(f"v_and_b32 v{T3}, 0xffff0000, v{r+1}")
            for t in (T0, T1, T2, T3): A.e(f"v_fma_f32 v{t}, v{t}, v{R_}, -v{NM}")
            A.e(f"v_cvt_pk_bf16_f32 v{r}, v{T0}, v{T1}"); A.e(f"v_cvt_pk_bf16_f32 v{r+1}, v{T2}, v{T3}")
    def push(s_): A.lds(f"ds_write_b128 v{VPAR}, {v(XO+4*s_,4)} offset:{(s_&7)*1024}", "push")
    def pull(s_): A.lds(f"ds_read_b128 {v(XP+4*s_,4)}, v{VOWN} offset:{(s_&7)*1024}", ("xp", s_))
    def mf1(q):
        x = XO + 4*q if q < 16 else XP + 4*(q-16)
        A.wait(lgkm=[("w", q), ("xp", q-16)])
        c = "0" if q == 0 else v(ACC1, 16)
        A.e(f"{MF} {v(ACC1,16)}, {v(WF[q&3],4)}, {v(x,4)}, {c}")

    def stage_issue_list(typ, st):
        sub, e, half = st >> 2, st & 1, (st >> 1) & 1
        base, stride = SLOT[st]
        isV = (typ == "R" and sub == 0)
        rs = 3072 if isV else 3584
        sro = sRO1 if e else sRO0
        sl = sLB if sub else sLA
        out = []
        for u in range(2):
            for hb in range(2):
                def f(u=u, hb=hb):
                    if u == 0 and hb == 0:
                        A.e(f"s_mul_i32 s{sT2}, s{sro}, {rs}")
                        A.e(f"s_add_u32 s{sT2}, s{sT2}, s{sl}")
                        A.e(f"s_mul_i32 s{sT1}, s{sW}, {stride}")
                    off = half*256*rs + hb*8*rs + (128*u if isV else 0)
                    A.e(f"s_add_u32 m0, s{sT1}, {base + u*2048 + hb*1024}")
                    A.e(f"s_add_u32 s{sT0}, s{sT2}, {off}")
                    ad, sr = (QD, SQ) if isV else ((GD, SG), (UD, SU))[u]
                    A.vmem(f"buffer_load_dwordx4 v{ad}, {srd(sr)}, s{sT0} offen lds", ("st", st))
                out.append(f)
        return out
    def typed_issue(st, tagl):
        sv = list(A.vm)
        A.e(f"s_cmp_ge_u32 s{sGI}, 12"); A.e(f"s_cbranch_scc1 L_ti{tagl}_R")
        for f in stage_issue_list("P", st): f()
        A.e(f"s_branch L_ti{tagl}_done")
        A.label(f"L_ti{tagl}_R"); A.vm = sv
        for f in stage_issue_list("R", st): f()
        A.label(f"L_ti{tagl}_done")

    norm(0)
    stamp(A, "n0")
    typed_issue(0, "a")
    stamp(A, "ti0")
    for q in range(8):
        push(q)
        if q + 2 < 8: w1_read(q + 2)
        mf1(q)
        norm(q + 1)
    stamp(A, "preB2")
    A.wait(vm=[("w1", 3)], lgkm="all")
    A.e("s_barrier")
    stamp(A, "B2")
    w1_read(8); w1_read(9)
    for s_ in range(8): pull(s_)
    for q in range(8, 12):
        w1_read(q + 2)
        mf1(q)
        norm(q + 1)
    A.wait(lgkm="all")
    A.e("s_barrier")
    stamp(A, "B3")
    for s_ in range(8, 13): push(s_)
    for q in range(12, 16):
        w1_read(q + 2)
        mf1(q)
        if q < 15: norm(q + 1); push(q + 1)
    for q in range(16, 20):
        w1_read(q + 2); mf1(q)
    A.wait(lgkm="all")
    A.e("s_barrier")
    stamp(A, "B4")
    for s_ in range(8, 16): pull(s_)
    for q in range(20, 24):
        w1_read(q + 2); mf1(q)
    A.wait(lgkm="all")
    stamp(A, "preti1")
    typed_issue(1, "b")
    stamp(A, "ti1")
    for q in range(24, 28):
        w1_read(q + 2); mf1(q)
    typed_issue(2, "c")
    for q in range(28, 32):
        if q + 2 < 32: w1_read(q + 2)
        mf1(q)
    stamp(A, "p1end")
    A.e(f"s_mov_b32 s{sNL}, {hx(-LOG2E)}"); A.e(f"s_mov_b32 s{sNL+1}, {hx(-LOG2E)}")
    A.e(f"s_cmp_ge_u32 s{sGI}, 12"); A.e("s_cbranch_scc1 L_R")
    A.e(f"s_cmp_eq_u32 s{sKH}, 1"); A.e("s_cbranch_scc1 L_P1")
    vm0, lg0 = list(A.vm), list(A.lgkm)
    Q = 12
    PFA, PFT = 8, 9
    def silu_list(acc, E, H, soff_s, imm, tag):
        o = []
        for i in range(0, 8, 2): o.append(f"v_pk_mul_f32 {v(E+i,2)}, {v(acc+i,2)}, s[{sNL}:{sNL+1}]")
        for i in range(8): o.append(f"v_exp_f32 v{E+i}, v{E+i}")
        for i in range(0, 8, 2): o.append(f"v_pk_mul_f32 {v(acc+i,2)}, {v(acc+i,2)}, {v(acc+8+i,2)}")
        for i in range(0, 8, 2): o.append(f"v_pk_add_f32 {v(E+i,2)}, {v(E+i,2)}, 1.0 op_sel_hi:[1,0]")
        for i in range(8): o.append(f"v_rcp_f32 v{E+i}, v{E+i}")
        o.append("s_nop 0")
        for i in range(0, 8, 2): o.append(f"v_pk_mul_f32 {v(acc+i,2)}, {v(acc+i,2)}, {v(E+i,2)}")
        for i in range(4): o.append(f"v_cvt_pk_bf16_f32 v{H+i}, v{acc+2*i}, v{acc+2*i+1}")
        o.append(lambda: A.vmem(f"buffer_store_dwordx4 {v(H,4)}, v{LO}, {srd(SWS)}, s{soff_s} offen offset:{imm} sc1", tag))
        return o
    def h_soff(sd, sl):
        return [f"s_mul_i32 s{sd}, s{sTB}, {144*1024}", f"s_lshl_b32 s{sI}, s{sl}, 5", f"s_add_u32 s{sd}, s{sd}, s{sI}",
                f"s_lshl_b32 s{sI}, s{sKH}, 11", f"s_add_u32 s{sd}, s{sd}, s{sI}", f"s_add_u32 s{sd}, s{sd}, {ACTF}"]
    def kv_issue_list(c):
        def k():
            A.e(f"s_lshl_b32 s{sT1}, s{sW}, 11")
            A.e(f"s_add_u32 m0, s{sT1}, {c*16384}")
            A.e(f"s_add_u32 s{sT0}, s{sKO}, {c*8192}")
            A.vmem(f"buffer_load_dwordx4 v{LO}, {srd(SWS)}, s{sT0} offen sc1 lds", ("kv", c))
        def vv():
            A.e(f"s_lshl_b32 s{sT1}, s{sW}, 11")
            A.e(f"s_add_u32 m0, s{sT1}, {c*16384 + 1024}")
            A.e(f"s_add_u32 s{sT0}, s{sKO}, {c*8192 + (VF-KF)}")
            A.vmem(f"buffer_load_dwordx4 v{LO}, {srd(SWS)}, s{sT0} offen sc1 lds", ("kv", c))
        return [k, vv]

    def pass2(typ, kh):
        A.vm, A.lgkm = list(vm0), list(lg0)
        sd = Side(A); dq = Side(A)
        for st in range(8):
            sub = st >> 2
            base, stride = SLOT[st]
            isV = (typ == "R" and sub == 0)
            acc0 = ACCB if sub else ACCA
            if isV: A.e(f"v_add_u32 v{RC0}, {base}, v{QRP}")
            else:
                A.e(f"v_add_u32 v{RC0}, {base}, v{GR0}"); A.e(f"v_add_u32 v{RC1}, {base}, v{GR1}")
            wl = [("st", st)]
            if st == 5: wl += ["qk", "vst"]
            stamp(A, f"pre{st}")
            A.wait(vm=wl)
            stamp(A, f"wt{st}")
            A.e("s_barrier")
            stamp(A, f"st{st}")
            if st == 5:
                A.e(f"s_cmp_lg_u32 s{sW}, 0"); A.e(f"s_cbranch_scc1 L_f1_{typ}{kh}")
                A.e(f"s_lshl_b32 s{sT0}, s{sGI}, 7"); A.e(f"s_lshl2_add_u32 s{sT0}, s{sRB}, s{sT0}"); A.e(f"s_add_u32 s{sT0}, s{sT0}, {F1}")
                A.e(f"v_mov_b32 v{T0}, s{sTAG}")
                A.e("s_mov_b64 exec, 1")
                A.e(f"buffer_store_dword v{T0}, off, {srd(SWS)}, s{sT0} sc1")
                A.e("s_mov_b64 exec, -1")
                A.label(f"L_f1_{typ}{kh}")
            def rd(kk):
                for t in range(2):
                    for p in range(2):
                        if isV: rc, off = RC0, kk*stride + t*2048 + p*512
                        else: rc, off = (RC0, RC1)[t], kk*stride + p*512
                        A.lds(f"ds_read_b64_tr_b16 {v(WF[2*(kk&1)+t]+2*p,2)}, v{rc} offset:{off}", ("w", kk))
            rd(0)
            if st == 0:
                for f in stage_issue_list(typ, 3) + stage_issue_list(typ, 4): dq.add(f)
            elif st <= 3:
                for f in stage_issue_list(typ, st + 4): dq.add(f)
            if st == 0:
                sd.add(f"s_mov_b32 s{sI}, {hx(0.25*LOG2E)}"); sd.add(f"s_cmp_lt_u32 s{sGI}, 8"); sd.add(f"s_cselect_b32 s{sI}, s{sI}, 1.0")
                for i in range(16): sd.add(f"v_mul_f32 v{ACC1+i}, s{sI}, v{ACC1+i}")
                for i in range(8): sd.add(f"v_cvt_pk_bf16_f32 v{ACC1+i}, v{ACC1+2*i}, v{ACC1+2*i+1}")
                sd.add(f"s_lshl_b32 s{sHSO}, s{sGI}, 18"); sd.add(f"s_lshl_b32 s{sI}, s{sTB}, 10"); sd.add(f"s_add_u32 s{sHSO}, s{sHSO}, s{sI}")
                sd.add(f"s_add_u32 s{sHSO}, s{sHSO}, {kh*131072}")
                sd.add(lambda: A.vmem(f"buffer_store_dwordx4 {v(ACC1,4)}, v{LO}, {srd(SWS)}, s{sHSO} offen sc1", "qk"))
                sd.add(f"s_add_u32 s{sHSO}, s{sHSO}, 65536")
                sd.add(lambda: A.vmem(f"buffer_store_dwordx4 {v(ACC1+4,4)}, v{LO}, {srd(SWS)}, s{sHSO} offen sc1", "qk"))
            if st == 4:
                if typ == "R":
                    sd.add(f"v_bfe_u32 v{T0}, v{L}, 4, 1"); sd.add(f"v_lshlrev_b32 v{T0}, 16, v{T0}")
                    sd.add(f"v_lshrrev_b32 v{T1}, 5, v{L}"); sd.add(f"v_lshl_add_u32 v{T0}, v{T1}, 8, v{T0}")
                    sd.add(f"v_and_b32 v{T1}, 15, v{L}"); sd.add(f"v_lshl_add_u32 v{T0}, v{T1}, 4, v{T0}")
                    sd.add(f"s_lshl_b32 s{sHSO}, s{sLA}, 11")
                    sd.add(f"s_lshl_b32 s{sI}, s{sTB}, 10"); sd.add(f"s_add_u32 s{sHSO}, s{sHSO}, s{sI}")
                    sd.add(f"s_add_u32 s{sHSO}, s{sHSO}, {kh*131072}")
                    for t in range(2):
                        a = ACCA + 16*t
                        for i in range(8): sd.add(f"v_cvt_pk_bf16_f32 v{a+i}, v{a+2*i}, v{a+2*i+1}")
                        sd.add(lambda a=a: A.vmem(f"buffer_store_dwordx4 {v(a,4)}, v{T0}, {srd(SWS)}, s{sHSO} offen sc1", "vst"))
                        sd.add(lambda a=a: A.vmem(f"buffer_store_dwordx4 {v(a+4,4)}, v{T0}, {srd(SWS)}, s{sHSO} offen offset:512 sc1", "vst"))
                        if t == 0: sd.add(f"s_add_u32 s{sHSO}, s{sHSO}, {4*65536}")
                else:
                    for x in h_soff(sHSO, sLA): sd.add(x)
                    for t in range(2):
                        for x in silu_list(ACCA + 16*t, ACC1, ACC1 + 8 + 4*t, sHSO, t*1024, "h"): sd.add(x)
            if st == 6:
                sd.flush()
                A.e(f"s_lshr_b32 s{sT0}, s{sXCD}, 1"); A.e(f"s_add_u32 s{sT0}, s{sT0}, 12")
                A.e(f"v_bfe_u32 v{T0}, v{L}, 4, 1"); A.e(f"v_lshlrev_b32 v{T0}, 3, v{T0}"); A.e(f"v_add_u32 v{T0}, s{sXCD}, v{T0}")
                A.e(f"v_mov_b32 v{T1}, s{sT0}")
                A.e(f"v_cmp_gt_u32 vcc, 32, v{L}"); A.e("s_nop 1")
                A.e(f"v_cndmask_b32 v{T0}, v{T1}, v{T0}, vcc")
                A.e(f"v_and_b32 v{T1}, 15, v{L}"); A.e(f"v_lshlrev_b32 v{T1}, 2, v{T1}")
                A.e(f"v_lshl_add_u32 v{PFA}, v{T0}, 7, v{T1}"); A.e(f"v_add_u32 v{PFA}, {F1}, v{PFA}")
                A.e(f"s_lshl_b32 s{sKO}, s{sHD}, 16"); A.e(f"s_lshl_b32 s{sT0}, s{sW}, 10"); A.e(f"s_add_u32 s{sKO}, s{sKO}, s{sT0}")
                A.e(f"s_lshl_b32 s{sVO}, s{sJ}, 13"); A.e(f"s_add_u32 s{sVO}, s{sVO}, s{sKO}")
                A.e(f"s_add_u32 s{sKO}, s{sKO}, {KF}")
            for kk in range(8):
                q = 8*(st & 3) + kk
                own = (q < 16) == (kh == 0)
                x = (XO if own else XP) + 4*(q & 15)
                if kk < 7: rd(kk + 1)
                A.wait(lgkm=[("w", kk)])
                for t in range(2):
                    acc = v(acc0 + 16*t, 16)
                    c = "0" if q == 0 else acc
                    w = v(WF[2*(kk&1)+t], 4)
                    if isV: A.e(f"{MF} {acc}, {v(x,4)}, {w}, {c}")
                    else: A.e(f"{MF} {acc}, {w}, {v(x,4)}, {c}")
                    if not (kk == 0 and st in (0, 4)): sd.pull(3)
                dq.pull(1)
                if st == 7 and kk == 0:
                    stamp(A, "prep1")
                    poll(A, f"L_p1_{typ}{kh}", PFA, PFT)
                    stamp(A, "p1")
                    dq.add(lambda: A.vmem(f"buffer_load_dwordx4 {v(Q,4)}, v{LO}, {srd(SWS)}, s{sVO} offen sc1", ("kv", 0)))
                    for f in kv_issue_list(0) + kv_issue_list(1): dq.add(f)
            if st == 4 and typ == "R": sd.flush()
            if st == 3: sd.flush()
            assert not dq.q
        assert not sd.q
        stamp(A, "p2end")
        A.wait(vm="all", lgkm="all")
        A.e("s_branch L_A_done")
    pass2("P", 0)
    A.label("L_P1"); pass2("P", 1)
    A.label("L_R")
    A.e(f"s_cmp_eq_u32 s{sKH}, 1"); A.e("s_cbranch_scc1 L_R1")
    pass2("R", 0)
    A.label("L_R1"); pass2("R", 1)
    A.label("L_A_done")
    A.e("s_barrier")
    stamp(A, "BB0")
    KA_, VA = 8, 9
    RA = 10
    S = [16, 32]; P = [48, 56]; O = 64; C = 80; KFR = [96, 100]; VFR = [[104, 108], [112, 116]]
    DACC = [[128, 144], [160, 176]]
    HF = [192, 200]; DW = 208
    LO2 = 120; PF2 = 121
    A.e(f"ds_read_b128 {v(KFR[0],4)}, v{LO}"); A.e(f"ds_read_b128 {v(KFR[1],4)}, v{LO} offset:2048")
    for x in h_soff(sHSO, sLB): A.e(x)
    A.e("s_waitcnt lgkmcnt(0)")
    for b in range(2): A.e(f"{MF} {v(S[b],16)}, {v(KFR[b],4)}, {v(Q,4)}, 0")
    for t in range(2):
        for x in silu_list(ACCB + 16*t, 48, 56 + 4*t, sHSO, t*1024, "h"):
            x() if callable(x) else A.e(x)
    A.e(f"v_max_f32 v{T0}, v{S[0]}, v{S[0]+1}")
    for i in range(2, 32, 2): A.e(f"v_max3_f32 v{T0}, v{T0}, v{S[0]+i}, v{S[0]+i+1}")
    A.e(f"v_add_f32 v{T0}, {hx(80.0)}, v{T0}")
    A.e(f"v_lshrrev_b32 v{T2}, 5, v{L}"); A.e(f"v_lshlrev_b32 v{T3}, 8, v{T2}")
    A.e(f"v_and_b32 v{T1}, 15, v{L}"); A.e(f"v_lshl_add_u32 v{T3}, v{T1}, 4, v{T3}")
    A.e(f"v_add_u32 v122, 1024, v{T3}")
    A.e(f"s_mov_b32 s{sMSK}, 0xffff"); A.e(f"s_mov_b32 s{sMSK+1}, 0xffff")
    for i in range(16): A.e(f"v_mov_b32 v{104+i}, s{sONE}")
    A.e(f"s_mov_b32 s{sT2}, 0")
    sFB = sXO
    A.e(f"s_mov_b32 s{sFB}, 0")
    A.e(f"s_lshl_b32 s{sRNG}, s{sW}, 12"); A.e(f"s_add_u32 s{sRNG}, s{sRNG}, {RING}")
    A.e(f"v_bfe_u32 v{T1}, v{L}, 2, 2")
    A.e(f"v_lshl_add_u32 v{T2}, v{T2}, 2, v{T1}"); A.e(f"v_lshlrev_b32 v{T2}, 7, v{T2}")
    A.e(f"v_bfe_u32 v{T3}, v{L}, 4, 1"); A.e(f"v_lshl_add_u32 v{T2}, v{T3}, 5, v{T2}")
    A.e(f"v_and_b32 v{T3}, 3, v{L}"); A.e(f"v_lshl_add_u32 v{T2}, v{T3}, 3, v{T2}")
    A.e(f"v_add_u32 v{T2}, s{sRNG}, v{T2}")
    A.e(f"v_lshrrev_b32 v{T1}, 1, v{T1}")
    A.e(f"v_lshl_add_u32 v{RA}, v{T1}, 6, v{T2}"); A.e(f"v_xor_b32 v{RA+1}, 64, v{RA}")
    A.e(f"v_add_u32 v{LO2}, {144*1024}, v{LO}")
    A.e(f"v_add_u32 v123, {8192-1024}, v7")
    A.e(f"s_lshl_b32 s{sT0}, s{sTM}, 8"); A.e(f"s_add_u32 s{sT0}, s{sT0}, {F2}")
    A.e(f"v_lshl_add_u32 v{PF2}, v{L}, 2, s{sT0}")
    for i in range(4): A.e(f"s_mov_b32 s{SCUR+i}, s{SD+i}")
    A.e(f"s_mul_i32 s{sWSO}, s{sW}, {14*16384}"); A.e(f"s_lshl_b32 s{sT0}, s{sTN}, 7"); A.e(f"s_add_u32 s{sWSO}, s{sWSO}, s{sT0}")
    sAO = sRO0
    A.e(f"s_mul_i32 s{sAO}, s{sTM}, {2*144*1024}"); A.e(f"s_mul_i32 s{sT0}, s{sW}, {14*1024}")
    A.e(f"s_add_u32 s{sAO}, s{sAO}, s{sT0}"); A.e(f"s_add_u32 s{sAO}, s{sAO}, {ACTF}")
    for r in range(128, 192): A.e(f"v_mov_b32 v{r}, 0")
    vmB = list(A.vm)
    A.label("L_restart")
    A.e(f"v_mov_b32 v{T1}, v{T0}"); A.e("s_nop 1")
    A.e(f"v_permlane32_swap_b32 v{T0}, v{T1}"); A.e("s_nop 0")
    A.e(f"v_max_f32 v{T0}, v{T0}, v{T1}")
    for i in range(16): A.e(f"v_sub_f32 v{C+i}, 0, v{T0}")
    for i in range(16): A.e(f"v_mov_b32 v{O+i}, 0")
    for i in range(8): A.e(f"v_mov_b32 v{P[1]+i}, 0")
    A.e(f"v_mov_b32 v{KA_}, v{LO}"); A.e(f"v_mov_b32 v{VA}, v122")
    A.e(f"{MF} {v(S[0],16)}, {v(KFR[0],4)}, {v(Q,4)}, {v(C,16)}")
    A.e(f"s_mov_b32 s{sI}, 0")
    if OPT["prio"]: A.e("s_setprio 1")
    A.e("s_nop 7")
    stamp(A, "loop")

    def w_issue(ab):
        A.e(f"s_add_u32 m0, s{sRNG}, {ab*2048}")
        A.e("s_nop 0")
        A.e(f"buffer_load_dwordx4 v7, {srd(SCUR)}, s{sWSO} offen lds")
        A.e(f"buffer_load_dwordx4 v123, {srd(SCUR)}, s{sWSO} offen offset:1024 lds")
        A.e(f"s_add_u32 s{sWSO}, s{sWSO}, 16384")
    def h_issue(ab):
        A.e(f"buffer_load_dwordx4 {v(HF[ab],4)}, v{LO}, {srd(SWS)}, s{sAO} offen sc1")
        A.e(f"buffer_load_dwordx4 {v(HF[ab]+4,4)}, v{LO2}, {srd(SWS)}, s{sAO} offen sc1")
        A.e(f"s_add_u32 s{sAO}, s{sAO}, 1024")
    def w_read(ab, dst):
        for t in range(2):
            for p in range(2):
                A.e(f"ds_read_b64_tr_b16 {v(dst+4*t+2*p,2)}, v{RA+t} offset:{ab*2048 + p*1024}")
    def d_mf(t, tb2, wsrc, hsrc):
        acc = v(DACC[t][tb2], 16)
        A.e(f"{MF} {acc}, {v(wsrc+4*t,4)}, {v(hsrc+4*tb2,4)}, {acc}")

    def iteration(kind):
        for u in range(8):
            b = u & 1; nb = b ^ 1
            if OPT["prio"] and u in (0, OPT["split"]):
                A.e(f"s_cmp_lg_u32 s{sKH}, 0"); A.e(f"s_cbranch_scc1 L_pr_{kind}{u}")
                A.e(f"s_setprio {2 if u == 0 else 0}")
                A.label(f"L_pr_{kind}{u}")
            if kind == "side" and u == 6:
                A.e(f"s_cmp_lg_u32 s{sI}, 1"); A.e("s_cbranch_scc1 L_nobar")
                A.e("s_barrier")
                A.label("L_nobar")
            ex = [f"v_exp_f32 v{S[b]+i}, v{S[b]+i}" for i in range(16)]
            cv = [f"v_cvt_pk_bf16_f32 v{P[b]+i}, v{S[b]+2*i}, v{S[b]+2*i+1}" for i in range(8)]
            A.e("s_waitcnt lgkmcnt(0)")
            A.e(f"{MF} {v(S[nb],16)}, {v(KFR[nb],4)}, {v(Q,4)}, {v(C,16)}")
            A.e(f"ds_read_b128 {v(KFR[b],4)}, v{KA_} offset:{(u+2)*2048}")
            A.e(f"s_mov_b64 exec, s[{sMSK}:{sMSK+1}]")
            A.e(f"ds_read_b128 {v(VFR[b][0],4)}, v{VA} offset:{u*2048}")
            A.e(f"ds_read_b128 {v(VFR[b][1],4)}, v{VA} offset:{u*2048+512}")
            A.e("s_mov_b64 exec, -1")
            ab = u >> 2; uu = u & 3
            if kind == "side" and uu == 0:
                A.e("s_waitcnt vmcnt(4)")
                w_read(ab, DW)
            for x in ex[:4]: A.e(x)
            A.e(f"{MF} {v(O,16)}, {v(VFR[nb][0],4)}, {v(P[nb],4)}, {v(O,16)}")
            for x in ex[4:8]: A.e(x)
            A.e(f"{MF} {v(O,16)}, {v(VFR[nb][1],4)}, {v(P[nb]+4,4)}, {v(O,16)}")
            for x in ex[8:12]: A.e(x)
            if kind == "side" and uu in (1, 2): d_mf(uu - 1, 0, DW, HF[ab])
            for x in ex[12:]: A.e(x)
            if kind == "side" and uu in (1, 2): d_mf(uu - 1, 1, DW, HF[ab])
            for x in cv[:4]: A.e(x)
            if kind == "side" and uu == 1: w_issue(ab)
            if kind == "side" and uu == 3: h_issue(ab)
            if kind == "first":
                A.e(f"s_cmp_lg_u32 s{sFB}, 0"); A.e(f"s_cbranch_scc1 L_skip{u}")
                if u == 0:
                    for f in kv_issue_list(2) + kv_issue_list(3): f()
                if u == 1:
                    for f in kv_issue_list(4) + kv_issue_list(5): f()
                if u == 2:
                    for f in kv_issue_list(6) + kv_issue_list(7): f()
                if u == 3:
                    A.wait(vm=["h"])
                    A.e(f"s_lshr_b32 s{sT0}, s{sTB}, 1"); A.e(f"s_lshl_b32 s{sT0}, s{sT0}, 8")
                    A.e(f"s_lshl4_add_u32 s{sT0}, s{sGI}, s{sT0}")
                    A.e(f"s_and_b32 s{sT1}, s{sTQ}, 1"); A.e(f"s_lshl2_add_u32 s{sT0}, s{sKH}, s{sT0}")
                    A.e(f"s_lshl3_add_u32 s{sT0}, s{sT1}, s{sT0}"); A.e(f"s_add_u32 s{sT0}, s{sT0}, {F2}")
                    A.e(f"v_mov_b32 v{T1}, s{sTAG}")
                    A.e("s_mov_b64 exec, 1")
                    A.vmem(f"buffer_store_dword v{T1}, off, {srd(SWS)}, s{sT0} sc1", "f2")
                    A.e("s_mov_b64 exec, -1")
                if u == 7:
                    stamp(A, "bp2")
                    poll(A, "L_p2", PF2, T1)
                    stamp(A, "p2")
                    w_issue(0); h_issue(0); w_issue(1); h_issue(1)
                A.label(f"L_skip{u}")
            for x in cv[4:]: A.e(x)
        A.e(f"v_add_u32 v{KA_}, 16384, v{KA_}"); A.e(f"v_add_u32 v{VA}, 16384, v{VA}")
        stamp(A, "it", 8)
        A.e(f"s_add_u32 s{sI}, s{sI}, 1")
    A.raw("    .p2align 6")
    A.label("L_it0")
    iteration("first")
    A.e(f"s_cmp_eq_u32 s{sFB}, 0"); A.e("s_cbranch_scc1 L_loop")
    A.e(f"s_cmp_lt_u32 s{sI}, 8"); A.e("s_cbranch_scc1 L_it0")
    A.e("s_branch L_drain")
    A.raw("    .p2align 6")
    A.label("L_loop")
    A.e(f"s_cmp_lg_u32 s{sI}, 7"); A.e("s_cbranch_scc1 L_notlast")
    for i in range(4): A.e(f"s_mov_b32 s{SCUR+i}, s{SO+i}")
    A.e(f"s_lshl_b32 s{sWSO}, s{sW}, 16"); A.e(f"s_lshl_b32 s{sT0}, s{sTN}, 7"); A.e(f"s_add_u32 s{sWSO}, s{sWSO}, s{sT0}")
    A.e(f"s_mov_b32 s{sAO}, 0x7f000000")
    A.label("L_notlast")
    iteration("side")
    A.e(f"s_cmp_lt_u32 s{sI}, 8"); A.e("s_cbranch_scc1 L_loop")
    A.label("L_drain")
    stamp(A, "drain")
    A.e("s_waitcnt lgkmcnt(0)")
    A.e(f"{MF} {v(O,16)}, {v(VFR[1][0],4)}, {v(P[1],4)}, {v(O,16)}")
    A.e(f"{MF} {v(O,16)}, {v(VFR[1][1],4)}, {v(P[1]+4,4)}, {v(O,16)}")
    if OPT["prio"]: A.e("s_setprio 3")
    sTBq = sRO1
    A.e(f"s_lshl_b32 s{sTBq}, s{sJ}, 3"); A.e(f"s_add_u32 s{sTBq}, s{sTBq}, s{sW}")
    A.e(f"s_mul_i32 s{sT0}, s{sTBq}, 144"); A.e(f"s_add_u32 s{sT0}, s{sT0}, s{sHD}"); A.e(f"s_lshl_b32 s{sT0}, s{sT0}, 10")
    A.e(f"s_add_u32 s{sT0}, s{sT0}, {ACTF + 112*1024}")
    A.e(f"v_mov_b32 v{T1}, {hx(2.0**100)}")
    A.e("s_nop 4")
    A.e(f"s_cmp_lg_u32 s{sFB}, 0"); A.e("s_cbranch_scc1 L_fin")
    A.e(f"v_mov_b32 v{T0}, v{O+8}")
    for i in range(8): A.e(f"v_fma_f32 v{T0}, v{O+i}, 0, v{T0}")
    A.e(f"v_cmp_nlt_f32 vcc, v{T0}, v{T1}")
    A.e("s_nop 4")
    A.e("s_cbranch_vccz L_fin")
    A.e(f"s_mov_b32 s{sFB}, 1"); A.e(f"s_mov_b32 s{sI}, 0")
    A.e(f"v_mov_b32 v{KA_}, v{LO}"); A.e(f"v_mov_b32 v{T0}, 0xff800000")
    A.label("L_maxloop")
    A.e(f"ds_read_b128 {v(KFR[0],4)}, v{KA_}"); A.e("s_waitcnt lgkmcnt(0)")
    A.e(f"{MF} {v(S[0],16)}, {v(KFR[0],4)}, {v(Q,4)}, 0")
    A.e("s_nop 7"); A.e("s_nop 3")
    for i in range(0, 16, 2): A.e(f"v_max3_f32 v{T0}, v{T0}, v{S[0]+i}, v{S[0]+i+1}")
    A.e(f"v_add_u32 v{KA_}, 2048, v{KA_}")
    A.e(f"s_add_u32 s{sI}, s{sI}, 1"); A.e(f"s_cmp_lt_u32 s{sI}, 64"); A.e("s_cbranch_scc1 L_maxloop")
    A.e(f"ds_read_b128 {v(KFR[0],4)}, v{LO}"); A.e(f"ds_read_b128 {v(KFR[1],4)}, v{LO} offset:2048")
    for i in range(8): A.e(f"v_mov_b32 v{VFR[1][0]+i}, s{sONE}")
    A.e("s_waitcnt lgkmcnt(0)")
    A.e("s_branch L_restart")
    A.label("L_fin")
    A.e(f"v_rcp_f32 v{T0}, v{O+8}"); A.e("s_nop 0")
    for i in range(8): A.e(f"v_mul_f32 v{O+i}, v{O+i}, v{T0}")
    for i in range(4): A.e(f"v_cvt_pk_bf16_f32 v{P[0]+i}, v{O+2*i}, v{O+2*i+1}")
    A.e(f"buffer_store_dwordx4 {v(P[0],4)}, v{LO}, {srd(SWS)}, s{sT0} offen sc1")
    WOF = 16
    OF = 64
    A.e("s_waitcnt vmcnt(1)")
    w_read(0, WOF); w_read(1, WOF + 8)
    A.e(f"s_lshr_b32 s{sT1}, s{sTBq}, 1"); A.e(f"s_lshl_b32 s{sT1}, s{sT1}, 8"); A.e(f"s_lshl3_add_u32 s{sT1}, s{sHD}, s{sT1}")
    A.e(f"s_and_b32 s{sT2}, s{sTBq}, 1"); A.e(f"s_lshl2_add_u32 s{sT1}, s{sT2}, s{sT1}"); A.e(f"s_add_u32 s{sT1}, s{sT1}, {F3}")
    A.e(f"v_mov_b32 v{T1}, s{sTAG}")
    A.e("s_waitcnt vmcnt(0)")
    A.e("s_mov_b64 exec, 1")
    A.e(f"buffer_store_dword v{T1}, off, {srd(SWS)}, s{sT1} sc1")
    A.e("s_mov_b64 exec, -1")
    stamp(A, "f3")
    A.e("s_waitcnt lgkmcnt(0)")
    w_issue(0); w_issue(1)
    XRES, XA = 96, 100
    A.e(f"v_lshrrev_b32 v{T0}, 3, v0"); A.e(f"v_lshlrev_b32 v{T0}, 10, v{T0}")
    A.e(f"v_and_b32 v{T2}, 7, v0"); A.e(f"v_lshl_add_u32 v{XA}, v{T2}, 4, v{T0}")
    sOO = sKO
    A.e(f"s_lshl_b32 s{sOO}, s{sTM}, 16"); A.e(f"s_lshl_b32 s{sT0}, s{sTN}, 7"); A.e(f"s_add_u32 s{sOO}, s{sOO}, s{sT0}")
    A.e(f"buffer_load_dwordx4 {v(XRES,4)}, v{XA}, {srd(SX)}, s{sOO} offen")
    A.e(f"s_lshl_b32 s{sT0}, s{sTM}, 8"); A.e(f"s_lshl_b32 s{sT1}, s{sW}, 5"); A.e(f"s_add_u32 s{sT0}, s{sT0}, s{sT1}"); A.e(f"s_add_u32 s{sT0}, s{sT0}, {F3}")
    A.e(f"v_lshl_add_u32 v{PF2}, v{T2}, 2, s{sT0}")
    A.e(f"s_mul_i32 s{sAO}, s{sTM}, {2*144*1024}"); A.e(f"s_lshl_b32 s{sT0}, s{sW}, 12")
    A.e(f"s_add_u32 s{sAO}, s{sAO}, s{sT0}"); A.e(f"s_add_u32 s{sAO}, s{sAO}, {ACTF + 112*1024}")
    A.e("s_waitcnt vmcnt(0)")
    w_read(0, WOF + 16); w_read(1, WOF + 24)
    poll(A, "L_p3", PF2, T1)
    stamp(A, "p3")
    for k in range(4):
        A.e(f"buffer_load_dwordx4 {v(OF+8*k,4)}, v{LO}, {srd(SWS)}, s{sAO} offen offset:{k*1024} sc1")
        A.e(f"buffer_load_dwordx4 {v(OF+8*k+4,4)}, v{LO2}, {srd(SWS)}, s{sAO} offen offset:{k*1024} sc1")
    A.e(f"v_and_b32 v{T0}, 31, v{L}"); A.e(f"v_lshrrev_b32 v{T1}, 5, v{L}")
    A.e(f"v_and_b32 v{T2}, 7, v{L}"); A.e(f"v_xor_b32 v{T1}, v{T1}, v{T2}")
    A.e(f"v_lshlrev_b32 v{T0}, 8, v{T0}")
    A.e(f"s_lshl_b32 s{sT0}, s{sW}, 14"); A.e(f"v_add_u32 v{T0}, s{sT0}, v{T0}")
    for q in range(4):
        A.e(f"v_xor_b32 v{T3}, {2*q}, v{T1}"); A.e(f"v_lshl_add_u32 v{104+q}, v{T3}, 4, v{T0}")
    A.e(f"v_lshrrev_b32 v{T0}, 3, v0"); A.e(f"v_and_b32 v{T1}, 7, v{T0}")
    A.e(f"v_lshlrev_b32 v{T2}, 1, v{T2}"); A.e(f"v_xor_b32 v{T2}, v{T2}, v{T1}")
    A.e(f"v_lshlrev_b32 v{T0}, 8, v{T0}")
    A.e(f"v_lshl_add_u32 v108, v{T2}, 4, v{T0}"); A.e("v_xor_b32 v109, 16, v108")
    A.e("v_add_u32 v110, 65536, v108"); A.e("v_add_u32 v111, 65536, v109")
    A.e("s_waitcnt lgkmcnt(0)")
    A.e("s_barrier")
    for k in range(4):
        A.e(f"s_waitcnt vmcnt({6-2*k})")
        for t in range(2):
            for tb2 in range(2): d_mf(t, tb2, WOF + 8*k, OF + 8*k)
    stamp(A, "cmf")
    A.e("s_nop 8")
    for t in range(2):
        for tb2 in range(2):
            if t == 1 and tb2 == 1: A.e("s_nop 0")
            for q in range(4):
                A.e(f"ds_write_b128 v{104+q}, {v(DACC[t][tb2]+4*q,4)} offset:{tb2*8192 + t*128}")
    for i in range(4):
        A.e(f"v_lshlrev_b32 v{112+2*i}, 16, v{XRES+i}"); A.e(f"v_and_b32 v{113+2*i}, 0xffff0000, v{XRES+i}")
    A.e("s_waitcnt lgkmcnt(0)")
    A.e("s_barrier")
    stamp(A, "cbar")
    for w in range(8):
        hi = 2 if w >= 4 else 0
        A.e(f"ds_read_b128 {v(16+8*w,4)}, v{108+hi} offset:{(w%4)*16384}")
        A.e(f"ds_read_b128 {v(20+8*w,4)}, v{109+hi} offset:{(w%4)*16384}")
    for w in range(8):
        A.e(f"s_waitcnt lgkmcnt({14-2*w})")
        for i in range(8): A.e(f"v_add_f32 v{112+i}, v{112+i}, v{16+8*w+i}")
    for i in range(4): A.e(f"v_cvt_pk_bf16_f32 v{XRES+i}, v{112+2*i}, v{113+2*i}")
    A.e(f"buffer_store_dwordx4 {v(XRES,4)}, v{XA}, {srd(SOUT)}, s{sOO} offen")
    A.e(f"s_or_b32 s{sT0}, s2, s{sW}"); A.e(f"s_cmp_lg_u32 s{sT0}, 0"); A.e("s_cbranch_scc1 L_noep")
    A.e(f"v_mov_b32 v{T1}, s{sTAG}"); A.e(f"s_mov_b32 s{sT0}, {EPOCH}")
    A.e("s_mov_b64 exec, 1")
    A.e(f"buffer_store_dword v{T1}, off, {srd(SWS)}, s{sT0} sc1")
    A.label("L_noep")
    if INSTR:
        A.e("s_waitcnt vmcnt(0)")
        stamp(A, "end")
        A.e("s_memrealtime s[98:99]"); A.e("s_waitcnt lgkmcnt(0)")
        A.e("s_mov_b64 exec, -1")
        A.e(f"s_lshl_b32 s{sT0}, s2, 3"); A.e(f"s_add_u32 s{sT0}, s{sT0}, s{sW}"); A.e(f"s_lshl_b32 s{sT0}, s{sT0}, 8")
        A.e(f"s_add_u32 s{sT0}, s{sT0}, {PROF}")
        A.e("v_writelane_b32 v127, s74, 0"); A.e("v_writelane_b32 v127, s98, 1")
        A.e(f"v_writelane_b32 v127, s{sSPIN}, 2"); A.e(f"v_writelane_b32 v127, s{sFB}, 3")
        A.e(f"v_lshlrev_b32 v{T0}, 2, v{L}")
        A.e(f"buffer_store_dword v127, v{T0}, {srd(SWS)}, s{sT0} offen")
    A.label("L_end")
    A.e("s_endpgm")
    return A

HEADER = open("parallel_sum__softmax_full_mha__swiglu_ffn__prompt.s.ref").read().split("; Override")[0]
def build():
    A = gen()
    body = A.text()
    probs = check_hazards(body)
    out = HEADER + "; @launch grid=(256,1,1) block=(512,1,1) lds=163840\n" + '.amdgcn_target "amdgcn-amd-amdhsa--gfx950"\n' + body
    out += KD.format(name=NAME, nvgpr=256, nsgpr=102, accum=256)
    return out, probs

if __name__ == "__main__":
    if len(sys.argv) > 2 and sys.argv[2] != "0": INSTR = sys.argv[2]
    out, probs = build()
    if INSTR: out += "; STAMPS " + ",".join(STAMPS) + "\n"
    open(sys.argv[1], "w").write(out)
    print("hazards:", len(probs), "chars:", len(out))
```

```python
import re

class Asm:
    def __init__(self):
        self.lines = []
        self.vm = []
        self.lgkm = []
        self.issued = set()
    def e(self, s):
        for l in s.split("\n"):
            l = l.strip()
            if l: self.lines.append("    " + l)
    def c(self, s): self.lines.append("    ; " + s)
    def label(self, s): self.lines.append(s + ":")
    def raw(self, s): self.lines.append(s)
    def vmem(self, s, tag=None):
        self.e(s); self.vm.append(tag); self.issued.add(tag)
        assert len(self.vm) <= 63, "too many vmem outstanding"
    def lds(self, s, tag=None):
        self.e(s); self.lgkm.append(tag)
    def _cnt(self, q, tags):
        if not isinstance(tags, (list, tuple, set)): tags = [tags]
        idx = [i for i, t in enumerate(q) if t in tags]
        if not idx: return None
        return len(q) - 1 - max(idx)
    def wait(self, vm=None, lgkm=None):
        parts = []
        if vm is not None:
            n = 0 if vm == "all" else self._cnt(self.vm, vm)
            if n is not None and (vm == "all" or n < len(self.vm)):
                parts.append(f"vmcnt({n})"); self.vm = self.vm[len(self.vm) - n:] if n else []
        if lgkm is not None:
            n = 0 if lgkm == "all" else self._cnt(self.lgkm, lgkm)
            if n is not None:
                n = min(n, 15)
                parts.append(f"lgkmcnt({n})"); self.lgkm = self.lgkm[len(self.lgkm) - n:] if n else []
        if parts: self.e("s_waitcnt " + " ".join(parts))
    def text(self): return "\n".join(self.lines) + "\n"

def v(a, n=1): return f"v{a}" if n == 1 else f"v[{a}:{a+n-1}]"
def s(a, n=1): return f"s{a}" if n == 1 else f"s[{a}:{a+n-1}]"
def a_(a, n=1): return f"a{a}" if n == 1 else f"a[{a}:{a+n-1}]"

def _regs(op):
    op = op.strip()
    op = re.sub(r"^-|^\|(.*)\|$|^abs\((.*)\)$", lambda m: (m.group(1) or m.group(2) or ""), op)
    m = re.fullmatch(r"([vas])(\d+)", op)
    if m: return {(m.group(1), int(m.group(2)))}
    m = re.fullmatch(r"([vas])\[(\d+):(\d+)\]", op)
    if m: return {(m.group(1), i) for i in range(int(m.group(2)), int(m.group(3)) + 1)}
    if op == "vcc": return {("s", 106), ("s", 107)}
    if op == "vcc_lo": return {("s", 106)}
    if op == "vcc_hi": return {("s", 107)}
    if op == "exec": return {("s", 126), ("s", 127)}
    if op == "m0": return {("s", 124)}
    return set()

TRANS = ("v_exp_f32", "v_log_f32", "v_rcp_f32", "v_rsq_f32", "v_sqrt_f32", "v_sin_f32", "v_cos_f32", "v_exp_f16", "v_rcp_iflag_f32")

class I:
    def __init__(self, text, ln):
        self.text = text; self.ln = ln
        t = text.split(";")[0].strip()
        parts = t.split(None, 1)
        self.op = re.sub(r"_e32$|_e64$", "", parts[0])
        rest = parts[1] if len(parts) > 1 else ""
        ops = [o.strip() for o in re.split(r",(?![^\[]*\])", rest)] if rest else []
        mods = ""
        if ops:
            sp = ops[-1].split(None, 1)
            ops[-1] = sp[0]; mods = sp[1] if len(sp) > 1 else ""
        self.ops = ops; self.mods = mods
        op = self.op
        R = [_regs(o) for o in ops]
        self.w = set(); self.r = set(); self.kind = "other"
        self.srcC = set(); self.srcAB = set(); self.data = set(); self.passes = 0
        if op.startswith("v_mfma") or op.startswith("v_smfmac"):
            self.kind = "mfma"; self.w = R[0]; self.srcAB = R[1] | R[2]; self.srcC = R[3] if op.startswith("v_mfma") else R[0]
            self.r = self.srcAB | self.srcC | R[3]
            self.passes = 8 if "32x32" in op else (2 if "4x4x4" in op else 4)
        elif op.startswith("v_cmp"):
            self.kind = "valu"; self.w = R[0]; self.r = set().union(*R[1:])
            if op.startswith("v_cmpx"): self.w |= _regs("exec")
        elif op.startswith("v_permlane") and "swap" in op:
            self.kind = "valu"; self.w = R[0] | R[1]; self.r = R[0] | R[1]
        elif op in ("v_add_co_u32", "v_sub_co_u32", "v_addc_co_u32", "v_subb_co_u32"):
            self.kind = "valu"; self.w = R[0] | R[1]; self.r = set().union(*R[2:])
        elif op.startswith("v_"):
            self.kind = "valu"; self.w = R[0] if R else set(); self.r = set().union(*R[1:]) if len(R) > 1 else set()
            if op.startswith(("v_fmac", "v_dot2c", "v_writelane")) or "UNUSED_PRESERVE" in mods: self.r |= R[0]
        elif op.startswith("ds_read") or op.startswith("ds_bpermute") or op.startswith("ds_swizzle"):
            self.kind = "ds"; self.w = R[0]; self.r = set().union(*R[1:])
        elif op.startswith("ds_"):
            self.kind = "ds"; self.r = set().union(*R)
            if "rtn" in op: self.w = R[0]; self.r = set().union(*R[1:])
        elif op.startswith("buffer_load"):
            self.kind = "vmem"
            if "lds" in mods.split(): self.r = set().union(*R) | _regs("m0"); self.dma = True
            else: self.w = R[0]; self.r = set().union(*R[1:])
        elif op.startswith("buffer_store") or op.startswith("buffer_atomic"):
            self.kind = "vmem"; self.r = set().union(*R)
            if "x3" in op or "x4" in op: self.data = R[0]
            if op.startswith("buffer_atomic") and "sc0" in mods.split(): self.w = R[0]
        elif op.startswith("s_"):
            self.kind = "salu"
            if op.startswith(("s_cmp", "s_cbranch", "s_branch", "s_waitcnt", "s_nop", "s_barrier", "s_endpgm", "s_sleep", "s_setprio", "s_bitcmp")):
                self.r = set().union(*R) if R else set()
            else:
                self.w = R[0] if R else set(); self.r = set().union(*R[1:]) if len(R) > 1 else set()
                if "saveexec" in op: self.w |= _regs("exec")
        self.states = 1
        if op == "s_nop": self.states = int(ops[0], 0) + 1
        self.trans = op in TRANS
        self.dot = op.startswith("v_dot")

def need(p, c):
    n = 0
    vw = {x for x in p.w if x[0] in "va"}; sw = {x for x in p.w if x[0] == "s"}
    if p.kind == "valu":
        if c.kind == "mfma" and vw & c.r: n = max(n, 3 if p.dot else 2)
        if c.kind == "mfma" and sw & _regs("exec"): n = max(n, 4)
        if c.kind == "vmem" and sw & c.r: n = max(n, 5)
        if c.kind == "valu" and sw & c.r: n = max(n, 4 if c.op in ("v_readlane_b32", "v_writelane_b32") else 2)
        if c.kind == "valu" and c.op.startswith("v_cndmask") and len(c.ops) == 4 and sw & _regs(c.ops[3]): n = max(n, 2)
        if c.op in ("v_readfirstlane_b32", "v_readlane_b32") and vw & c.r: n = max(n, 1)
        if c.op.startswith("v_permlane") and vw & c.r: n = max(n, 2)
        if c.kind == "valu" and "dpp" in c.text and vw & c.r: n = max(n, 2)
        if p.trans and c.kind in ("valu",) and not c.trans and vw & c.r: n = max(n, 1)
        if p.trans and c.kind in ("vmem", "ds") and vw & c.r: n = max(n, 1)
        if p.dot:
            if c.op == p.op:
                ab = set().union(*[_regs(o) for o in c.ops[1:3]])
                if vw & ab: n = max(n, 3)
            elif vw & (c.r | c.w): n = max(n, 3)
        if ("op_sel" in p.mods or "sdwa" in p.op) and c.kind == "valu" and vw & (c.r | c.w) and not p.op.startswith("v_pk"): n = max(n, 1)
        if sw & _regs("exec") and c.op in ("v_readfirstlane_b32", "v_readlane_b32", "v_writelane_b32") : n = max(n, 4)
        if sw & _regs("exec") and c.op.startswith("v_permlane"): n = max(n, 4)
    if p.kind == "mfma":
        big = {2: 5, 4: 8, 8: 12}[p.passes]
        if c.kind == "mfma":
            if p.w & c.srcAB: n = max(n, big)
            if p.w & c.srcC and not (p.w == c.srcC and p.passes == c.passes): n = max(n, {2: 4, 4: 6, 8: 10}[p.passes])
            if p.w & c.srcC and p.passes == 2: n = max(n, 2)
            if p.w & c.w and not (p.w == c.srcC): n = max(n, {2: 4, 4: 6, 8: 10}[p.passes])
        elif c.kind in ("valu", "vmem", "ds"):
            if p.w & (c.r | c.w): n = max(n, big)
        if c.kind == "valu" and p.srcC & c.w: n = max(n, {2: 1, 4: 3, 8: 7}[p.passes])
        if c.kind in ("ds", "vmem") and p.srcC & c.w: n = max(n, {2: 1, 4: 3, 8: 7}[p.passes])
    if p.kind == "vmem" and p.data:
        if c.kind == "valu" and p.data & c.w: n = max(n, 2)
        elif p.data & c.w: n = max(n, 1)
    if p.kind == "salu" and ("s", 124) in p.w and c.kind == "vmem" and ("s", 124) in c.r: n = max(n, 1)
    return n

def check_hazards(text, verbose=True):
    ins = []; labels = {}
    for ln, l in enumerate(text.split("\n"), 1):
        t = l.split(";")[0].strip()
        if not t or t.startswith("."): continue
        if t.endswith(":"): labels[t[:-1]] = len(ins); continue
        ins.append(I(t, ln))
    problems = []
    def succ(i):
        x = ins[i]
        if x.op == "s_endpgm": return []
        if x.op == "s_branch": return [labels[x.ops[0]]]
        if x.op.startswith("s_cbranch"): return [i + 1, labels[x.ops[0]]]
        return [i + 1]
    for i, p in enumerate(ins):
        if p.kind not in ("valu", "mfma", "vmem", "salu"): continue
        if p.kind == "salu" and ("s", 124) not in p.w: continue
        if p.kind == "vmem" and not p.data: continue
        stack = [(j, 0) for j in succ(i)]
        seen = set()
        while stack:
            j, d = stack.pop()
            if j >= len(ins) or d >= 13 or (j, d) in seen: continue
            seen.add((j, d))
            c = ins[j]
            n = need(p, c)
            if n > d: problems.append((p, c, n, d))
            for k in succ(j): stack.append((k, d + c.states))
    if verbose:
        for p, c, n, d in problems[:40]:
            print(f"HAZARD need {n} have {d}: L{p.ln}: {p.text}  ->  L{c.ln}: {c.text}")
    return problems

KD = """.section .rodata,"a"
.p2align 6
.amdhsa_kernel {name}
  .amdhsa_next_free_vgpr {nvgpr}
  .amdhsa_next_free_sgpr {nsgpr}
  .amdhsa_accum_offset {accum}
  .amdhsa_group_segment_fixed_size 0
  .amdhsa_kernarg_size 80
  .amdhsa_user_sgpr_count 2
  .amdhsa_user_sgpr_kernarg_segment_ptr 1
  .amdhsa_system_sgpr_workgroup_id_x 1
  .amdhsa_float_denorm_mode_32 3
.end_amdhsa_kernel
"""
```

```python
import sys, struct
from asmlib import *

QF, KF, VF, ACTF = 0, 2 << 20, 4 << 20, 8 << 20
FLG = 20 << 20
F1 = FLG
F2 = FLG + 16384
F3 = FLG + 32768
EPOCH = FLG + 49152
STT = FLG + 65536
PROF = 24 << 20
WS_SIZE = 32 << 20
KA = dict(x=0, wqkv=8, wo=16, bx=24, wg=32, wu=40, wd=48, out=56, dbg=64, ws=72)
SZ = dict(x=2048*512*2, wqkv=512*1536*2, wo=512*512*2, wg=512*1792*2, wu=512*1792*2, wd=1792*512*2, out=2048*512*2, ws=WS_SIZE)
LOG2E = 1.4426950408889634
def f2u(f): return struct.unpack("<I", struct.pack("<f", f))[0]
def hx(f): return "0x%08x" % f2u(f)
NAME = "parallel_sum__softmax_full_mha__swiglu_ffn__prompt_kernel"
INSTR = False
OPT = dict(pre=2, map=0, rot=3, pf=1, pft=2, fq=5, pk=9, rvb=80, m2b=8, msp=4, fa=9)

EB, RB, XF = 0, 32768, 131072
WRING, HRING = 32768, 98304

SX, SQ, SG, SU, SD, SO, SOUT, SWS = 4, 8, 12, 16, 20, 24, 28, 32
SCUR = 36
(sRB, sGI, sHD, sJ, sTM, sTN, sW, sTQ, sKH, sROT, sTAG, sT0, sT1, sT2, sXB, sXO, sRO0, sRO1, sONE, sTB, sI,
 sKO, sVO, sWSO, sHSO, sMK, sSPIN, sXCD, sLA, sLB) = range(40, 70)
sMSK = 70
sNL, sF = 72, 73
sAO, sFB, sTBq, sLQ, sRO2, sM1, sM2, sSC, sHS2, sAO2, sRK, sSCR, sIX1, sIX2 = range(80, 94)
MF = "v_mfma_f32_32x32x16_bf16"
def srd(b): return f"s[{b}:{b+3}]"

STAMPS = []
def stamp(A, name, dyn=0):
    if not INSTR: return
    if name not in STAMPS:
        STAMPS.append(name)
        for i in range(1, dyn): STAMPS.append(f"{name}+{i}")
    i = STAMPS.index(name) + 4
    assert i + dyn < 64
    A.e("s_memtime s[76:77]")
    if dyn: A.e(f"s_add_u32 s78, s{sI}, {i}")
    A.e("s_waitcnt lgkmcnt(0)"); A.lgkm = []
    A.e(f"v_writelane_b32 v127, s76, {i}" if not dyn else "s_mov_b32 s79, m0\ns_mov_b32 m0, s78\ns_nop 0\nv_writelane_b32 v127, s76, m0\ns_mov_b32 m0, s79")

class Side:
    def __init__(self, A): self.q = []; self.A = A
    def add(self, *xs): self.q.extend(xs)
    def pull(self, n):
        for _ in range(n):
            if not self.q: return
            x = self.q.pop(0)
            if callable(x): x()
            else: self.A.e(x)
    def flush(self): self.pull(len(self.q))

def poll_loop(A, label, pairs):
    A.label(label + "_chk")
    for i, (va, vt) in enumerate(pairs):
        A.e(f"v_xor_b32 v{vt}, s{sTAG}, v{vt}")
        if i: A.e(f"v_or_b32 v{pairs[0][1]}, v{pairs[0][1]}, v{vt}")
    A.e(f"v_cmp_ne_u32 vcc, 0, v{pairs[0][1]}")
    A.e(f"s_cmp_eq_u32 s{sSPIN}, 0")
    A.e(f"s_cbranch_scc1 {label}_out")
    A.e("s_nop 0")
    A.e(f"s_cbranch_vccz {label}_out")
    A.e(f"s_sub_u32 s{sSPIN}, s{sSPIN}, 1")
    A.e("s_sleep 1")
    for va, vt in pairs: A.e(f"buffer_load_dword v{vt}, v{va}, {srd(SWS)}, 0 offen sc1")
    A.e("s_waitcnt vmcnt(0)")
    A.e(f"s_branch {label}_chk")
    A.label(label + "_out")

def gen():
    A = Asm()
    def run(lst):
        for x in lst: x() if callable(x) else A.e(x)
    A.raw(".text"); A.raw(f".globl {NAME}"); A.raw(".p2align 8"); A.raw(f".type {NAME},@function"); A.label(NAME)
    A.e("s_cmp_ge_u32 s2, 256"); A.e("s_cbranch_scc1 L_end")
    if INSTR:
        A.e("s_memrealtime s[74:75]"); A.e("v_mov_b32 v127, 0")
        stamp(A, "start")
    items = [("x", SX), ("ws", SWS), ("wqkv", SQ), ("wg", SG), ("wu", SU), ("wd", SD), ("wo", SO), ("out", SOUT)]
    for n, b in items: A.e(f"s_load_dwordx2 s[{b}:{b+1}], s[0:1], {KA[n]}")
    L, T0, T1, T2, T3, LO = 1, 2, 3, 4, 5, 6
    A.e(f"v_lshrrev_b32 v{T0}, 6, v0"); A.e(f"v_and_b32 v{L}, 63, v0")
    A.e(f"v_readfirstlane_b32 s{sW}, v{T0}")
    A.e(f"s_lshr_b32 s{sT1}, s2, 3")
    for n, b in items:
        A.e(f"s_mov_b32 s{b+2}, {SZ[n]}"); A.e(f"s_mov_b32 s{b+3}, 0x00020000")
    A.e(f"v_lshlrev_b32 v{LO}, 4, v{L}")
    A.e(f"s_and_b32 s{sXCD}, s2, 7")
    sSUB, sGQ = sKO, sVO
    if OPT["map"] == 0:
        A.e(f"s_and_b32 s{sRB}, s{sXCD}, 1"); A.e(f"s_lshl_b32 s{sRB}, s{sRB}, 3")
        A.e(f"s_and_b32 s{sT0}, s{sT1}, 7"); A.e(f"s_add_u32 s{sRB}, s{sRB}, s{sT0}")
        A.e(f"s_lshr_b32 s{sSUB}, s{sT1}, 3"); A.e(f"s_lshr_b32 s{sGQ}, s{sXCD}, 1")
    else:
        A.e(f"s_and_b32 s{sRB}, s{sXCD}, 3"); A.e(f"s_lshl_b32 s{sRB}, s{sRB}, 2")
        A.e(f"s_and_b32 s{sT0}, s{sT1}, 3"); A.e(f"s_add_u32 s{sRB}, s{sRB}, s{sT0}")
        A.e(f"s_bfe_u32 s{sSUB}, s{sT1}, 0x20002")
        A.e(f"s_lshr_b32 s{sGQ}, s{sXCD}, 2"); A.e(f"s_lshl_b32 s{sGQ}, s{sGQ}, 1"); A.e(f"s_lshr_b32 s{sT0}, s{sT1}, 4"); A.e(f"s_add_u32 s{sGQ}, s{sGQ}, s{sT0}")
    A.e(f"s_lshl_b32 s{sROT}, s{sSUB}, 1")
    if OPT["rot"] == 1:
        A.e(f"s_and_b32 s{sT0}, s{sRB}, 1"); A.e(f"s_lshl2_add_u32 s{sROT}, s{sT0}, s{sROT}")
    elif OPT["rot"] == 2:
        A.e(f"s_add_u32 s{sROT}, s{sROT}, s{sRB}")
    elif OPT["rot"] == 3:
        A.e(f"s_and_b32 s{sT0}, s{sRB}, 1"); A.e(f"s_add_u32 s{sROT}, s{sROT}, s{sT0}")
    A.e(f"s_and_b32 s{sTQ}, s{sW}, 3"); A.e(f"s_lshr_b32 s{sKH}, s{sW}, 2")
    A.e(f"s_lshl_b32 s{sTB}, s{sRB}, 2"); A.e(f"s_add_u32 s{sTB}, s{sTB}, s{sTQ}")
    A.e(f"s_mul_i32 s{sGI}, s{sGQ}, 3"); A.e(f"s_add_u32 s{sGI}, s{sGI}, s{sSUB}")
    A.e(f"s_add_u32 s{sT2}, s{sGQ}, 12")
    A.e(f"s_cmp_eq_u32 s{sSUB}, 3"); A.e(f"s_cselect_b32 s{sGI}, s{sT2}, s{sGI}")
    sROW = sHS2
    A.e(f"s_lshl4_add_u32 s{sROW}, s{sRB}, s{sGI}"); A.e(f"s_lshl3_add_u32 s{sROW}, s{sROW}, s{sW}")
    A.e(f"s_lshl_b32 s{sT2}, s{sROW}, 10")
    A.e(f"s_mov_b32 s{sT0}, {EPOCH}")
    ACC1, ACCA, ACCB = 16, 32, 64
    XD, XRD, QD, RQ, GRAN, CS1, PFR, SCA = 64, 68, 66, 67, 72, 76, 88, 89
    BX = 68
    RS, NEGM = 0, 7
    RG = [8, 9]; ONES = 10; CS2 = 12; SD2 = 126
    WF = [96 + 4*i for i in range(6)]
    GD, UD = 120, 121
    X = 128
    SL = 40960
    A.e("s_waitcnt lgkmcnt(0)"); stamp(A, "karg")
    A.vmem(f"buffer_load_dwordx4 v[16:19], v{LO}, {srd(SX)}, s{sT2} offen", "row")
    A.e("s_mov_b64 exec, 1")
    A.vmem(f"buffer_load_dword v20, off, {srd(SWS)}, s{sT0} sc1", "row")
    A.e("s_mov_b64 exec, -1")
    A.e(f"s_lshl_b32 s{sXO}, s{sTB}, 15"); A.e(f"s_lshl_b32 s{sT0}, s{sKH}, 14"); A.e(f"s_add_u32 s{sXO}, s{sXO}, s{sT0}")
    A.e(f"s_lshl_b32 s{sXB}, s{sTQ}, 12"); A.e(f"s_lshl_b32 s{sT0}, s{sKH}, 11"); A.e(f"s_add_u32 s{sXB}, s{sXB}, s{sT0}")
    A.e(f"s_lshl_b32 s{sLQ}, s{sGI}, 7")
    A.e(f"s_add_u32 s{sLB}, s{sLQ}, {12*128}")
    A.e(f"s_lshl_b32 s{sT0}, s{sGI}, 8"); A.e(f"s_sub_u32 s{sT0}, s{sT0}, {8*128}")
    A.e(f"s_cmp_ge_u32 s{sGI}, 12"); A.e(f"s_cselect_b32 s{sLA}, s{sT0}, s{sLQ}")
    A.e(f"s_lshr_b32 s{sT0}, s{sW}, 1"); A.e(f"s_mul_i32 s{sM1}, s{sT0}, 6144")
    A.e(f"s_and_b32 s{sT0}, s{sW}, 1"); A.e(f"s_lshl_b32 s{sT0}, s{sT0}, 10"); A.e(f"s_add_u32 s{sM1}, s{sM1}, s{sT0}")
    A.e(f"s_lshl_b32 s{sM2}, s{sW}, 12")
    A.e(f"s_add_u32 s{sRK}, s{sROT}, s{sKH}")
    A.e(f"s_and_b32 s{sT0}, s{sT1}, 7")
    A.e(f"s_and_b32 s{sTM}, s{sXCD}, 3"); A.e(f"s_lshl_b32 s{sTM}, s{sTM}, 3"); A.e(f"s_add_u32 s{sTM}, s{sTM}, s{sT0}")
    A.e(f"s_lshr_b32 s{sT0}, s{sT1}, 3")
    A.e(f"s_lshr_b32 s{sTN}, s{sXCD}, 2"); A.e(f"s_lshl_b32 s{sTN}, s{sTN}, 2"); A.e(f"s_add_u32 s{sTN}, s{sTN}, s{sT0}")
    A.e(f"s_lshl_b32 s{sHD}, s{sXCD}, 2"); A.e(f"s_and_b32 s{sT0}, s{sT1}, 3"); A.e(f"s_add_u32 s{sHD}, s{sHD}, s{sT0}")
    A.e(f"s_lshr_b32 s{sJ}, s{sT1}, 2")
    A.e(f"v_lshrrev_b32 v{T0}, 3, v{L}"); A.e(f"v_lshlrev_b32 v{T3}, 10, v{T0}")
    A.e(f"v_lshrrev_b32 v{T1}, 4, v{L}"); A.e(f"v_and_b32 v{T2}, 7, v{L}"); A.e(f"v_xor_b32 v{T1}, v{T1}, v{T2}")
    A.e(f"v_lshl_add_u32 v{XD}, v{T1}, 4, v{T3}")
    A.e(f"v_xor_b32 v{XD+1}, 64, v{XD}")
    A.e(f"v_add_u32 v{XD+1}, 7168, v{XD+1}")
    A.e(f"v_bfe_u32 v{T1}, v{L}, 2, 1"); A.e(f"v_bfe_u32 v{T3}, v{L}, 4, 1"); A.e(f"v_xor_b32 v{T1}, v{T1}, v{T3}")
    A.e(f"v_lshlrev_b32 v{T1}, 2, v{T1}"); A.e(f"v_and_or_b32 v{T1}, v{L}, 3, v{T1}")
    A.e(f"v_mul_u32_u24 v{QD}, 3072, v{T0}"); A.e(f"v_lshl_add_u32 v{QD}, v{T1}, 4, v{QD}")
    A.e(f"v_mul_u32_u24 v{T0}, 3584, v{T0}")
    A.e(f"v_and_b32 v{T1}, 1, v{L}"); A.e(f"v_lshl_add_u32 v{T0}, v{T1}, 4, v{T0}")
    A.e(f"v_bfe_u32 v{T1}, v{L}, 1, 2"); A.e(f"v_xor_b32 v{T1}, v{T1}, v{T3}")
    A.e(f"v_lshl_add_u32 v{GD}, v{T1}, 5, v{T0}")
    A.e(f"v_xor_b32 v{UD}, 64, v{GD}")

    def issue1_list(typ, t):
        sb = (t & 3)*SL
        out = []
        def fx():
            A.e(f"s_add_u32 s{sT2}, s{sROT}, {t}"); A.e(f"s_and_b32 s{sT2}, s{sT2}, 7")
            A.e(f"s_lshl_b32 s{sT0}, s{sT2}, 7")
            A.e(f"s_add_u32 m0, s{sXB}, {sb + 24576}")
            A.e(f"s_add_u32 s{sT0}, s{sT0}, s{sXO}")
            A.vmem(f"buffer_load_dwordx4 v{XD}, {srd(SX)}, s{sT0} offen lds", ("s1", t))
        def fx2():
            A.e(f"s_add_u32 m0, s{sXB}, {sb + 24576}")
            A.e(f"s_lshl3_add_u32 s{sT2}, s{sT2}, s{sW}")
            A.vmem(f"buffer_load_dwordx4 v{XD+1}, {srd(SX)}, s{sT0} offen offset:1024 lds", ("s1", t))
        out += [fx, fx2]
        for u in range(3):
            def f(u=u):
                if u == 0:
                    A.e(f"s_mul_i32 s{sT1}, s{sT2}, {8*3072}")
                    A.e(f"s_add_u32 m0, s{sM1}, {sb}")
                    A.e(f"s_add_u32 s{sT0}, s{sT1}, s{sLQ}")
                elif u == 1:
                    if typ == "P": A.e(f"s_mul_i32 s{sT1}, s{sT2}, {8*3584}")
                    A.e(f"s_add_u32 m0, s{sM1}, {sb + 2048}")
                    A.e(f"s_add_u32 s{sT0}, s{sT1}, s{sLA}")
                else:
                    A.e(f"s_add_u32 m0, s{sM1}, {sb + 4096}")
                    if typ == "R": A.e(f"s_add_u32 s{sT0}, s{sT0}, 128")
                    else: A.e("s_nop 0")
                ad, sr = (QD, SQ) if (u == 0 or typ == "R") else ((GD, SG), (UD, SU))[u-1]
                A.vmem(f"buffer_load_dwordx4 v{ad}, {srd(sr)}, s{sT0} offen lds", ("s1", t))
            out.append(f)
        for f in out: f.tag = ("s1", t)
        return out
    def issue2_list(st):
        out = []
        for u in range(2):
            for hb in range(2):
                def f(u=u, hb=hb):
                    if u == 0 and hb == 0:
                        A.e(f"s_add_u32 s{sT2}, s{sRK}, {2*st}"); A.e(f"s_and_b32 s{sT2}, s{sT2}, 7")
                        A.e(f"s_lshl2_add_u32 s{sT2}, s{sT2}, s{sTQ}")
                        A.e(f"s_mul_i32 s{sT2}, s{sT2}, {16*3584}"); A.e(f"s_add_u32 s{sT2}, s{sT2}, s{sLB}")
                    A.e(f"s_add_u32 m0, s{sM2}, {st*SL + u*2048 + hb*1024}")
                    if u == 0 and hb == 0: A.e(f"s_add_u32 s{sT1}, s{sT2}, {8*3584}")
                    else: A.e("s_nop 0")
                    ad, sr = ((GD, SG), (UD, SU))[u]
                    A.vmem(f"buffer_load_dwordx4 v{ad}, {srd(sr)}, s{sT1 if hb else sT2} offen lds", ("s2", st))
                f.tag = ("s2", st)
                out.append(f)
        return out
    def pf2():
        msk = "0xff" if OPT["map"] == 0 else "0xffff"
        A.e(f"v_mul_u32_u24 v{PFR}, 3584, v{PFR}")
        A.e(f"s_mov_b64 exec, {msk}")
        A.vmem(f"buffer_load_dword v{SCA}, v{PFR}, {srd(SG)}, s{sLB} offen", "pf")
        A.vmem(f"buffer_load_dword v{SCA}, v{PFR}, {srd(SU)}, s{sLB} offen", "pf")
        A.e("s_mov_b64 exec, -1")
    def typed_issue(ts, tagl):
        sv = list(A.vm)
        A.e(f"s_cmp_ge_u32 s{sGI}, 12"); A.e(f"s_cbranch_scc1 L_ti{tagl}_R")
        for t in ts: run(issue1_list("P", t))
        A.e(f"s_branch L_ti{tagl}_done")
        A.label(f"L_ti{tagl}_R"); A.vm = sv
        for t in ts: run(issue1_list("R", t))
        A.label(f"L_ti{tagl}_done")
    typed_issue([0], "a")
    stamp(A, "i0")
    A.e(f"s_lshl_b32 s{sIX2}, s{sTQ}, 1")
    A.e(f"s_lshr_b32 s{sT0}, s{sTQ}, 1"); A.e(f"s_lshl3_add_u32 s{sIX1}, s{sT0}, s{sIX2}")
    A.e(f"s_mov_b32 s{sSPIN}, 0x40000")
    A.e(f"s_mov_b32 s{sONE}, 0x3f803f80")
    A.e(f"s_and_b32 s{sT0}, s{sRB}, {7 if OPT['map'] == 0 else 3}"); A.e(f"s_lshl3_add_u32 s{sT0}, s{sT0}, s{sW}"); A.e(f"s_lshl_b32 s{sT0}, s{sT0}, {3 if OPT['map'] == 0 else 4}")
    A.e(f"v_add_u32 v{PFR}, s{sT0}, v{L}")
    A.e(f"v_and_b32 v{T0}, 31, v{L}")
    A.e(f"v_bfe_u32 v{T1}, v{L}, 1, 3")
    A.e(f"v_lshrrev_b32 v{T2}, 5, v{L}")
    A.e(f"v_xor_b32 v{T1}, v{T1}, v{T2}")
    A.e(f"s_lshl_b32 s{sT0}, s{sTQ}, 12"); A.e(f"s_add_u32 s{sT0}, s{sT0}, 24576")
    A.e(f"v_lshlrev_b32 v{T0}, 7, v{T0}"); A.e(f"v_add_u32 v{T0}, s{sT0}, v{T0}")
    A.e(f"v_lshl_add_u32 v{XRD}, v{T1}, 4, v{T0}")
    for kk in range(1, 4): A.e(f"v_xor_b32 v{XRD+kk}, {32*kk}, v{XRD}")
    A.e(f"v_bfe_u32 v{T0}, v{L}, 2, 2")
    A.e(f"v_lshlrev_b32 v{T1}, 10, v{T2}"); A.e(f"v_lshl_add_u32 v{T1}, v{T0}, 7, v{T1}")
    A.e(f"v_and_b32 v{RQ}, 3, v{L}"); A.e(f"v_lshl_add_u32 v{T1}, v{RQ}, 3, v{T1}")
    A.e(f"v_lshrrev_b32 v{T0}, 1, v{T0}")
    A.e(f"v_xor_b32 v{RQ}, s{sKH}, v{T0}"); A.e(f"v_lshl_add_u32 v{RQ}, v{RQ}, 6, v{T1}")
    A.e(f"v_lshl_add_u32 v{RQ}, v{T3}, 5, v{RQ}")
    A.e(f"v_lshl_add_u32 v{T1}, v{T3}, 11, v{T1}")
    A.e(f"v_lshl_add_u32 v{T0}, v{T3}, 1, v{T0}")
    A.e(f"s_lshl_b32 s{sT0}, s{sKH}, 1")
    A.e(f"v_xor_b32 v{T0}, s{sT0}, v{T0}")
    A.e(f"v_lshl_add_u32 v{RG[0]}, v{T0}, 5, v{T1}")
    A.e(f"v_xor_b32 v{RG[1]}, 32, v{RG[0]}")
    A.e(f"v_mov_b32 v{ONES}, s{sONE}"); A.e(f"v_mov_b32 v{ONES+1}, s{sONE}")
    for r in list(range(CS1, CS1 + 12)) + list(range(CS2, CS2 + 4)) + [21, 22]:
        A.e(f"v_mov_b32 v{r}, 0")
    A.wait(vm=["row"])
    stamp(A, "row")
    for i in range(4):
        A.e(f"v_dot2c_f32_bf16 v21, s{sONE}, v{16+i}"); A.e(f"v_dot2c_f32_bf16 v22, v{16+i}, v{16+i}")
    A.e(f"v_readfirstlane_b32 s{sTAG}, v20")
    A.e("s_nop 1")
    for sh in (1, 2, 4, 8):
        A.e(f"v_add_f32_dpp v21, v21, v21 row_ror:{sh} row_mask:0xf bank_mask:0xf")
        A.e(f"v_add_f32_dpp v22, v22, v22 row_ror:{sh} row_mask:0xf bank_mask:0xf")
        A.e("s_nop 0")
    A.e(f"s_mul_i32 s{sTAG}, s{sTAG}, 1664525"); A.e(f"s_add_u32 s{sTAG}, s{sTAG}, 1013904223")
    for op in ("v_permlane16_swap_b32", "v_permlane32_swap_b32"):
        A.e("v_mov_b32 v23, v21"); A.e("v_mov_b32 v24, v22"); A.e("s_nop 1")
        A.e(f"{op} v21, v23"); A.e(f"{op} v22, v24"); A.e("s_nop 0")
        A.e("v_add_f32 v21, v21, v23"); A.e("v_add_f32 v22, v22, v24")
    A.e(f"v_mul_f32 v21, {hx(1/512)}, v21"); A.e(f"v_mul_f32 v22, {hx(1/512)}, v22")
    A.e("v_fma_f32 v22, -v21, v21, v22"); A.e("v_max_f32 v22, 0, v22")
    A.e("v_cvt_pk_bf16_f32 v16, -v21, -v21")
    A.e("v_cvt_pk_bf16_f32 v22, v22, v22"); A.e("v_lshlrev_b32 v22, 16, v22")
    A.e(f"v_add_f32 v22, {hx(1e-5)}, v22")
    A.e("v_cvt_pk_bf16_f32 v22, v22, v22"); A.e("v_lshlrev_b32 v22, 16, v22")
    A.e("v_sqrt_f32 v22, v22"); A.e(f"v_mov_b32 v19, s{sTAG}")
    A.e("v_cvt_pk_bf16_f32 v22, v22, v22"); A.e("v_lshlrev_b32 v22, 16, v22")
    A.e("v_rcp_f32 v17, v22"); A.e("v_mul_f32 v18, v22, v22")
    A.e(f"s_lshl_b32 s{sT0}, s{sROW}, 4"); A.e(f"s_add_u32 s{sT0}, s{sT0}, {STT}")
    A.e("s_mov_b64 exec, 1")
    A.e(f"buffer_store_dwordx4 v[16:19], off, {srd(SWS)}, s{sT0} sc1")
    A.e("s_mov_b64 exec, -1")
    if OPT["pre"] > 1: typed_issue(list(range(1, OPT["pre"])), "b")
    stamp(A, "i2")
    A.wait(vm=[("s1", 0)])
    A.e("s_barrier")
    stamp(A, "B2")
    A.e(f"s_cmp_ge_u32 s{sGI}, 12"); A.e("s_cbranch_scc1 L_R")
    vm0, lg0 = list(A.vm), list(A.lgkm)
    SCR = 32768

    Q = 24
    VA, RAW, RAH, WD0, WD1, VE = 28, 29, 30, 31, 22, 23
    PFK, PFV, PFQ = 16, 17, 18
    PT = [19, 20, 21]
    PF2A = 120
    K01 = [144, 148]
    VFR = [[32 + 8*i, 36 + 8*i] for i in range(4)]
    KFR = [96 + 4*i for i in range(4)]
    P = [176, 184]
    S = [192, 208]; O = 224; C = 240
    DACC = 128
    DW = [144 + 4*i for i in range(4)]; HF = [160 + 4*i for i in range(4)]
    sMW, sMH = sM1, sM2
    def silu_list(acc, E, H, soff_s, imm, tag):
        o = []
        for i in range(8): o.append(f"v_mul_f32 v{E+i}, v{RS}, v{acc+i}")
        for i in range(8): o.append(f"v_exp_f32 v{E+i}, v{E+i}")
        for i in range(8): o.append(f"v_mul_f32 v{acc+i}, v{acc+i}, v{acc+8+i}")
        for i in range(8): o.append(f"v_fma_f32 v{E+i}, v{E+i}, v{SD2}, v{SD2}")
        for i in range(8): o.append(f"v_rcp_f32 v{E+i}, v{E+i}")
        for i in range(8): o.append(f"v_mul_f32 v{acc+i}, v{acc+i}, v{E+i}")
        for i in range(4): o.append(f"v_cvt_pk_bf16_f32 v{H+i}, v{acc+2*i}, v{acc+2*i+1}")
        o.append(lambda: A.vmem(f"buffer_store_dwordx4 {v(H,4)}, v{LO}, {srd(SWS)}, s{soff_s} offen offset:{imm} sc1", tag))
        return o
    def h_soff(sd, sl):
        return [f"s_mul_i32 s{sd}, s{sTB}, {144*1024}", f"s_lshl_b32 s{sI}, s{sl}, 5", f"s_add_u32 s{sd}, s{sd}, s{sI}",
                f"s_lshl_b32 s{sI}, s{sKH}, 11", f"s_add_u32 s{sd}, s{sd}, s{sI}", f"s_add_u32 s{sd}, s{sd}, {ACTF}"]
    def flag_store(soff, imms=(0,)):
        A.e("s_mov_b64 exec, 1")
        for im in imms: A.e(f"buffer_store_dword v{VE}, off, {srd(SWS)}, s{soff} offset:{im} sc1")
        A.e("s_mov_b64 exec, -1")
    def f2_flag(part, tag):
        A.e(f"s_lshr_b32 s{sT1}, s{sTB}, 1"); A.e(f"s_lshl_b32 s{sT1}, s{sT1}, 8")
        A.e(f"s_lshl4_add_u32 s{sT1}, s{sGI}, s{sT1}")
        A.e(f"s_lshl2_add_u32 s{sT1}, s{sKH}, s{sT1}")
        A.e(f"s_and_b32 s{sT0}, s{sTQ}, 1"); A.e(f"s_lshl3_add_u32 s{sT1}, s{sT0}, s{sT1}")
        A.e(f"s_add_u32 s{sT1}, s{sT1}, {F2 + part*8192}")
        assert tag in A.issued
        A.wait(vm=[tag])
        flag_store(sT1)
    def kv_issue(slot, tag, first=False):
        so = sKO
        if first:
            A.e(f"s_mul_i32 s{sT0}, s{sKH}, {VF - KF}"); A.e(f"s_add_u32 s{sT0}, s{sT0}, s{sXO}"); A.e(f"s_max_u32 s{sT0}, s{sT0}, s{sKO}")
            so = sT0
        A.e(f"s_add_u32 m0, s{sMK}, {slot*8192}")
        A.e("s_nop 0")
        A.vmem(f"buffer_load_dwordx4 v{LO}, {srd(SWS)}, s{so} offen sc1 lds", tag)
        A.e(f"s_add_u32 s{sKO}, s{sKO}, 4096")
    def setupB(sd):
        sd.add(f"s_lshr_b32 s{sI}, s{sHD}, 1", f"s_lshl_b32 s{sI}, s{sI}, 8", f"s_add_u32 s{sI}, s{sI}, {F1}")
        sd.add(f"v_lshl_add_u32 v{PFK}, v{L}, 2, s{sI}", f"v_add_u32 v{PFV}, {32*256}, v{PFK}", f"v_add_u32 v{PFK}, {16*256}, v{PFK}")
        sd.add(f"s_lshl3_add_u32 s{sTBq}, s{sJ}, s{sW}", f"s_lshl2_add_u32 s{sI}, s{sTBq}, s{sI}", f"v_mov_b32 v{PFQ}, s{sI}")
        sd.add(f"s_lshl_b32 s{sXO}, s{sHD}, 16", f"s_lshl_b32 s{sVO}, s{sTBq}, 10", f"s_add_u32 s{sVO}, s{sVO}, s{sXO}")
        sd.add(f"s_add_u32 s{sXO}, s{sXO}, {KF}")
        sd.add(f"s_mul_i32 s{sI}, s{sKH}, {VF - KF - 2048}", f"s_add_u32 s{sKO}, s{sXO}, s{sI}", f"s_lshl_b32 s{sI}, s{sTQ}, 10",
               f"s_add_u32 s{sKO}, s{sKO}, s{sI}", f"s_add_u32 s{sKO}, s{sKO}, 1024")
        sd.add(f"s_lshl_b32 s{sMK}, s{sW}, 10")
    def setupB2(sd):
        sd.add(f"v_lshrrev_b32 v{T2}, 5, v{L}", f"v_lshlrev_b32 v{T3}, 8, v{T2}", f"v_and_b32 v{T1}, 15, v{L}",
               f"v_lshl_add_u32 v{VA}, v{T1}, 4, v{T3}")
        sd.add(f"s_mov_b32 s{sMSK}, 0xffff", f"s_mov_b32 s{sMSK+1}, 0xffff")
        sd.add(f"s_lshl_b32 s{sI}, s{sKH}, 13", f"s_add_u32 s{sI}, s{sI}, {WRING}")
        sd.add(f"v_bfe_u32 v{T1}, v{L}, 2, 2", f"v_lshl_add_u32 v{T2}, v{T2}, 2, v{T1}", f"v_lshlrev_b32 v{T2}, 7, v{T2}",
               f"v_bfe_u32 v{T3}, v{L}, 4, 1", f"v_lshl_add_u32 v{T2}, v{T3}, 5, v{T2}",
               f"v_and_b32 v{T3}, 3, v{L}", f"v_lshl_add_u32 v{T2}, v{T3}, 3, v{T2}", f"v_add_u32 v{T2}, s{sI}, v{T2}",
               f"v_lshrrev_b32 v{T1}, 1, v{T1}", f"s_and_b32 s{sI}, s{sW}, 1", f"v_xor_b32 v{T1}, s{sI}, v{T1}",
               f"v_lshl_add_u32 v{RAW}, v{T1}, 6, v{T2}")
        sd.add(f"s_lshl_b32 s{sI}, s{sKH}, 13", f"s_bfe_u32 s{sF}, s{sW}, 0x10001", f"s_lshl_b32 s{sF}, s{sF}, 10",
               f"s_add_u32 s{sI}, s{sI}, s{sF}", f"s_add_u32 s{sI}, s{sI}, {HRING}", f"v_add_u32 v{RAH}, s{sI}, v{LO}")
        sd.add(f"s_lshl_b32 s{sMW}, s{sW}, 11", f"s_add_u32 s{sMH}, s{sMW}, {HRING}", f"s_add_u32 s{sMW}, s{sMW}, {WRING}")
        sd.add(f"s_lshl_b32 s{sWSO}, s{sW}, 14", f"s_lshl_b32 s{sI}, s{sTN}, 7", f"s_add_u32 s{sWSO}, s{sWSO}, s{sI}")
        sd.add(f"v_bfe_u32 v{T1}, v{L}, 2, 1", f"v_bfe_u32 v{T3}, v{L}, 4, 1", f"v_xor_b32 v{T1}, v{T1}, v{T3}", f"v_lshlrev_b32 v{T1}, 2, v{T1}",
               f"v_and_or_b32 v{T1}, v{L}, 3, v{T1}", f"v_lshrrev_b32 v{T3}, 3, v{L}", f"v_lshlrev_b32 v{T3}, 10, v{T3}",
               f"v_lshl_add_u32 v{WD0}, v{T1}, 4, v{T3}", f"v_add_u32 v{WD1}, {8192-1024}, v{WD0}")
        sd.add(f"s_mul_i32 s{sAO}, s{sTM}, {2*144*1024}", f"s_lshl_b32 s{sI}, s{sW}, 10", f"s_add_u32 s{sAO}, s{sAO}, s{sI}",
               f"s_add_u32 s{sAO}, s{sAO}, {ACTF}", f"s_add_u32 s{sAO2}, s{sAO}, {144*1024 - 1024}")
        sd.add(f"s_lshl_b32 s{sI}, s{sTM}, 8", f"s_add_u32 s{sI}, s{sI}, {F2}", f"v_min_u32 v{T1}, 47, v{L}", f"v_lshl_add_u32 v{PF2A}, v{T1}, 2, s{sI}")
        for i in range(4): sd.add(f"s_mov_b32 s{SCUR+i}, s{SD+i}")
        for x in h_soff(sHSO, sLB): sd.add(x)

    def passes(typ):
        A.vm, A.lgkm = list(vm0), list(lg0)
        sd = Side(A); dq = Side(A)
        def wvm(tag):
            assert not any(getattr(f, "tag", None) == tag for f in dq.q), tag
            assert tag in A.issued, tag
            A.wait(vm=[tag])
        cur = [0]
        def rd1(n, slot, us=(0, 1, 2)):
            t, kk = n >> 2, n & 3
            assert t == cur[0]
            for u in us:
                for p in range(2):
                    if u == 0 or typ == "R": rc, off = RQ, kk*6144 + u*2048 + p*512
                    else: rc, off = RG[u-1], kk*6144 + 2048 + p*512
                    A.lds(f"ds_read_b64_tr_b16 {v(WF[3*slot+u]+2*p,2)}, v{rc} offset:{off}", "w")
        def rd2(n, slot, ts=(0, 1)):
            if n >= 32: return
            st, kk = n >> 3, n & 7
            for t in ts:
                for p in range(2):
                    off = (8 + st - cur[0])*SL + kk*4096 + p*512
                    assert 0 <= off < 65536
                    A.lds(f"ds_read_b64_tr_b16 {v(WF[2*slot+t]+2*p,2)}, v{RG[t]} offset:{off}", "w")
        def adv(regs, g):
            d = SL if (g & 3) != 3 else (-3*SL) & 0xffffffff
            for r in regs: A.e(f"v_add_u32 v{r}, {hex(d)}, v{r}")
        def copies(sidx, dsts, srcs):
            A.e(f"s_set_gpr_idx_on s{sidx}, gpr_idx(SRC0)")
            A.e("s_nop 0")
            for d, sr in zip(dsts, srcs):
                A.e(f"v_mov_b32 v{d}, v{sr}"); A.e(f"v_mov_b32 v{d+1}, v{sr+1}")
            A.e("s_set_gpr_idx_off")
        def tiny(acc, sp): A.e(f"v_mfma_f32_4x4x4_16b_bf16 {v(acc,4)}, {v(ONES,2)}, {v(sp,2)}, {v(acc,4)}")
        CP1 = [90, 92, 94]
        def pack_list(cs, addr, off):
            return [f"v_cvt_pk_bf16_f32 v{cs+1}, v{cs}, v{cs}", f"v_lshlrev_b32 v{cs+1}, 16, v{cs+1}", f"v_sub_f32 v{cs+1}, v{cs}, v{cs+1}",
                    f"v_cvt_pk_bf16_f32 v{cs+1}, v{cs}, v{cs+1}", lambda: A.lds(f"ds_write_b32 v{addr}, v{cs+1} offset:{off}", "cs")]
        rd1(0, 0); rd1(1, 1)
        A.e(f"s_cmp_lg_u32 s{sKH}, 1"); A.e(f"s_cbranch_scc1 L_off_{typ}")
        A.e("s_barrier")
        A.label(f"L_off_{typ}")
        gq = Side(A)
        for t in range(OPT["pre"], 3): dq.add(*issue1_list(typ, t))
        for h in range(16):
            t, par = h >> 1, h & 1
            if par == 0:
                stamp(A, f"a{t}")
                if t + 3 < 8: dq.add(*issue1_list(typ, t + 3))
                else: dq.add(*issue2_list(t - 5))
                if t == OPT["pft"] and OPT["pf"]: dq.add(pf2)
            for i in range(2):
                A.lds(f"ds_read_b128 {v(X+4*(2*h+i),4)}, v{XRD+2*par+i}", "x")
            if par:
                adv(([RQ] if t < 7 else []) + RG, t); cur[0] += 1
                if t < 7: adv(range(XRD, XRD + 4), t)
            dq.pull(5 if (len(dq.q) > 6 or (h == 0 and OPT['pre'] < 2)) else 3)
            if h == 12:
                A.e(f"s_lshl_b32 s{sI}, s{sTB}, 9"); A.e(f"s_add_u32 s{sI}, s{sI}, {STT}")
                A.e(f"v_and_b32 v{T0}, 31, v{L}"); A.e(f"v_lshl_add_u32 v{T2}, v{T0}, 4, s{sI}")
                A.vmem(f"buffer_load_dwordx4 {v(GRAN,4)}, v{T2}, {srd(SWS)}, 0 offen sc1", "gran")
                A.e(f"s_mul_i32 s{sI}, s{sKH}, 3072"); A.e(f"s_lshl2_add_u32 s{sI}, s{sTQ}, s{sI}"); A.e(f"s_add_u32 s{sSCR}, s{sI}, {SCR}")
                A.e(f"v_add_u32 v{SCA}, s{sSCR}, v{LO}")
            if h == 14:
                run([f"s_mov_b32 s{sI}, {hx(-0.25)}", f"s_mov_b32 s{sSC}, {hx(-1/LOG2E)}", f"s_cmp_lt_u32 s{sGI}, 8", f"s_cselect_b32 s{sSC}, s{sI}, s{sSC}"])
                run([f"s_lshl_b32 s{sHSO}, s{sGI}, 18", f"s_lshl_b32 s{sI}, s{sTB}, 10", f"s_add_u32 s{sHSO}, s{sHSO}, s{sI}"])
                run([f"s_lshl_b32 s{sI}, s{sKH}, 17", f"s_add_u32 s{sHSO}, s{sHSO}, s{sI}"])
                if typ == "R":
                    run([f"s_lshl_b32 s{sHS2}, s{sLA}, 11", f"s_add_u32 s{sHS2}, s{sHS2}, s{sI}", f"s_lshl_b32 s{sI}, s{sTB}, 10", f"s_add_u32 s{sHS2}, s{sHS2}, s{sI}"])
                else: run(h_soff(sHS2, sLA))
            if h == 15:
                A.wait(vm=["gran"])
                lb = f"L_gr_{typ}"
                A.label(lb)
                A.e(f"v_cmp_ne_u32 vcc, s{sTAG}, v{GRAN+3}")
                A.e(f"s_cmp_eq_u32 s{sSPIN}, 0"); A.e(f"s_cbranch_scc1 {lb}_out")
                A.e("s_nop 0")
                A.e(f"s_cbranch_vccz {lb}_out")
                A.e(f"s_sub_u32 s{sSPIN}, s{sSPIN}, 1"); A.e("s_sleep 1")
                A.e(f"buffer_load_dwordx4 {v(GRAN,4)}, v{T2}, {srd(SWS)}, 0 offen sc1"); A.e("s_waitcnt vmcnt(0)")
                A.e(f"s_branch {lb}")
                A.label(lb + "_out")
                A.e(f"v_mul_f32 v{RS}, {hx(-LOG2E)}, v{GRAN+1}"); A.e(f"v_mov_b32 v{SD2}, v{GRAN+2}"); A.e(f"v_mov_b32 v{NEGM}, v{GRAN}")
                for i in range(4): A.e(f"v_mov_b32 v{BX+i}, v{GRAN}")
                if typ == "R":
                    A.e(f"s_lshl_b32 s{sI}, s{sW}, 7"); A.e(f"s_add_u32 s{sI}, s{sI}, {SCR + 6144}")
                    A.e(f"v_lshl_add_u32 v{T0}, v{T0}, 2, s{sI}")
                    A.lds(f"ds_write_b32 v{T0}, v{GRAN+1}", "x")
                    A.e(f"v_lshrrev_b32 v{T1}, 5, v{L}"); A.e(f"v_lshl_add_u32 v{T3}, v{T1}, 4, s{sI}")
                    run([f"v_bfe_u32 v{T0}, v{L}, 4, 1", f"v_lshlrev_b32 v{T0}, 16, v{T0}",
                           f"v_lshl_add_u32 v{T0}, v{T1}, 8, v{T0}", f"v_and_b32 v{T1}, 15, v{L}", f"v_lshl_add_u32 v{T0}, v{T1}, 4, v{T0}"])
                for u in range(3): gq.add(*pack_list(CS1 + 4*u, SCA, u*1024))
            A.wait(lgkm="all")
            copies(sIX1, CP1, WF[:3])
            A.e("s_barrier")
            if h == 15:
                for u in range(3): tiny(CS1 + 4*u, CP1[u])
            for i in range(2):
                n = 2*h + i
                x = X + 4*n
                for u in range(3):
                    acc = v((ACC1, ACCA, ACCA + 16)[u], 16)
                    c = "0" if n == 0 else acc
                    w = v(WF[3*i+u], 4)
                    last = (i == 1 and u == 2)
                    if last and par == 0: wvm(("s1", t + 1) if t < 7 else ("s2", 0))
                    if last and h == 15: A.wait(lgkm=["cs"])
                    if u and typ == "R": A.e(f"{MF} {acc}, {v(x,4)}, {w}, {c}")
                    else: A.e(f"{MF} {acc}, {w}, {v(x,4)}, {c}")
                    if last: A.e("s_barrier")
                    if h < 15:
                        rd1(n + 2, i, (u,))
                        if i == 0: tiny(CS1 + 4*u, CP1[u])
                    else:
                        fi = 3*i + u
                        rd2(fi >> 1, fi >> 1, (fi & 1,))
                        gq.pull(5 if fi else 0)
        assert not gq.q
        sd.add(f"v_mul_f32 v{T1}, s{sSC}, v{RS}")
        for i in range(16): sd.add(f"v_mul_f32 v{ACC1+i}, v{T1}, v{ACC1+i}")
        for i in range(8): sd.add(f"v_cvt_pk_bf16_f32 v{ACC1+i}, v{ACC1+2*i}, v{ACC1+2*i+1}")
        sd.add(lambda: A.vmem(f"buffer_store_dwordx4 {v(ACC1,4)}, v{LO}, {srd(SWS)}, s{sHSO} offen sc1", "qk"))
        sd.add(f"s_add_u32 s{sHSO}, s{sHSO}, 65536")
        sd.add(lambda: A.vmem(f"buffer_store_dwordx4 {v(ACC1+4,4)}, v{LO}, {srd(SWS)}, s{sHSO} offen sc1", "qk"))
        RVR = [X, X + 4, ACC1 + 8, ACC1 + 12]
        if typ == "R":
            def rvread():
                for q in range(4): A.lds(f"ds_read_b128 {v(RVR[q],4)}, v{T3} offset:{32*q}", "rv")
            rvread.minblk = 1
            sd.q.insert(len(sd.q) - 3, rvread)
            sd.add(lambda: A.wait(lgkm=["rv"]))
            for t in range(2):
                a = ACCA + 16*t
                for i in range(16): sd.add(f"v_mul_f32 v{a+i}, v{RVR[i>>2]+(i&3)}, v{a+i}")
                for i in range(8): sd.add(f"v_cvt_pk_bf16_f32 v{a+i}, v{a+2*i}, v{a+2*i+1}")
                sd.add(lambda a=a: A.vmem(f"buffer_store_dwordx4 {v(a,4)}, v{T0}, {srd(SWS)}, s{sHS2} offen sc1", "qk"))
                sd.add(lambda a=a: A.vmem(f"buffer_store_dwordx4 {v(a+4,4)}, v{T0}, {srd(SWS)}, s{sHS2} offen offset:512 sc1", "qk"))
                if t == 0: sd.add(f"s_add_u32 s{sHS2}, s{sHS2}, {4*65536}")
        else:
            for t in range(2):
                sd.add(*silu_list(ACCA + 16*t, X, ACCA + 16*t + 8, sHS2, t*1024, "ha"))
        sd.add("s_nop 0")
        for i in range(32): sd.add(f"v_mov_b32 v{VFR[0][0]+i}, s{sONE}")
        ms = Side(A)
        ms.add(f"v_mov_b32 v{VE}, s{sTAG}")
        setupB(ms); setupB2(ms)
        def cost(x): return 8 if (isinstance(x, str) and x.startswith(("v_exp", "v_rcp"))) else (16 if callable(x) else 4)
        def pullc(budget, novm=False):
            while sd.q and budget > 0:
                if novm and callable(sd.q[0]): return
                budget -= cost(sd.q[0]); sd.pull(1)
        for blk in range(11):
            ks = list(range(3*blk, min(3*blk + 3, 32)))
            stamp(A, f"b{blk}")
            if blk == 0:
                dq.add(*issue2_list(3))
                A.e(f"v_and_b32 v{SCA}, -16, v{SCA}")
                for u in range(3): A.lds(f"ds_read_b128 {v(CS1+4*u,4)}, v{SCA} offset:{u*1024}", "ax")
            if 3*blk + 3 < 32 and 8 + ((3*blk + 3) >> 3) > cur[0]:
                adv(RG, cur[0]); cur[0] += 1
            dq.pull(2 if blk == 0 else 1)
            if blk >= 1: pullc(OPT["rvb"] // 2)
            dq.pull(1)
            if blk >= 1: pullc(OPT["rvb"] // 2)
            if blk == OPT["fq"]:
                assert not dq.q and (typ == "P" or not any(callable(x) for x in sd.q))
                A.e(f"s_lshl_b32 s{sT1}, s{sGI}, 9"); A.e(f"s_lshl2_add_u32 s{sT1}, s{sTB}, s{sT1}")
                A.e(f"s_lshl_b32 s{sT0}, s{sKH}, 8"); A.e(f"s_add_u32 s{sT0}, s{sT0}, {F1}"); A.e(f"s_add_u32 s{sT1}, s{sT1}, s{sT0}")
                A.wait(vm=["qk"]); flag_store(sT1)
                if typ == "R":
                    A.e(f"s_lshl_b32 s{sT1}, s{sLA}, 2"); A.e(f"s_lshl2_add_u32 s{sT1}, s{sTB}, s{sT1}"); A.e(f"s_add_u32 s{sT1}, s{sT1}, s{sT0}")
                    flag_store(sT1, (0, 512))
            if blk == OPT["fa"] and typ == "P":
                assert not any(callable(x) for x in sd.q)
                f2_flag(0, "ha")
            if blk == OPT["pk"] - 1:
                for va, vt in zip((PFK, PFV, PFQ), PT):
                    A.vmem(f"buffer_load_dword v{vt}, v{va}, {srd(SWS)}, 0 offen sc1", "p1")
            if blk == OPT["pk"]:
                stamp(A, "bp1")
                A.wait(vm=["p1"])
                poll_loop(A, f"L_p1_{typ}", list(zip((PFK, PFV, PFQ), PT)))
                stamp(A, "p1")
                A.vmem(f"buffer_load_dwordx4 {v(Q,4)}, v{LO}, {srd(SWS)}, s{sVO} offen sc1", "q")
                A.vmem(f"buffer_load_dwordx4 {v(K01[0],4)}, v{LO}, {srd(SWS)}, s{sXO} offen sc1", "q")
                dq.add(lambda: A.vmem(f"buffer_load_dwordx4 {v(K01[1],4)}, v{LO}, {srd(SWS)}, s{sXO} offen offset:1024 sc1", "q"))
                dq.add(lambda: kv_issue(0, ("kv", 0), True))
            if blk == 10:
                sd.flush(); ms.flush()
                A.e(f"v_add_u32 v{T0}, s{sSCR}, v{LO}")
                gq.add(*pack_list(CS2, T0, 0))
            A.wait(lgkm="all")
            CP2 = CP1 if blk == 0 else [122, 124, X + 8]
            copies(sIX2, CP2[:len(ks)], [WF[2*i] for i in range(len(ks))])
            A.e("s_barrier")
            if blk == 10:
                tiny(CS2, CP2[0]); A.e("s_nop 1"); tiny(CS2, CP2[1])
            if blk == 0:
                for u in range(3):
                    acc = v((ACC1, ACCA, ACCA + 16)[u], 16)
                    if u and typ == "R": A.e(f"{MF} {acc}, {v(BX,4)}, {v(CS1+4*u,4)}, {acc}")
                    else: A.e(f"{MF} {acc}, {v(CS1+4*u,4)}, {v(BX,4)}, {acc}")
                    A.e("s_nop 0")
                    tiny(CS2, CP2[u])
            bst = {0: 1, 3: 2, 6: 3}.get(blk)
            for i, n in enumerate(ks):
                x = X + 4*n
                for t in range(2):
                    acc = v(ACCB + 16*t, 16)
                    c = "0" if n == 0 else acc
                    last = (i == len(ks) - 1 and t == 1)
                    if last and bst: wvm(("s2", bst))
                    if last and blk == 10: A.wait(lgkm=["cs"])
                    A.e(f"{MF} {acc}, {v(WF[2*i+t],4)}, {v(x,4)}, {c}")
                    if last: A.e("s_barrier")
                    rd2(n + 3, i, (t,))
                    if 1 <= blk < 10 and 2*i + t < 3: tiny(CS2, CP2[2*i + t])
                    if not last:
                        if blk == 10:
                            if i + t == 0: A.e("s_nop 3")
                            gq.pull(5)
                        elif blk >= 4: ms.pull(OPT["msp"])
                        elif blk >= 1 or i >= 2: pullc(OPT["m2b"] if blk else 16, True)
        dq.flush()
        assert not sd.q and not ms.q and not gq.q
        stamp(A, "p2end")
        endvm.append(list(A.vm))
        if typ == "P": A.e("s_branch L_A_done")
    endvm = []
    passes("P")
    A.label("L_R"); passes("R")
    assert all(x == endvm[0] for x in endvm), endvm
    A.label("L_A_done")
    A.e(f"v_and_b32 v{T0}, -16, v{T0}")
    A.e(f"ds_read_b128 {v(128,4)}, v{T0}")
    for i, sr in enumerate((f"v{NEGM}", f"v{NEGM}", "0", "0", f"v{NEGM}", f"v{NEGM}")): A.e(f"v_mov_b32 v{136+i}, {sr}")
    kv_issue(1, ("kv", 1))
    A.e("s_waitcnt lgkmcnt(0)")
    for t in range(2): A.e(f"{MF} {v(ACCB+16*t,16)}, {v(128,4)}, {v(136+2*t,4)}, {v(ACCB+16*t,16)}")
    A.wait(vm=["q"])
    for b in range(2): A.e(f"{MF} {v(S[b],16)}, {v(K01[b],4)}, {v(Q,4)}, 0")
    A.e("s_nop 7")
    sl = silu_list(ACCB, 112, ACCB + 8, sHSO, 0, "hb") + silu_list(ACCB + 16, 112, ACCB + 24, sHSO, 1024, "hb")
    run(sl)
    A.e(f"v_max_f32 v{T0}, v{S[0]}, v{S[0]+1}")
    for i in range(2, 32, 2): A.e(f"v_max3_f32 v{T0}, v{T0}, v{S[0]+i}, v{S[0]+i+1}")
    A.e(f"v_mov_b32 v{T1}, v{T0}"); A.e(f"s_mov_b32 s{sI}, 0"); A.e("s_nop 0")
    A.e(f"v_permlane32_swap_b32 v{T0}, v{T1}"); A.e("s_nop 0")
    A.e(f"v_max_f32 v{T0}, v{T0}, v{T1}")
    A.e(f"v_sub_f32 v{C}, {hx(-80.0)}, v{T0}")
    for i in range(1, 16): A.e(f"v_mov_b32 v{C+i}, v{C}")
    A.wait(vm=[("kv", 0)])
    A.e("s_nop 0")
    A.e(f"{MF} {v(S[0],16)}, {v(K01[0],4)}, {v(Q,4)}, {v(C,16)}")
    A.e("s_barrier")
    stamp(A, "BB0")

    def w_issue(slot, tag):
        A.e(f"s_add_u32 m0, s{sMW}, {slot*16384}")
        A.e("s_nop 0")
        A.vmem(f"buffer_load_dwordx4 v{WD0}, {srd(SCUR)}, s{sWSO} offen lds", tag)
        A.vmem(f"buffer_load_dwordx4 v{WD1}, {srd(SCUR)}, s{sWSO} offen offset:1024 lds", tag)
        A.e(f"s_add_u32 s{sWSO}, s{sWSO}, {128*1024}")
    def h_issue(slot, tag):
        A.e(f"s_add_u32 m0, s{sMH}, {slot*16384}")
        A.e("s_nop 0")
        A.vmem(f"buffer_load_dwordx4 v{LO}, {srd(SWS)}, s{sAO} offen sc1 lds", tag)
        A.vmem(f"buffer_load_dwordx4 v{LO}, {srd(SWS)}, s{sAO2} offen offset:1024 sc1 lds", tag)
        A.e(f"s_add_u32 s{sAO}, s{sAO}, 8192"); A.e(f"s_add_u32 s{sAO2}, s{sAO2}, 8192")
    def wait_oldest(tags, extra=""):
        n = None
        for tg in tags:
            idx = [k for k, t_ in enumerate(A.vm) if t_ == tg]
            if not idx: continue
            last = idx[0]
            while last + 1 < len(A.vm) and A.vm[last + 1] == tg: last += 1
            n = len(A.vm) - 1 - last
            A.vm = A.vm[last+1:]
        parts = ([f"vmcnt({n})"] if n is not None else []) + ([extra] if extra else [])
        if parts: A.e("s_waitcnt " + " ".join(parts))
    def body(kind):
        for pp in range(4):
            side = kind == "side" or pp >= 2
            def reads():
                for i in range(4): A.e(f"ds_read_b128 {v(KFR[i],4)}, v{LO} offset:{pp*8192 + i*1024}")
                A.e(f"s_mov_b64 exec, s[{sMSK}:{sMSK+1}]")
                for i in range(4):
                    for f in range(2): A.e(f"ds_read_b128 {v(VFR[i][f],4)}, v{VA} offset:{pp*8192 + 4096 + i*1024 + f*512}")
                A.e("s_mov_b64 exec, -1")
                if side:
                    for i in range(4):
                        for p in range(2): A.e(f"ds_read_b64_tr_b16 {v(DW[i]+2*p,2)}, v{RAW} offset:{pp*16384 + i*2048 + p*1024}")
                        A.e(f"ds_read_b128 {v(HF[i],4)}, v{RAH} offset:{pp*16384 + i*2048}")
            prev = (pp + 3) & 3
            if kind == "side":
                reads()
                if pp == 1:
                    A.e(f"s_cmp_lg_u32 s{sI}, 1"); A.e("s_cbranch_scc1 L_p2b_out")
                    A.e("s_waitcnt vmcnt(0)")
                    poll_loop(A, "L_p2b", [(PF2A, T2)])
                    A.e(f"s_cmp_lg_u32 s{sI}, 3"); A.e("s_cbranch_scc1 L_nosw")
                    for i in range(4): A.e(f"s_mov_b32 s{SCUR+i}, s{SO+i}")
                    A.e(f"s_lshl_b32 s{sWSO}, s{sW}, 14"); A.e(f"s_lshl_b32 s{sT0}, s{sTN}, 7"); A.e(f"s_add_u32 s{sWSO}, s{sWSO}, s{sT0}")
                    A.e(f"s_mov_b32 s{sAO}, 0x7f000000"); A.e(f"s_mov_b32 s{sAO2}, 0x7f000000")
                    A.label("L_nosw")
                kv_issue(prev, ("kv", prev)); h_issue(prev, ("h", prev)); w_issue(prev, ("w", prev))
                if pp == 0:
                    A.e(f"s_cmp_lg_u32 s{sI}, 1"); A.e("s_cbranch_scc1 L_p2b_ld")
                    A.e(f"buffer_load_dword v{T2}, v{PF2A}, {srd(SWS)}, 0 offen sc1")
                    A.label("L_p2b_ld")
                nx = (pp + 1) & 3
                wait_oldest([("w", nx)], "lgkmcnt(0)")
            else:
                if pp == 0:
                    A.vmem(f"buffer_load_dword v{T2}, v{PF2A}, {srd(SWS)}, 0 offen sc1", "p2")
                    kv_issue(2, ("kv", 2)); kv_issue(3, ("kv", 3))
                    w_issue(2, ("w", 2)); w_issue(3, ("w", 3))
                    A.e(f"s_cmp_lg_u32 s{sKH}, 0"); A.e("s_cbranch_scc1 L_g1go")
                    A.e("s_barrier")
                    A.label("L_g1go")
                    reads()
                    wait_oldest([("kv", 1)], "lgkmcnt(0)")
                    A.e(f"s_cmp_lg_u32 s{sKH}, 0"); A.e("s_cbranch_scc0 L_g0go")
                if pp == 1:
                    reads()
                    stamp(A, "bp2")
                    A.wait(vm=["p2"])
                    poll_loop(A, "L_p2a", [(PF2A, T2)])
                    stamp(A, "p2")
                    kv_issue(0, ("kv", 0)); h_issue(2, ("h", 2)); h_issue(3, ("h", 3)); h_issue(0, ("h", 0)); w_issue(0, ("w", 0))
                    f2_flag(1, "hb")
                    A.e(f"s_lshl_b32 s{sT0}, s{sTM}, 8"); A.e(f"s_add_u32 s{sT0}, s{sT0}, {F2 + 8192}")
                    A.e(f"v_lshl_add_u32 v{PF2A}, v{L}, 2, s{sT0}")
                    wait_oldest([("kv", 2)], "lgkmcnt(0)")
                if pp >= 2:
                    reads()
                    kv_issue(prev, ("kv", prev)); h_issue(prev, ("h", prev)); w_issue(prev, ("w", prev))
                    wait_oldest([("h", 3)] if pp == 2 else [("w", 0)], "lgkmcnt(0)")
            A.e("s_barrier")
            if kind == "first" and pp == 0: A.label("L_g0go")
            for i in range(4):
                b = i & 1; nb = b ^ 1
                e = [f"v_exp_f32 v{S[b]+j}, v{S[b]+j}" for j in range(16)]
                c = [f"v_cvt_pk_bf16_f32 v{P[b]+j}, v{S[b]+2*j}, v{S[b]+2*j+1}" for j in range(8)]
                qk = f"{MF} {v(S[nb],16)}, {v(KFR[i],4)}, {v(Q,4)}, {v(C,16)}"
                first = kind == "first" and pp == 0
                pv0 = f"{MF} {v(O,16)}, {v(VFR[i][0],4)}, {v(P[nb],4)}, {'0' if (first and i == 1) else v(O,16)}"
                pv1 = f"{MF} {v(O,16)}, {v(VFR[i][1],4)}, {v(P[nb]+4,4)}, {v(O,16)}"
                sm = f"{MF} {v(DACC,16)}, {v(DW[i],4)}, {v(HF[i],4)}, {'0' if (kind == 'first' and pp == 2 and i == 0) else v(DACC,16)}"
                pv = [] if (first and i == 0) else [pv0, pv1]
                run(e[0:2] + [qk] + e[2:7] + pv[:1] + e[7:12] + pv[1:] + e[12:16] + c[:2] + ([sm] if side else []) + c[2:7])
                if i == 3:
                    if kind == "first" and pp == 1: wait_oldest([("h", 2)])
                    if pp == 3:
                        stamp(A, "it", 4)
                        A.e(f"s_add_u32 s{sI}, s{sI}, 1")
                        if kind == "side": A.e(f"s_cmp_lt_u32 s{sI}, 4")
                run(c[7:])
            if pp < 3: A.e("s_barrier")
    body("first")
    print("vm after first body:", A.vm)
    steady = [("kv", 1), ("h", 1), ("h", 1), ("w", 1), ("w", 1), ("kv", 2), ("h", 2), ("h", 2), ("w", 2), ("w", 2)]
    assert A.vm == steady
    A.raw("    .p2align 6")
    A.label("L_loop")
    A.e("s_barrier")
    body("side")
    assert A.vm == steady, A.vm
    A.e("s_cbranch_scc1 L_loop")
    A.e(f"s_cmp_lg_u32 s{sKH}, 0"); A.e("s_cbranch_scc1 L_al")
    A.e("s_barrier")
    A.label("L_al")
    stamp(A, "drain")
    A.e("s_setprio 1")
    A.e(f"s_mov_b64 exec, s[{sMSK}:{sMSK+1}]")
    for f in range(2): A.e(f"ds_read_b128 {v(VFR[0][f],4)}, v{VA} offset:{4096 + f*512}")
    A.e("s_mov_b64 exec, -1")
    w_issue(3, "w19")
    A.e(f"s_mul_i32 s{sT0}, s{sTBq}, 144"); A.e(f"s_add_u32 s{sT0}, s{sT0}, s{sHD}"); A.e(f"s_lshl_b32 s{sT0}, s{sT0}, 10")
    A.e(f"s_add_u32 s{sT0}, s{sT0}, {ACTF + 112*1024}")
    A.e("s_waitcnt lgkmcnt(0)")
    for f in range(2): A.e(f"{MF} {v(O,16)}, {v(VFR[0][f],4)}, {v(P[1]+4*f,4)}, {v(O,16)}")
    A.e(f"s_lshr_b32 s{sT1}, s{sTBq}, 1"); A.e(f"s_lshl_b32 s{sT1}, s{sT1}, 8"); A.e(f"s_lshl3_add_u32 s{sT1}, s{sHD}, s{sT1}")
    A.e(f"s_and_b32 s{sT2}, s{sTBq}, 1"); A.e(f"s_lshl2_add_u32 s{sT1}, s{sT2}, s{sT1}"); A.e(f"s_add_u32 s{sT1}, s{sT1}, {F3}")
    A.e(f"v_mov_b32 v{T1}, {hx(2.0**100)}")
    A.e(f"s_mov_b32 s{sFB}, 0")
    A.e("s_nop 3")
    A.e(f"v_mov_b32 v{T0}, v{O+8}")
    for i in range(8): A.e(f"v_fma_f32 v{T0}, v{O+i}, 0, v{T0}")
    A.e(f"v_cmp_nlt_f32 vcc, v{T0}, v{T1}")
    A.e(f"v_rcp_f32 v{T0}, v{O+8}")
    A.e("s_nop 3")
    A.e("s_cbranch_vccnz L_fallback")
    A.label("L_fin")
    for i in range(8): A.e(f"v_mul_f32 v{O+i}, v{O+i}, v{T0}")
    for i in range(4): A.e(f"v_cvt_pk_bf16_f32 v{P[0]+i}, v{O+2*i}, v{O+2*i+1}")
    A.e(f"buffer_store_dwordx4 {v(P[0],4)}, v{LO}, {srd(SWS)}, s{sT0} offen sc1")
    XRES, XA = 96, 100
    A.e(f"s_lshl_b32 s{sT2}, s{sW}, 6"); A.e(f"v_add_u32 v0, s{sT2}, v{L}")
    A.e(f"v_lshrrev_b32 v{T0}, 3, v0"); A.e(f"v_lshlrev_b32 v{T0}, 10, v{T0}")
    A.e(f"v_and_b32 v{T2}, 7, v0"); A.e(f"v_lshl_add_u32 v{XA}, v{T2}, 4, v{T0}")
    sOO = sKO
    A.e(f"s_lshl_b32 s{sOO}, s{sTM}, 16"); A.e(f"s_lshl_b32 s{sT0}, s{sTN}, 7"); A.e(f"s_add_u32 s{sOO}, s{sOO}, s{sT0}")
    A.e(f"s_lshl_b32 s{sT0}, s{sTM}, 8"); A.e(f"s_lshl_b32 s{sT2}, s{sW}, 5"); A.e(f"s_add_u32 s{sT0}, s{sT0}, s{sT2}"); A.e(f"s_add_u32 s{sT0}, s{sT0}, {F3}")
    A.e(f"v_lshl_add_u32 v{PF2A}, v{T2}, 2, s{sT0}")
    A.e(f"s_mul_i32 s{sAO}, s{sTM}, {2*144*1024}"); A.e(f"s_lshl_b32 s{sT0}, s{sW}, 12")
    A.e(f"s_add_u32 s{sAO}, s{sAO}, s{sT0}"); A.e(f"s_add_u32 s{sAO}, s{sAO}, {ACTF + 112*1024}")
    A.e("s_waitcnt vmcnt(0)")
    flag_store(sT1)
    stamp(A, "f3")
    A.e(f"buffer_load_dwordx4 {v(XRES,4)}, v{XA}, {srd(SX)}, s{sOO} offen")
    A.e("s_barrier")
    A.e(f"buffer_load_dword v101, v{PF2A}, {srd(SWS)}, 0 offen sc1")
    WOF = 144
    for k in range(16):
        for p in range(2):
            A.e(f"ds_read_b64_tr_b16 {v(WOF+4*k+2*p,2)}, v{RAW} offset:{(k>>2)*16384 + (k&3)*2048 + p*1024}")
    A.e(f"v_and_b32 v{T0}, 31, v{L}"); A.e(f"v_lshrrev_b32 v{T1}, 5, v{L}")
    A.e(f"v_xor_b32 v{T1}, v{T1}, v{T2}")
    A.e(f"v_lshlrev_b32 v{T0}, 8, v{T0}")
    A.e(f"s_lshr_b32 s{sT0}, s{sW}, 1"); A.e(f"s_lshl_b32 s{sT0}, s{sT0}, 13")
    A.e(f"s_and_b32 s{sT2}, s{sW}, 1"); A.e(f"s_lshl_b32 s{sT2}, s{sT2}, 7"); A.e(f"s_add_u32 s{sT0}, s{sT0}, s{sT2}")
    A.e(f"v_add_u32 v{T0}, s{sT0}, v{T0}")
    for q in range(4):
        A.e(f"v_xor_b32 v108, {2*q}, v{T1}"); A.e(f"v_lshl_add_u32 v{104+q}, v108, 4, v{T0}")
    A.e(f"v_lshrrev_b32 v{T0}, 3, v0"); A.e(f"v_and_b32 v{T1}, 7, v{T0}")
    A.e(f"v_lshlrev_b32 v{T2}, 1, v{T2}"); A.e(f"v_xor_b32 v{T2}, v{T2}, v{T1}")
    A.e(f"v_lshlrev_b32 v{T0}, 8, v{T0}")
    A.e(f"v_lshl_add_u32 v108, v{T2}, 4, v{T0}"); A.e("v_xor_b32 v109, 16, v108")
    A.e(f"s_lshl_b32 s{sT0}, s{sW}, 13"); A.e(f"s_add_u32 s{sT0}, s{sT0}, {HRING}")
    A.e(f"s_add_u32 s{sT2}, s{sAO}, {144*1024}")
    A.e("s_waitcnt vmcnt(0)")
    poll_loop(A, "L_p3", [(PF2A, 101)])
    stamp(A, "p3")
    for k in range(4):
        for tb2 in range(2):
            A.e(f"s_add_u32 m0, s{sT0}, {k*2048 + tb2*1024 - k*1024}")
            A.e("s_nop 0")
            A.e(f"buffer_load_dwordx4 v{LO}, {srd(SWS)}, s{sT2 if tb2 else sAO} offen offset:{k*1024} sc1 lds")
    for i in range(4):
        A.e(f"v_lshlrev_b32 v{112+2*i}, 16, v{XRES+i}"); A.e(f"v_and_b32 v{113+2*i}, 0xffff0000, v{XRES+i}")
    A.e("s_waitcnt vmcnt(0) lgkmcnt(0)")
    A.e("s_barrier")
    stamp(A, "obar")
    OF = 32
    for k in range(16):
        A.e(f"ds_read_b128 {v(OF+4*k,4)}, v{RAH} offset:{(k>>2)*16384 + (k&3)*2048}")
    for k in range(16):
        A.e(f"s_waitcnt lgkmcnt({15-k})")
        A.e(f"{MF} {v(DACC,16)}, {v(WOF+4*k,4)}, {v(OF+4*k,4)}, {v(DACC,16)}")
    stamp(A, "cmf")
    A.e("s_nop 11")
    for q in range(4): A.e(f"ds_write_b128 v{104+q}, {v(DACC+4*q,4)}")
    A.e("s_waitcnt lgkmcnt(0)")
    A.e("s_barrier")
    stamp(A, "cbar")
    for w in range(2):
        A.e(f"ds_read_b128 {v(32+8*w,4)}, v108 offset:{w*16384}")
        A.e(f"ds_read_b128 {v(36+8*w,4)}, v109 offset:{w*16384}")
    for w in range(2):
        A.e(f"s_waitcnt lgkmcnt({2-2*w})")
        for i in range(8): A.e(f"v_add_f32 v{112+i}, v{112+i}, v{32+8*w+i}")
    for i in range(4): A.e(f"v_cvt_pk_bf16_f32 v{XRES+i}, v{112+2*i}, v{113+2*i}")
    A.e(f"buffer_store_dwordx4 {v(XRES,4)}, v{XA}, {srd(SOUT)}, s{sOO} offen")
    A.e(f"s_or_b32 s{sT0}, s2, s{sW}"); A.e(f"s_cmp_lg_u32 s{sT0}, 0"); A.e("s_cbranch_scc1 L_noep")
    A.e(f"v_lshrrev_b32 v{T0}, 4, v{L}"); A.e(f"v_and_b32 v{T1}, 15, v{L}")
    A.e(f"v_lshlrev_b32 v{T0}, 9, v{T0}"); A.e(f"v_lshl_add_u32 v{T0}, v{T1}, 4, v{T0}")
    A.e(f"v_add_u32 v{T0}, {F1}, v{T0}"); A.e(f"v_add_u32 v{T1}, 2048, v{T0}")
    A.e(f"buffer_load_dword v{T2}, v{T0}, {srd(SWS)}, 0 offen sc1")
    A.e(f"buffer_load_dword v{T3}, v{T1}, {srd(SWS)}, 0 offen sc1")
    A.e("s_waitcnt vmcnt(0)")
    poll_loop(A, "L_p4", [(T0, T2), (T1, T3)])
    A.e(f"s_mov_b32 s{sT0}, {EPOCH}")
    A.e("s_mov_b64 exec, 1")
    A.e(f"buffer_store_dword v{VE}, off, {srd(SWS)}, s{sT0} sc1")
    A.label("L_noep")
    if INSTR:
        A.e("s_waitcnt vmcnt(0)")
        stamp(A, "end")
        A.e("s_memrealtime s[98:99]"); A.e("s_waitcnt lgkmcnt(0)")
        A.e("s_mov_b64 exec, -1")
        A.e(f"s_lshl_b32 s{sT0}, s2, 3"); A.e(f"s_add_u32 s{sT0}, s{sT0}, s{sW}"); A.e(f"s_lshl_b32 s{sT0}, s{sT0}, 8")
        A.e(f"s_add_u32 s{sT0}, s{sT0}, {PROF}")
        A.e("v_writelane_b32 v127, s74, 0"); A.e("v_writelane_b32 v127, s98, 1")
        A.e(f"v_writelane_b32 v127, s{sSPIN}, 2"); A.e(f"v_writelane_b32 v127, s{sFB}, 3")
        A.e(f"v_lshlrev_b32 v{T0}, 2, v{L}")
        A.e(f"buffer_store_dword v127, v{T0}, {srd(SWS)}, s{sT0} offen")
    A.e("s_endpgm")
    A.label("L_fallback")
    A.e(f"s_mov_b32 s{sFB}, 1"); A.e(f"s_mov_b32 s{sI}, 0")
    A.e(f"s_mov_b32 s{sVO}, s{sXO}")
    A.e(f"v_mov_b32 v{T0}, 0xff800000")
    A.label("L_maxloop")
    A.e(f"buffer_load_dwordx4 {v(KFR[0],4)}, v{LO}, {srd(SWS)}, s{sVO} offen sc1"); A.e("s_waitcnt vmcnt(0)")
    A.e(f"{MF} {v(S[0],16)}, {v(KFR[0],4)}, {v(Q,4)}, 0")
    A.e("s_nop 7"); A.e("s_nop 3")
    for i in range(0, 16, 2): A.e(f"v_max3_f32 v{T0}, v{T0}, v{S[0]+i}, v{S[0]+i+1}")
    A.e(f"s_add_u32 s{sVO}, s{sVO}, 1024")
    A.e(f"s_add_u32 s{sI}, s{sI}, 1"); A.e(f"s_cmp_lt_u32 s{sI}, 64"); A.e("s_cbranch_scc1 L_maxloop")
    A.e(f"v_mov_b32 v{T1}, v{T0}"); A.e("s_nop 1")
    A.e(f"v_permlane32_swap_b32 v{T0}, v{T1}"); A.e("s_nop 0")
    A.e(f"v_max_f32 v{T0}, v{T0}, v{T1}")
    for i in range(16): A.e(f"v_sub_f32 v{C+i}, 0, v{T0}")
    for i in range(16): A.e(f"v_mov_b32 v{O+i}, 0")
    A.e(f"s_mov_b32 s{sI}, 0")
    A.label("L_fbloop")
    A.e(f"s_add_u32 s{sVO}, s{sXO}, {VF-KF}")
    A.e(f"buffer_load_dwordx4 {v(KFR[0],4)}, v{LO}, {srd(SWS)}, s{sXO} offen sc1")
    A.e(f"s_mov_b64 exec, s[{sMSK}:{sMSK+1}]")
    A.e(f"buffer_load_dwordx4 {v(VFR[0][0],4)}, v{VA}, {srd(SWS)}, s{sVO} offen sc1")
    A.e(f"buffer_load_dwordx4 {v(VFR[0][1],4)}, v{VA}, {srd(SWS)}, s{sVO} offen offset:512 sc1")
    A.e("s_mov_b64 exec, -1")
    A.e("s_waitcnt vmcnt(0)")
    A.e(f"{MF} {v(S[0],16)}, {v(KFR[0],4)}, {v(Q,4)}, {v(C,16)}")
    A.e("s_nop 7"); A.e("s_nop 3")
    for i in range(16): A.e(f"v_exp_f32 v{S[0]+i}, v{S[0]+i}")
    A.e("s_nop 0")
    for i in range(8): A.e(f"v_cvt_pk_bf16_f32 v{P[0]+i}, v{S[0]+2*i}, v{S[0]+2*i+1}")
    A.e("s_nop 1")
    for f in range(2): A.e(f"{MF} {v(O,16)}, {v(VFR[0][f],4)}, {v(P[0]+4*f,4)}, {v(O,16)}")
    A.e(f"s_add_u32 s{sXO}, s{sXO}, 1024")
    A.e(f"s_add_u32 s{sI}, s{sI}, 1"); A.e(f"s_cmp_lt_u32 s{sI}, 64"); A.e("s_cbranch_scc1 L_fbloop")
    A.e("s_nop 7"); A.e("s_nop 3")
    A.e(f"v_rcp_f32 v{T0}, v{O+8}"); A.e("s_nop 0")
    A.e("s_branch L_fin")
    A.label("L_end")
    A.e("s_endpgm")
    return A

HEADER = open("parallel_sum__softmax_full_mha__swiglu_ffn__prompt.s.ref").read().split("; Override")[0]
def build():
    A = gen()
    body = A.text()
    probs = check_hazards(body)
    out = HEADER + "; @launch grid=(256,1,1) block=(512,1,1) lds=163840\n" + '.amdgcn_target "amdgcn-amd-amdhsa--gfx950"\n' + body
    out += KD.format(name=NAME, nvgpr=256, nsgpr=102, accum=256)
    return out, probs

if __name__ == "__main__":
    if len(sys.argv) > 2 and sys.argv[2] != "0": INSTR = sys.argv[2]
    for kv in sys.argv[3:]:
        k_, v_ = kv.split("="); OPT[k_] = int(v_)
    out, probs = build()
    if INSTR: out += "; STAMPS " + ",".join(STAMPS) + "\n"
    open(sys.argv[1], "w").write(out)
    print("hazards:", len(probs), "chars:", len(out))
```

```python
import re

class Asm:
    def __init__(self):
        self.lines = []
        self.vm = []
        self.lgkm = []
        self.issued = set()
        self.nvm = 0
    def e(self, s):
        for l in s.split("\n"):
            l = l.strip()
            if l: self.lines.append("    " + l)
    def c(self, s): self.lines.append("    ; " + s)
    def label(self, s): self.lines.append(s + ":")
    def raw(self, s): self.lines.append(s)
    def vmem(self, s, tag=None):
        self.e(s); self.vm.append(tag); self.issued.add(tag); self.nvm += 1
        assert len(self.vm) <= 63, "too many vmem outstanding"
    def lds(self, s, tag=None):
        self.e(s); self.lgkm.append(tag)
    def _cnt(self, q, tags):
        if not isinstance(tags, (list, tuple, set)): tags = [tags]
        idx = [i for i, t in enumerate(q) if t in tags]
        if not idx: return None
        return len(q) - 1 - max(idx)
    def wait(self, vm=None, lgkm=None):
        parts = []
        if vm is not None:
            n = 0 if vm == "all" else self._cnt(self.vm, vm)
            if n is not None and (vm == "all" or n < len(self.vm)):
                parts.append(f"vmcnt({n})"); self.vm = self.vm[len(self.vm) - n:] if n else []
        if lgkm is not None:
            n = 0 if lgkm == "all" else self._cnt(self.lgkm, lgkm)
            if n is not None:
                n = min(n, 15)
                parts.append(f"lgkmcnt({n})"); self.lgkm = self.lgkm[len(self.lgkm) - n:] if n else []
        if parts: self.e("s_waitcnt " + " ".join(parts))
    def text(self): return "\n".join(self.lines) + "\n"

def v(a, n=1): return f"v{a}" if n == 1 else f"v[{a}:{a+n-1}]"
def s(a, n=1): return f"s{a}" if n == 1 else f"s[{a}:{a+n-1}]"
def a_(a, n=1): return f"a{a}" if n == 1 else f"a[{a}:{a+n-1}]"

def _regs(op):
    op = op.strip()
    op = re.sub(r"^-|^\|(.*)\|$|^abs\((.*)\)$", lambda m: (m.group(1) or m.group(2) or ""), op)
    m = re.fullmatch(r"([vas])(\d+)", op)
    if m: return {(m.group(1), int(m.group(2)))}
    m = re.fullmatch(r"([vas])\[(\d+):(\d+)\]", op)
    if m: return {(m.group(1), i) for i in range(int(m.group(2)), int(m.group(3)) + 1)}
    if op == "vcc": return {("s", 106), ("s", 107)}
    if op == "vcc_lo": return {("s", 106)}
    if op == "vcc_hi": return {("s", 107)}
    if op == "exec": return {("s", 126), ("s", 127)}
    if op == "m0": return {("s", 124)}
    return set()

TRANS = ("v_exp_f32", "v_log_f32", "v_rcp_f32", "v_rsq_f32", "v_sqrt_f32", "v_sin_f32", "v_cos_f32", "v_exp_f16", "v_rcp_iflag_f32")

class I:
    def __init__(self, text, ln):
        self.text = text; self.ln = ln
        t = text.split(";")[0].strip()
        parts = t.split(None, 1)
        self.op = re.sub(r"_e32$|_e64$", "", parts[0])
        rest = parts[1] if len(parts) > 1 else ""
        ops = [o.strip() for o in re.split(r",(?![^\[]*\])", rest)] if rest else []
        mods = ""
        if ops:
            sp = ops[-1].split(None, 1)
            ops[-1] = sp[0]; mods = sp[1] if len(sp) > 1 else ""
        self.ops = ops; self.mods = mods
        op = self.op
        R = [_regs(o) for o in ops]
        self.w = set(); self.r = set(); self.kind = "other"
        self.srcC = set(); self.srcAB = set(); self.data = set(); self.passes = 0
        if op.startswith("v_mfma") or op.startswith("v_smfmac"):
            self.kind = "mfma"; self.w = R[0]; self.srcAB = R[1] | R[2]; self.srcC = R[3] if op.startswith("v_mfma") else R[0]
            self.r = self.srcAB | self.srcC | R[3]
            self.passes = 8 if "32x32" in op else (2 if "4x4x4" in op else 4)
        elif op.startswith("v_cmp"):
            self.kind = "valu"; self.w = R[0]; self.r = set().union(*R[1:])
            if op.startswith("v_cmpx"): self.w |= _regs("exec")
        elif op.startswith("v_permlane") and "swap" in op:
            self.kind = "valu"; self.w = R[0] | R[1]; self.r = R[0] | R[1]
        elif op in ("v_add_co_u32", "v_sub_co_u32", "v_addc_co_u32", "v_subb_co_u32"):
            self.kind = "valu"; self.w = R[0] | R[1]; self.r = set().union(*R[2:])
        elif op.startswith("v_"):
            self.kind = "valu"; self.w = R[0] if R else set(); self.r = set().union(*R[1:]) if len(R) > 1 else set()
            if op.startswith(("v_fmac", "v_dot2c", "v_writelane")) or "UNUSED_PRESERVE" in mods: self.r |= R[0]
        elif op.startswith("ds_read") or op.startswith("ds_bpermute") or op.startswith("ds_swizzle"):
            self.kind = "ds"; self.w = R[0]; self.r = set().union(*R[1:])
        elif op.startswith("ds_"):
            self.kind = "ds"; self.r = set().union(*R)
            if "rtn" in op: self.w = R[0]; self.r = set().union(*R[1:])
        elif op.startswith("buffer_load"):
            self.kind = "vmem"
            if "lds" in mods.split(): self.r = set().union(*R) | _regs("m0"); self.dma = True
            else: self.w = R[0]; self.r = set().union(*R[1:])
        elif op.startswith("buffer_store") or op.startswith("buffer_atomic"):
            self.kind = "vmem"; self.r = set().union(*R)
            if "x3" in op or "x4" in op: self.data = R[0]
            if op.startswith("buffer_atomic") and "sc0" in mods.split(): self.w = R[0]
        elif op.startswith("s_"):
            self.kind = "salu"
            if op.startswith(("s_cmp", "s_cbranch", "s_branch", "s_waitcnt", "s_nop", "s_barrier", "s_endpgm", "s_sleep", "s_setprio", "s_bitcmp")):
                self.r = set().union(*R) if R else set()
            else:
                self.w = R[0] if R else set(); self.r = set().union(*R[1:]) if len(R) > 1 else set()
                if "saveexec" in op: self.w |= _regs("exec")
        self.states = 1
        if op == "s_nop": self.states = int(ops[0], 0) + 1
        self.trans = op in TRANS
        self.dot = op.startswith("v_dot")

def need(p, c):
    n = 0
    vw = {x for x in p.w if x[0] in "va"}; sw = {x for x in p.w if x[0] == "s"}
    if p.kind == "valu":
        if c.kind == "mfma" and vw & c.r: n = max(n, 3 if p.dot else 2)
        if c.kind == "mfma" and sw & _regs("exec"): n = max(n, 4)
        if c.kind == "vmem" and sw & c.r: n = max(n, 5)
        if c.kind == "valu" and sw & c.r: n = max(n, 4 if c.op in ("v_readlane_b32", "v_writelane_b32") else 2)
        if c.kind == "valu" and c.op.startswith("v_cndmask") and len(c.ops) == 4 and sw & _regs(c.ops[3]): n = max(n, 2)
        if c.op in ("v_readfirstlane_b32", "v_readlane_b32") and vw & c.r: n = max(n, 1)
        if c.op.startswith("v_permlane") and vw & c.r: n = max(n, 2)
        if c.kind == "valu" and "dpp" in c.text and vw & c.r: n = max(n, 2)
        if p.trans and c.kind in ("valu",) and not c.trans and vw & c.r: n = max(n, 1)
        if p.trans and c.kind in ("vmem", "ds") and vw & c.r: n = max(n, 1)
        if p.dot:
            if c.op == p.op:
                ab = set().union(*[_regs(o) for o in c.ops[1:3]])
                if vw & ab: n = max(n, 3)
            elif vw & (c.r | c.w): n = max(n, 3)
        if ("op_sel" in p.mods or "sdwa" in p.op) and c.kind == "valu" and vw & (c.r | c.w) and not p.op.startswith("v_pk"): n = max(n, 1)
        if sw & _regs("exec") and c.op in ("v_readfirstlane_b32", "v_readlane_b32", "v_writelane_b32") : n = max(n, 4)
        if sw & _regs("exec") and c.op.startswith("v_permlane"): n = max(n, 4)
    if p.kind == "mfma":
        big = {2: 5, 4: 8, 8: 12}[p.passes]
        if c.kind == "mfma":
            if p.w & c.srcAB: n = max(n, big)
            if p.w & c.srcC and not (p.w == c.srcC and p.passes == c.passes): n = max(n, {2: 4, 4: 6, 8: 10}[p.passes])
            if p.w & c.srcC and p.passes == 2: n = max(n, 2)
            if p.w & c.w and not (p.w == c.srcC): n = max(n, {2: 4, 4: 6, 8: 10}[p.passes])
        elif c.kind in ("valu", "vmem", "ds"):
            if p.w & (c.r | c.w): n = max(n, big)
        if c.kind == "valu" and p.srcC & c.w: n = max(n, {2: 1, 4: 3, 8: 7}[p.passes])
        if c.kind in ("ds", "vmem") and p.srcC & c.w: n = max(n, {2: 1, 4: 3, 8: 7}[p.passes])
    if p.kind == "vmem" and p.data:
        if c.kind == "valu" and p.data & c.w: n = max(n, 2)
        elif p.data & c.w: n = max(n, 1)
    if p.kind == "salu" and ("s", 124) in p.w and c.kind == "vmem" and ("s", 124) in c.r: n = max(n, 1)
    return n

def check_hazards(text, verbose=True):
    ins = []; labels = {}
    for ln, l in enumerate(text.split("\n"), 1):
        t = l.split(";")[0].strip()
        if not t or t.startswith("."): continue
        if t.endswith(":"): labels[t[:-1]] = len(ins); continue
        ins.append(I(t, ln))
    problems = []
    def succ(i):
        x = ins[i]
        if x.op == "s_endpgm": return []
        if x.op == "s_branch": return [labels[x.ops[0]]]
        if x.op == "s_call_b64": return [labels[x.ops[1]]]
        if x.op == "s_setpc_b64": return [k + 1 for k, y in enumerate(ins) if y.op == "s_call_b64" and y.ops[0] == x.ops[0]]
        if x.op.startswith("s_cbranch"): return [i + 1, labels[x.ops[0]]]
        return [i + 1]
    for i, p in enumerate(ins):
        if p.kind not in ("valu", "mfma", "vmem", "salu"): continue
        if p.kind == "salu" and ("s", 124) not in p.w: continue
        if p.kind == "vmem" and not p.data: continue
        stack = [(j, 0) for j in succ(i)]
        seen = set()
        while stack:
            j, d = stack.pop()
            if j >= len(ins) or d >= 13 or (j, d) in seen: continue
            seen.add((j, d))
            c = ins[j]
            n = need(p, c)
            if n > d: problems.append((p, c, n, d))
            for k in succ(j): stack.append((k, d + c.states))
    if verbose:
        for p, c, n, d in problems[:40]:
            print(f"HAZARD need {n} have {d}: L{p.ln}: {p.text}  ->  L{c.ln}: {c.text}")
    return problems

KD = """.section .rodata,"a"
.p2align 6
.amdhsa_kernel {name}
  .amdhsa_next_free_vgpr {nvgpr}
  .amdhsa_next_free_sgpr {nsgpr}
  .amdhsa_accum_offset {accum}
  .amdhsa_group_segment_fixed_size 0
  .amdhsa_kernarg_size 80
  .amdhsa_user_sgpr_count 2
  .amdhsa_user_sgpr_kernarg_segment_ptr 1
  .amdhsa_system_sgpr_workgroup_id_x 1
  .amdhsa_float_denorm_mode_32 3
.end_amdhsa_kernel
"""
```

```python
import sys, struct
from asmlib import *

QF, KF, VF, ACTF = 0, 2 << 20, 4 << 20, 8 << 20
FLG = 20 << 20
F1 = FLG
EPOCH = FLG + 49152
STT = FLG + 65536
F2 = FLG + 131072
F3 = FLG + 262144
CSG = FLG + 524288
PROF = 24 << 20
WS_SIZE = 32 << 20
KA = dict(x=0, wqkv=8, wo=16, bx=24, wg=32, wu=40, wd=48, out=56, dbg=64, ws=72)
SZ = dict(x=2048*512*2, wqkv=512*1536*2, wo=512*512*2, wg=512*1792*2, wu=512*1792*2, wd=1792*512*2, out=2048*512*2, ws=WS_SIZE)
LOG2E = 1.4426950408889634
def f2u(f): return struct.unpack("<I", struct.pack("<f", f))[0]
def hx(f): return "0x%08x" % f2u(f)
NAME = "parallel_sum__softmax_full_mha__swiglu_ffn__prompt_kernel"
INSTR = False
OPT = dict(ost=2, wow=0, ss=3, tlb=0, pre=2, fq=3, fqr=4, pk=8, rvb=96, rvr=128, m2b=8, fa=8, i3=0, osp=1, spp=2)

WRING, HRING = 32768, 98304
SL, SCR = 40960, 32768

SX, SQ, SG, SU, SD, SO, SOUT, SWS = 4, 8, 12, 16, 20, 24, 28, 32
SCUR = 36
(sRB, sGI, sHD, sJ, sTM, sTN, sW, sTQ, sKH, sROT, sTAG, sT0, sT1, sT2, sXB, sXO, sKB, sMW, sONE, sTB, sI,
 sKO, sVO, sWSO, sHSO, sMK, sSPIN, sXCD, sLA, sLB) = range(40, 70)
sMSK = 70
sMH, sHS3 = 72, 73
sAO, sFB, sTBq, sLQ, sRAH, sM1, sM2, sSC, sHS2, sAO2, sRK, sSCR, sCSW, sCSR, sT3, sP0, sP1, sP2 = range(80, 98)
MF = "v_mfma_f32_32x32x16_bf16"
def srd(b): return f"s[{b}:{b+3}]"

STAMPS = []
SPIN = None
def stamp(A, name, dyn=0):
    if SPIN and name == SPIN:
        A.e("s_memrealtime s[74:75]"); A.e("s_waitcnt lgkmcnt(0)"); A.lgkm = []
    if not INSTR: return
    if INSTR == "min" and name not in ("start", "B2", "b0", "BB0", "it0", "drain", "p3", "end"): return
    if name not in STAMPS:
        STAMPS.append(name)
        for i in range(1, dyn): STAMPS.append(f"{name}+{i}")
    i = STAMPS.index(name) + 4
    assert i + dyn < 64
    if INSTR == "min" and name in ("B2", "b0", "BB0", "drain") :
        if name + "R" not in STAMPS: STAMPS.append(name + "R")
        A.e("s_memrealtime s[76:77]"); A.e("s_waitcnt lgkmcnt(0)")
        A.e(f"v_writelane_b32 v127, s76, {STAMPS.index(name + 'R') + 4}")
    A.e("s_memtime s[76:77]")
    if dyn: A.e(f"s_add_u32 s78, s{sI}, {i}")
    A.e("s_waitcnt lgkmcnt(0)"); A.lgkm = []
    A.e(f"v_writelane_b32 v127, s76, {i}" if not dyn else "s_mov_b32 s79, m0\ns_mov_b32 m0, s78\ns_nop 0\nv_writelane_b32 v127, s76, m0\ns_mov_b32 m0, s79")

class Side:
    def __init__(self, A): self.q = []; self.A = A
    def add(self, *xs): self.q.extend(xs)
    def pull(self, n):
        for _ in range(n):
            if not self.q: return
            x = self.q.pop(0)
            if callable(x): x()
            else: self.A.e(x)
    def flush(self): self.pull(len(self.q))

def gen():
    A = Asm()
    def run(lst):
        for x in lst: x() if callable(x) else A.e(x)
    nl = [0]
    def lab(p): nl[0] += 1; return f"L_{p}{nl[0]}"
    def retry(loads, tagregs, label):
        A.label(label + "_chk")
        for i, r in enumerate(tagregs):
            A.e(f"v_cmp_ne_u32 {'vcc' if i == 0 else 's[100:101]'}, s{sTAG}, v{r}")
            if i: A.e("s_nop 0"); A.e("s_or_b64 vcc, vcc, s[100:101]")
        A.e(f"s_cmp_eq_u32 s{sSPIN}, 0")
        A.e(f"s_cbranch_scc1 {label}_ok")
        A.e("s_nop 0")
        A.e(f"s_cbranch_vccz {label}_ok")
        A.e(f"s_sub_u32 s{sSPIN}, s{sSPIN}, 1")
        A.e("s_sleep 1")
        run(loads)
        A.e("s_waitcnt vmcnt(0)")
        A.e(f"s_branch {label}_chk")
        A.label(label + "_ok")

    A.raw(".text"); A.raw(f".globl {NAME}"); A.raw(".p2align 8"); A.raw(f".type {NAME},@function"); A.label(NAME)
    A.e("s_cmp_ge_u32 s2, 256"); A.e("s_cbranch_scc1 L_end")
    if SPIN: stamp(A, "start")
    if INSTR:
        A.e("s_memrealtime s[74:75]"); A.e("v_mov_b32 v127, 0")
        stamp(A, "start")
    items = [("x", SX), ("ws", SWS), ("wqkv", SQ), ("wg", SG), ("wu", SU), ("wd", SD), ("wo", SO), ("out", SOUT)]
    for n, b in items: A.e(f"s_load_dwordx2 s[{b}:{b+1}], s[0:1], {KA[n]}")
    RAW, T0, T1, WD0, T3, LO = 1, 2, 3, 4, 5, 6
    L, T2 = 40, 41
    A.e(f"v_lshrrev_b32 v{T0}, 6, v0"); A.e(f"v_and_b32 v{L}, 63, v0")
    A.e(f"v_readfirstlane_b32 s{sW}, v{T0}")
    A.e(f"s_lshr_b32 s{sT1}, s2, 3")
    for n, b in items:
        A.e(f"s_mov_b32 s{b+2}, {SZ[n]}"); A.e(f"s_mov_b32 s{b+3}, 0x00020000")
    A.e(f"v_lshlrev_b32 v{LO}, 4, v{L}")
    A.e(f"s_and_b32 s{sXCD}, s2, 7")
    sSUB, sGQ, sROW = sKO, sVO, sT3
    A.e(f"s_and_b32 s{sRB}, s{sXCD}, 1"); A.e(f"s_lshl_b32 s{sRB}, s{sRB}, 3")
    A.e(f"s_and_b32 s{sT0}, s{sT1}, 7"); A.e(f"s_add_u32 s{sRB}, s{sRB}, s{sT0}")
    A.e(f"s_lshr_b32 s{sSUB}, s{sT1}, 3"); A.e(f"s_lshr_b32 s{sGQ}, s{sXCD}, 1")
    A.e(f"s_lshl1_add_u32 s{sROT}, s{sSUB}, s{sRB}")
    A.e(f"s_and_b32 s{sTQ}, s{sW}, 3"); A.e(f"s_lshr_b32 s{sKH}, s{sW}, 2")
    A.e(f"s_lshl2_add_u32 s{sTB}, s{sRB}, s{sTQ}")
    A.e(f"s_mul_i32 s{sGI}, s{sGQ}, 3"); A.e(f"s_add_u32 s{sGI}, s{sGI}, s{sSUB}")
    A.e(f"s_add_u32 s{sT2}, s{sGQ}, 12")
    A.e(f"s_cmp_eq_u32 s{sSUB}, 3"); A.e(f"s_cselect_b32 s{sGI}, s{sT2}, s{sGI}")
    A.e(f"s_lshl4_add_u32 s{sROW}, s{sRB}, s{sGI}"); A.e(f"s_lshl3_add_u32 s{sROW}, s{sROW}, s{sW}")
    A.e(f"s_lshl_b32 s{sT2}, s{sROW}, 10")
    A.e(f"s_mov_b32 s{sT0}, {EPOCH}")
    ACC1, ACCA, ACCB = 16, 32, 64
    XD, QD, RQ, XRD, GRAN, CS1, CG = 64, 66, 67, 68, 72, 76, 88
    RS, NEGM = 0, 7
    RG = [8, 9]; ONES = 10; CS2 = [12, 122]; SD2 = 126
    WF = [96 + 4*i for i in range(6)]
    GD, UD = 120, 121
    X = 128
    A.e(f"s_lshl_b32 s{sXO}, s{sTB}, 15"); A.e(f"s_lshl_b32 s{sI}, s{sKH}, 14"); A.e(f"s_add_u32 s{sXO}, s{sXO}, s{sI}")
    A.e(f"s_lshl_b32 s{sXB}, s{sTQ}, 12"); A.e(f"s_lshl_b32 s{sI}, s{sKH}, 11"); A.e(f"s_add_u32 s{sXB}, s{sXB}, s{sI}")
    A.e(f"s_lshl_b32 s{sLQ}, s{sGI}, 7")
    A.e(f"s_lshl_b32 s{sI}, s{sGI}, 8"); A.e(f"s_sub_u32 s{sI}, s{sI}, {8*128}")
    A.e(f"s_cmp_ge_u32 s{sGI}, 12"); A.e(f"s_cselect_b32 s{sLA}, s{sI}, s{sLQ}")
    A.e(f"s_lshr_b32 s{sI}, s{sW}, 1"); A.e(f"s_mul_i32 s{sM1}, s{sI}, 6144")
    A.e(f"s_and_b32 s{sI}, s{sW}, 1"); A.e(f"s_lshl_b32 s{sI}, s{sI}, 10"); A.e(f"s_add_u32 s{sM1}, s{sM1}, s{sI}")
    A.e(f"s_mov_b32 s{sJ}, s{sT1}")
    A.e(f"v_lshrrev_b32 v{T0}, 3, v{L}"); A.e(f"v_lshlrev_b32 v{WD0}, 10, v{T0}")
    A.e(f"v_lshrrev_b32 v{T1}, 4, v{L}"); A.e(f"v_and_b32 v{T2}, 7, v{L}"); A.e(f"v_xor_b32 v{T1}, v{T1}, v{T2}")
    A.e(f"v_lshl_add_u32 v{XD}, v{T1}, 4, v{WD0}")
    A.e(f"v_xor_b32 v{XD+1}, 64, v{XD}")
    A.e(f"v_add_u32 v{XD+1}, 7168, v{XD+1}")
    A.e(f"v_bfe_u32 v{T1}, v{L}, 2, 1"); A.e(f"v_bfe_u32 v{T3}, v{L}, 4, 1"); A.e(f"v_xor_b32 v{T1}, v{T1}, v{T3}")
    A.e(f"v_lshlrev_b32 v{T1}, 2, v{T1}"); A.e(f"v_and_or_b32 v{T1}, v{L}, 3, v{T1}")
    A.e(f"v_mul_u32_u24 v{QD}, 3072, v{T0}"); A.e(f"v_lshl_add_u32 v{QD}, v{T1}, 4, v{QD}")
    A.e(f"v_lshl_add_u32 v{WD0}, v{T1}, 4, v{WD0}")
    A.e(f"v_mul_u32_u24 v{T0}, 3584, v{T0}")
    A.e(f"v_and_b32 v{T1}, 1, v{L}"); A.e(f"v_lshl_add_u32 v{T0}, v{T1}, 4, v{T0}")
    A.e(f"v_bfe_u32 v{T1}, v{L}, 1, 2"); A.e(f"v_xor_b32 v{T1}, v{T1}, v{T3}")
    A.e(f"v_lshl_add_u32 v{GD}, v{T1}, 5, v{T0}")
    A.e(f"v_xor_b32 v{UD}, 64, v{GD}")
    A.e("s_waitcnt lgkmcnt(0)"); stamp(A, "karg")
    A.vmem(f"buffer_load_dwordx4 v[16:19], v{LO}, {srd(SX)}, s{sT2} offen", "row")
    A.e("s_mov_b64 exec, 1")
    A.vmem(f"buffer_load_dword v20, off, {srd(SWS)}, s{sT0} sc1", "row")
    A.e("s_mov_b64 exec, -1")

    def issue1_list(typ, t):
        sb = (t & 3)*SL
        out = []
        def fx():
            A.e(f"s_add_u32 s{sT2}, s{sROT}, {t}"); A.e(f"s_and_b32 s{sT2}, s{sT2}, 7")
            A.e(f"s_lshl_b32 s{sT0}, s{sT2}, 7")
            A.e(f"s_add_u32 m0, s{sXB}, {sb + 24576}")
            A.e(f"s_add_u32 s{sT0}, s{sT0}, s{sXO}")
            A.vmem(f"buffer_load_dwordx4 v{XD}, {srd(SX)}, s{sT0} offen lds", ("s1", t))
        def fx2():
            A.e(f"s_add_u32 m0, s{sXB}, {sb + 24576}")
            A.e(f"s_lshl3_add_u32 s{sT2}, s{sT2}, s{sW}")
            A.vmem(f"buffer_load_dwordx4 v{XD+1}, {srd(SX)}, s{sT0} offen offset:1024 lds", ("s1", t))
        out += [fx, fx2]
        for u in range(3):
            def f(u=u):
                if u == 0:
                    A.e(f"s_mul_i32 s{sT1}, s{sT2}, {8*3072}")
                    A.e(f"s_add_u32 m0, s{sM1}, {sb}")
                    A.e(f"s_add_u32 s{sT0}, s{sT1}, s{sLQ}")
                elif u == 1:
                    if typ == "P": A.e(f"s_mul_i32 s{sT1}, s{sT2}, {8*3584}")
                    A.e(f"s_add_u32 m0, s{sM1}, {sb + 2048}")
                    A.e(f"s_add_u32 s{sT0}, s{sT1}, s{sLA}")
                else:
                    A.e(f"s_add_u32 m0, s{sM1}, {sb + 4096}")
                    if typ == "R": A.e(f"s_add_u32 s{sT0}, s{sT0}, 128")
                    else: A.e("s_nop 0")
                ad, sr = (QD, SQ) if (u == 0 or typ == "R") else ((GD, SG), (UD, SU))[u-1]
                A.vmem(f"buffer_load_dwordx4 v{ad}, {srd(sr)}, s{sT0} offen lds", ("s1", t))
            out.append(f)
        for f in out: f.tag = ("s1", t)
        return out
    def issue2_list(st):
        out = []
        for u in range(2):
            for hb in range(2):
                def f(u=u, hb=hb):
                    if u == 0 and hb == 0:
                        A.e(f"s_add_u32 s{sT2}, s{sRK}, {2*st}"); A.e(f"s_and_b32 s{sT2}, s{sT2}, 7")
                        A.e(f"s_lshl2_add_u32 s{sT2}, s{sT2}, s{sTQ}")
                        A.e(f"s_mul_i32 s{sT2}, s{sT2}, {16*3584}"); A.e(f"s_add_u32 s{sT2}, s{sT2}, s{sLB}")
                    A.e(f"s_add_u32 m0, s{sM2}, {st*SL + u*2048 + hb*1024}")
                    if u == 0 and hb == 0: A.e(f"s_add_u32 s{sT1}, s{sT2}, {8*3584}")
                    else: A.e("s_nop 0")
                    ad, sr = ((GD, SG), (UD, SU))[u]
                    A.vmem(f"buffer_load_dwordx4 v{ad}, {srd(sr)}, s{sT1 if hb else sT2} offen lds", ("s2", st))
                f.tag = ("s2", st)
                out.append(f)
        return out
    def typed_issue(ts, tagl):
        sv = list(A.vm)
        A.e(f"s_cmp_ge_u32 s{sGI}, 12"); A.e(f"s_cbranch_scc1 L_ti{tagl}_R")
        for t in ts: run(issue1_list("P", t))
        A.e(f"s_branch L_ti{tagl}_done")
        A.label(f"L_ti{tagl}_R"); A.vm = sv
        for t in ts: run(issue1_list("R", t))
        A.label(f"L_ti{tagl}_done")
    typed_issue([0], "a")
    stamp(A, "i0")
    A.e(f"s_and_b32 s{sT0}, s{sJ}, 7")
    A.e(f"s_and_b32 s{sTM}, s{sXCD}, 3"); A.e(f"s_lshl3_add_u32 s{sTM}, s{sTM}, s{sT0}")
    A.e(f"s_lshr_b32 s{sTN}, s{sXCD}, 2"); A.e(f"s_lshl2_add_u32 s{sTN}, s{sTN}, s{sSUB}")
    A.e(f"s_and_b32 s{sT0}, s{sJ}, 3"); A.e(f"s_lshl2_add_u32 s{sHD}, s{sXCD}, s{sT0}")
    A.e(f"s_lshr_b32 s{sJ}, s{sJ}, 2")
    A.e(f"s_add_u32 s{sLB}, s{sLQ}, {12*128}")
    A.e(f"s_lshl_b32 s{sM2}, s{sW}, 12")
    A.e(f"s_add_u32 s{sRK}, s{sROT}, s{sKH}")
    A.e(f"s_mov_b32 s{sSPIN}, 0x40000")
    A.e(f"s_mov_b32 s{sONE}, 0x3f803f80")
    A.e(f"s_mov_b32 s{sMSK}, 0xffff"); A.e(f"s_mov_b32 s{sMSK+1}, 0xffff")
    A.e(f"s_mov_b32 s{sI}, {hx(-0.25)}"); A.e(f"s_mov_b32 s{sSC}, {hx(-1/LOG2E)}")
    A.e(f"s_cmp_lt_u32 s{sGI}, 8"); A.e(f"s_cselect_b32 s{sSC}, s{sI}, s{sSC}")
    A.e(f"s_lshl_b32 s{sT0}, s{sTB}, 10"); A.e(f"s_lshl_b32 s{sI}, s{sKH}, 17"); A.e(f"s_add_u32 s{sT0}, s{sT0}, s{sI}")
    A.e(f"s_lshl_b32 s{sHSO}, s{sGI}, 18"); A.e(f"s_add_u32 s{sHSO}, s{sHSO}, s{sT0}")
    A.e(f"s_lshl_b32 s{sT1}, s{sLA}, 11"); A.e(f"s_add_u32 s{sT1}, s{sT1}, s{sT0}")
    A.e(f"s_mul_i32 s{sT0}, s{sTB}, {144*1024}"); A.e(f"s_lshl_b32 s{sI}, s{sKH}, 11"); A.e(f"s_add_u32 s{sT0}, s{sT0}, s{sI}")
    A.e(f"s_lshl_b32 s{sI}, s{sLQ}, 5"); A.e(f"s_add_u32 s{sT0}, s{sT0}, s{sI}"); A.e(f"s_add_u32 s{sHS2}, s{sT0}, {ACTF}")
    A.e(f"s_add_u32 s{sHS3}, s{sHS2}, {48*1024}")
    A.e(f"s_cmp_ge_u32 s{sGI}, 12"); A.e(f"s_cselect_b32 s{sHS2}, s{sT1}, s{sHS2}")
    A.e(f"s_lshl1_add_u32 s{sI}, s{sGI}, s{sKH}"); A.e(f"s_lshl_b32 s{sI}, s{sI}, 13"); A.e(f"s_add_u32 s{sI}, s{sI}, {CSG}")
    A.e(f"s_lshl_b32 s{sT0}, s{sRB}, 9"); A.e(f"s_add_u32 s{sCSW}, s{sI}, s{sT0}")
    A.e(f"s_and_b32 s{sT0}, s{sT0}, 4096"); A.e(f"s_add_u32 s{sCSR}, s{sI}, s{sT0}")
    A.e(f"s_lshl3_add_u32 s{sTBq}, s{sJ}, s{sW}")
    A.e(f"s_lshl_b32 s{sKB}, s{sHD}, 16"); A.e(f"s_lshl_b32 s{sVO}, s{sTBq}, 10"); A.e(f"s_add_u32 s{sVO}, s{sVO}, s{sKB}")
    A.e(f"s_add_u32 s{sKB}, s{sKB}, {KF}")
    A.e(f"s_mul_i32 s{sI}, s{sKH}, {VF - KF - 2048}"); A.e(f"s_add_u32 s{sKO}, s{sKB}, s{sI}"); A.e(f"s_lshl_b32 s{sI}, s{sTQ}, 10")
    A.e(f"s_add_u32 s{sKO}, s{sKO}, s{sI}"); A.e(f"s_add_u32 s{sKO}, s{sKO}, 1024")
    A.e(f"s_lshl_b32 s{sMK}, s{sW}, 10")
    A.e(f"s_lshl_b32 s{sMW}, s{sW}, 11"); A.e(f"s_add_u32 s{sMH}, s{sMW}, {HRING}"); A.e(f"s_add_u32 s{sMW}, s{sMW}, {WRING}")
    A.e(f"s_lshl_b32 s{sWSO}, s{sW}, 14"); A.e(f"s_lshl_b32 s{sI}, s{sTN}, 7"); A.e(f"s_add_u32 s{sWSO}, s{sWSO}, s{sI}")
    A.e(f"s_mul_i32 s{sAO}, s{sTM}, {2*144*1024}"); A.e(f"s_add_u32 s{sAO}, s{sAO}, s{sMK}")
    A.e(f"s_add_u32 s{sAO}, s{sAO}, {ACTF}"); A.e(f"s_add_u32 s{sAO2}, s{sAO}, {144*1024 - 1024}")
    A.e(f"s_lshl_b32 s{sT1}, s{sKH}, 13"); A.e(f"s_bfe_u32 s{sI}, s{sW}, 0x10001"); A.e(f"s_lshl_b32 s{sI}, s{sI}, 10")
    A.e(f"s_add_u32 s{sRAH}, s{sT1}, s{sI}"); A.e(f"s_add_u32 s{sRAH}, s{sRAH}, {HRING}")
    for i in range(4): A.e(f"s_mov_b32 s{SCUR+i}, s{SD+i}")
    A.e(f"s_lshl_b32 s{sP0}, s{sXCD}, 11"); A.e(f"s_add_u32 s{sP0}, s{sP0}, {F1}"); A.e(f"s_add_u32 s{sP1}, s{sP0}, {8*2048}")
    A.e(f"s_lshr_b32 s{sP2}, s{sXCD}, 1"); A.e(f"s_lshl_b32 s{sP2}, s{sP2}, 11"); A.e(f"s_add_u32 s{sP2}, s{sP2}, {F1 + 12*2048}")
    A.e(f"v_and_b32 v{T0}, 31, v{L}")
    A.e(f"v_bfe_u32 v{T1}, v{L}, 1, 3")
    A.e(f"v_lshrrev_b32 v{T2}, 5, v{L}")
    A.e(f"v_xor_b32 v{T1}, v{T1}, v{T2}")
    A.e(f"s_lshl_b32 s{sT0}, s{sTQ}, 12"); A.e(f"s_add_u32 s{sT0}, s{sT0}, 24576")
    A.e(f"v_lshlrev_b32 v{T0}, 7, v{T0}"); A.e(f"v_add_u32 v{T0}, s{sT0}, v{T0}")
    A.e(f"v_lshl_add_u32 v{XRD}, v{T1}, 4, v{T0}")
    for kk in range(1, 4): A.e(f"v_xor_b32 v{XRD+kk}, {32*kk}, v{XRD}")
    A.e(f"v_bfe_u32 v{T0}, v{L}, 2, 2")
    A.e(f"v_and_b32 v42, 3, v{L}"); A.e(f"v_lshlrev_b32 v42, 3, v42"); A.e(f"v_lshl_add_u32 v42, v{T0}, 7, v42")
    A.e(f"v_lshl_add_u32 v{T1}, v{T2}, 10, v42")
    A.e(f"v_lshrrev_b32 v{T0}, 1, v{T0}")
    A.e(f"v_xor_b32 v{RQ}, s{sKH}, v{T0}"); A.e(f"v_lshl_add_u32 v{RQ}, v{RQ}, 6, v{T1}")
    A.e(f"v_lshl_add_u32 v{RQ}, v{T3}, 5, v{RQ}")
    A.e(f"s_and_b32 s{sI}, s{sW}, 1"); A.e(f"s_add_u32 s{sT1}, s{sT1}, {WRING}")
    A.e(f"v_xor_b32 v{RAW}, s{sI}, v{T0}"); A.e(f"v_lshl_add_u32 v{RAW}, v{RAW}, 6, v42")
    A.e(f"v_lshl_add_u32 v{RAW}, v{T2}, 9, v{RAW}"); A.e(f"v_lshl_add_u32 v{RAW}, v{T3}, 5, v{RAW}"); A.e(f"v_add_u32 v{RAW}, s{sT1}, v{RAW}")
    A.e(f"v_lshl_add_u32 v{T1}, v{T3}, 11, v{T1}")
    A.e(f"v_lshl_add_u32 v{T0}, v{T3}, 1, v{T0}")
    A.e(f"s_lshl_b32 s{sT0}, s{sKH}, 1")
    A.e(f"v_xor_b32 v{T0}, s{sT0}, v{T0}")
    A.e(f"v_lshl_add_u32 v{RG[0]}, v{T0}, 5, v{T1}")
    A.e(f"v_xor_b32 v{RG[1]}, 32, v{RG[0]}")
    A.e(f"v_mov_b32 v{ONES}, s{sONE}"); A.e(f"v_mov_b32 v{ONES+1}, s{sONE}")
    A.e(f"v_and_b32 v{T0}, 0x2ff, v{LO}"); A.e(f"v_lshl_add_u32 v{T0}, v{T3}, 16, v{T0}")
    A.e(f"s_lshl_b32 s{sI}, s{sW}, 7"); A.e(f"s_add_u32 s{sI}, s{sI}, {SCR + 6144}")
    A.e(f"v_lshl_add_u32 v{T3}, v{T2}, 4, s{sI}")
    A.e(f"v_and_b32 v93, 31, v{L}"); A.e(f"v_lshlrev_b32 v94, 4, v93"); A.e(f"v_lshl_add_u32 v93, v93, 2, s{sI}")
    A.e("v_mov_b32 v21, 0"); A.e("v_mov_b32 v22, 0")
    A.wait(vm=["row"])
    stamp(A, "row")
    for i in range(4):
        A.e(f"v_dot2c_f32_bf16 v21, s{sONE}, v{16+i}"); A.e(f"v_dot2c_f32_bf16 v22, v{16+i}, v{16+i}")
    A.e(f"v_readfirstlane_b32 s{sTAG}, v20")
    A.e("s_nop 1")
    for sh in (1, 2, 4, 8):
        A.e(f"v_add_f32_dpp v21, v21, v21 row_ror:{sh} row_mask:0xf bank_mask:0xf")
        A.e(f"v_add_f32_dpp v22, v22, v22 row_ror:{sh} row_mask:0xf bank_mask:0xf")
        A.e("s_nop 0")
    A.e(f"s_mul_i32 s{sTAG}, s{sTAG}, 1664525"); A.e(f"s_add_u32 s{sTAG}, s{sTAG}, 1013904223")
    for op in ("v_permlane16_swap_b32", "v_permlane32_swap_b32"):
        A.e("v_mov_b32 v23, v21"); A.e("v_mov_b32 v24, v22"); A.e("s_nop 1")
        A.e(f"{op} v21, v23"); A.e(f"{op} v22, v24"); A.e("s_nop 0")
        A.e("v_add_f32 v21, v21, v23"); A.e("v_add_f32 v22, v22, v24")
    A.e(f"v_mul_f32 v21, {hx(1/512)}, v21"); A.e(f"v_mul_f32 v22, {hx(1/512)}, v22")
    A.e("v_fma_f32 v22, -v21, v21, v22"); A.e("v_max_f32 v22, 0, v22")
    A.e("v_cvt_pk_bf16_f32 v16, -v21, -v21")
    A.e("v_cvt_pk_bf16_f32 v22, v22, v22"); A.e("v_lshlrev_b32 v22, 16, v22")
    A.e(f"v_add_f32 v22, {hx(1e-5)}, v22")
    A.e("v_cvt_pk_bf16_f32 v22, v22, v22"); A.e("v_lshlrev_b32 v22, 16, v22")
    A.e("v_sqrt_f32 v22, v22"); A.e(f"v_mov_b32 v19, s{sTAG}")
    A.e("v_cvt_pk_bf16_f32 v22, v22, v22"); A.e("v_lshlrev_b32 v22, 16, v22")
    A.e("v_rcp_f32 v17, v22"); A.e("v_mul_f32 v18, v22, v22")
    A.e(f"s_lshl_b32 s{sT0}, s{sROW}, 4"); A.e(f"s_add_u32 s{sT0}, s{sT0}, {STT}")
    A.e("s_mov_b64 exec, 1")
    A.e(f"buffer_store_dwordx4 v[16:19], off, {srd(SWS)}, s{sT0} sc1")
    A.e("s_mov_b64 exec, -1")
    if OPT["pre"] > 1: typed_issue(list(range(1, OPT["pre"])), "b")
    A.wait(vm=[("s1", 0)])
    A.e("s_barrier")
    stamp(A, "B2")
    A.e(f"s_cmp_ge_u32 s{sGI}, 12"); A.e("s_cbranch_scc1 L_R")
    vm0, lg0 = list(A.vm), list(A.lgkm)

    Q = 24
    RAH, WD1, VE, PA = 122, 123, 124, 125
    PT = [16, 17, 18]
    K01 = [224, 228]
    VFR = [[32 + 8*i, 36 + 8*i] for i in range(4)]
    KFR = [96 + 4*i for i in range(4)]
    P = [176, 184]
    S = [192, 208]; O = 224; C = 240
    DACC = 128
    DW = [144 + 4*i for i in range(4)]; HF = [160 + 4*i for i in range(4)]
    def silu_list(acc, E, H, soff_s, imm, tag):
        o = []
        for i in range(8): o.append(f"v_mul_f32 v{E+i}, v{RS}, v{acc+i}")
        for i in range(8): o.append(f"v_exp_f32 v{E+i}, v{E+i}")
        for i in range(8): o.append(f"v_mul_f32 v{acc+i}, v{acc+i}, v{acc+8+i}")
        for i in range(8): o.append(f"v_fma_f32 v{E+i}, v{E+i}, v{SD2}, v{SD2}")
        for i in range(8): o.append(f"v_rcp_f32 v{E+i}, v{E+i}")
        for i in range(8): o.append(f"v_mul_f32 v{acc+i}, v{acc+i}, v{E+i}")
        for i in range(4): o.append(f"v_cvt_pk_bf16_f32 v{H+i}, v{acc+2*i}, v{acc+2*i+1}")
        o.append(lambda: A.vmem(f"buffer_store_dwordx4 {v(H,4)}, v{LO}, {srd(SWS)}, s{soff_s} offen offset:{imm} sc1", tag))
        return o
    def flag_store(soff):
        A.e("s_mov_b64 exec, 1")
        A.e(f"buffer_store_dword v{VE}, off, {srd(SWS)}, s{soff} sc1")
        A.e("s_mov_b64 exec, -1")
    def wg_flag(base, major, minor, wave=0):
        lb = lab("fl")
        A.e(f"s_cmp_lg_u32 s{sW}, {wave}"); A.e(f"s_cbranch_scc1 {lb}")
        A.e(f"s_lshl4_add_u32 s{sT3}, s{major}, s{minor}"); A.e(f"s_lshl_b32 s{sT3}, s{sT3}, 7"); A.e(f"s_add_u32 s{sT3}, s{sT3}, {base}")
        flag_store(sT3)
        A.label(lb)
    def floads(soffs): return [f"buffer_load_dword v{PT[i]}, v{PA}, {srd(SWS)}, s{so} offen sc1" for i, so in enumerate(soffs)]
    mark = [0]
    def one_load(wave, soffs, mask):
        lb = lab("fl")
        A.e(f"s_cmp_lg_u32 s{sW}, {wave}"); A.e(f"s_cbranch_scc1 {lb}")
        A.e(f"s_mov_b64 exec, {mask}"); run(floads(soffs)); A.e("s_mov_b64 exec, -1")
        A.label(lb)
        mark[0] = A.nvm
    def one_check(wave, soffs, mask):
        cnt = A.nvm - mark[0]
        lb = lab("ck")
        A.e(f"s_cmp_lg_u32 s{sW}, {wave}"); A.e(f"s_cbranch_scc1 {lb}")
        A.e("s_setprio 3")
        A.e(f"s_mov_b64 exec, {mask}")
        A.e(f"s_waitcnt vmcnt({cnt})")
        retry(floads(soffs), PT[:len(soffs)], lb + "r")
        A.e("s_mov_b64 exec, -1")
        A.e("s_setprio 0")
        A.label(lb)
    def kv_issue(slot, tag, first=False):
        so = sKO
        if first:
            A.e(f"s_mul_i32 s{sT0}, s{sKH}, {VF - KF}"); A.e(f"s_add_u32 s{sT0}, s{sT0}, s{sKB}"); A.e(f"s_max_u32 s{sT0}, s{sT0}, s{sKO}")
            so = sT0
        A.e(f"s_add_u32 m0, s{sMK}, {slot*8192}")
        A.e("s_nop 0")
        A.vmem(f"buffer_load_dwordx4 v{LO}, {srd(SWS)}, s{so} offen sc1 lds", tag)
        A.e(f"s_add_u32 s{sKO}, s{sKO}, 4096")
    def tiny(acc, sp, first): A.e(f"v_mfma_f32_4x4x4_16b_bf16 {v(acc,4)}, {v(ONES,2)}, {v(sp,2)}, {'0' if first else v(acc,4)}")
    def cs_publish(accs, G, imm):
        lb = lab("cp")
        A.e(f"s_cmp_lg_u32 s{sTQ}, 0"); A.e(f"s_cbranch_scc1 {lb}")
        for a in accs: A.e(f"v_permlane32_swap_b32 v{a}, v{a+1}")
        A.e(f"v_mov_b32 v{G+3}, s{sTAG}")
        for i, a in enumerate(accs): A.e(f"v_add_f32 v{G+i}, v{a}, v{a+1}")
        A.e(f"s_add_u32 s{sT3}, s{sCSW}, {imm}")
        A.e("s_mov_b32 exec_hi, 0")
        A.e(f"buffer_store_dwordx4 {v(G,4)}, v{LO}, {srd(SWS)}, s{sT3} offen sc1")
        A.e("s_mov_b64 exec, -1")
        A.label(lb)
    def cs_loads(G): return [f"buffer_load_dwordx4 {v(G+4*q,4)}, v{LO}, {srd(SWS)}, s{sCSR} offen offset:{1024*q} sc1" for q in range(4)]
    def cs_build(G, n):
        o = []
        for u in range(n): o += [f"v_add_f32 v{G+u}, v{G+u}, v{G+4+u}", f"v_add_f32 v{G+8+u}, v{G+8+u}, v{G+12+u}"]
        for u in range(n): o.append(f"v_add_f32 v{G+u}, v{G+u}, v{G+8+u}")
        for u in range(n): o.append(f"v_cvt_pk_bf16_f32 v{G+4+u}, v{G+u}, v{G+u}")
        for u in range(n): o.append(f"v_lshlrev_b32 v{G+4+u}, 16, v{G+4+u}")
        for u in range(n): o.append(f"v_sub_f32 v{G+4+u}, v{G+u}, v{G+4+u}")
        for u in range(n): o.append(f"v_cvt_pk_bf16_f32 v{G+u}, v{G+u}, v{G+4+u}")
        for u in range(n, 4): o.append(f"v_mov_b32 v{G+u}, 0")
        pat = "00m0000m00"
        for i, ch in enumerate(pat):
            if n == 2 and i < 2: continue
            o.append(f"v_mov_b32 v{G+4+i}, {'v%d' % NEGM if ch == 'm' else 0}")
        return o, [G + 6, G + 10, G + 4]

    def passes(typ):
        A.vm, A.lgkm = list(vm0), list(lg0)
        sd = Side(A); dq = Side(A); gq = Side(A)
        def wvm(tag):
            assert not any(getattr(f, "tag", None) == tag for f in dq.q), tag
            assert tag in A.issued, tag
            A.wait(vm=[tag])
        cur = [0]
        def rd1(n, slot, us=(0, 1, 2)):
            t, kk = n >> 2, n & 3
            assert t == cur[0]
            for u in us:
                for p in range(2):
                    if u == 0 or typ == "R": rc, off = RQ, kk*6144 + u*2048 + p*512
                    else: rc, off = RG[u-1], kk*6144 + 2048 + p*512
                    A.lds(f"ds_read_b64_tr_b16 {v(WF[3*slot+u]+2*p,2)}, v{rc} offset:{off}", "w")
        def rd2(n, slot, ts=(0, 1)):
            if n >= 32: return
            st, kk = n >> 3, n & 7
            for t in ts:
                for p in range(2):
                    off = (8 + st - cur[0])*SL + kk*4096 + p*512
                    assert 0 <= off < 65536
                    A.lds(f"ds_read_b64_tr_b16 {v(WF[2*slot+t]+2*p,2)}, v{RG[t]} offset:{off}", "w")
        def adv(regs, g):
            d = SL if (g & 3) != 3 else (-3*SL) & 0xffffffff
            for r in regs: A.e(f"v_add_u32 v{r}, {hex(d)}, v{r}")
        rd1(0, 0); rd1(1, 1)
        A.e(f"s_cmp_lg_u32 s{sKH}, 1"); A.e(f"s_cbranch_scc1 L_off_{typ}")
        A.e("s_barrier")
        A.label(f"L_off_{typ}")
        for t in range(OPT["pre"], 3): dq.add(*issue1_list(typ, t))
        gl = [f"buffer_load_dwordx4 {v(GRAN,4)}, v94, {srd(SWS)}, s{sT3} offen sc1"] + cs_loads(CS1)
        cb1, BX1 = cs_build(CS1, 3)
        for h in range(16):
            t, par = h >> 1, h & 1
            if par == 0:
                stamp(A, f"a{t}")
                if t + 3 < 8: dq.add(*issue1_list(typ, t + 3))
                else: dq.add(*issue2_list(t - 5))
            for i in range(2):
                A.lds(f"ds_read_b128 {v(X+4*(2*h+i),4)}, v{XRD+2*par+i}", "x")
            if par:
                adv(([RQ] if t < 7 else []) + RG, t); cur[0] += 1
                if t < 7: adv(range(XRD, XRD + 4), t)
            if h == 2: cs_publish([CS1, CS1 + 4, CS1 + 8], CG, 0)
            if h == 3 and OPT["tlb"]:
                lb = lab("tl")
                A.e(f"s_cmp_lg_u32 s{sW}, 1"); A.e(f"s_cbranch_scc1 {lb}")
                A.e(f"v_lshlrev_b32 v95, 17, v{LO}")
                A.e("s_mov_b64 exec, 0x1ff")
                A.e(f"buffer_load_dword v92, v95, {srd(SWS)}, 0 offen sc1")
                A.e("s_mov_b64 exec, 1")
                for sr in (SD, SO, SOUT): A.e(f"buffer_load_dword v92, off, {srd(sr)}, 0")
                A.e("s_mov_b64 exec, -1")
                A.label(lb)
            dq.pull(5 if len(dq.q) > 6 else (3 if t < 5 else 2))
            if h == 7: A.e(f"s_lshl_b32 s{sT3}, s{sTB}, 9"); A.e(f"s_add_u32 s{sT3}, s{sT3}, {STT}")
            if h in (7, 9, 10, 11, 12): A.vmem(gl[(7, 9, 10, 11, 12).index(h)], "gran")
            if h == 14:
                A.wait(vm=["gran"])
                retry(gl, [GRAN + 3] + [CS1 + 4*q + 3 for q in range(4)], f"L_gr_{typ}")
                A.e(f"v_mul_f32 v{RS}, {hx(-LOG2E)}, v{GRAN+1}"); A.e(f"v_mov_b32 v{SD2}, v{GRAN+2}"); A.e(f"v_mov_b32 v{NEGM}, v{GRAN}")
                if typ == "R": A.lds(f"ds_write_b32 v93, v{GRAN+1}", "x")
                gq.add(*cb1)
            if h == 15: gq.flush()
            A.wait(lgkm="all")
            A.e("s_barrier")
            if h < 2:
                for i in range(2):
                    for p in range(2):
                        for u in range(3): tiny(CS1 + 4*u, WF[3*i+u] + 2*p, h == 0 and i == 0 and p == 0)
            if h == 15:
                for u in range(3):
                    acc = v((ACC1, ACCA, ACCA + 16)[u], 16)
                    if u and typ == "R": A.e(f"{MF} {acc}, {v(BX1[u],4)}, {v(CS1,4)}, {acc}")
                    else: A.e(f"{MF} {acc}, {v(CS1,4)}, {v(BX1[u],4)}, {acc}")
            for i in range(2):
                n = 2*h + i
                x = X + 4*n
                for u in range(3):
                    acc = v((ACC1, ACCA, ACCA + 16)[u], 16)
                    c = "0" if n == 0 else acc
                    w = v(WF[3*i+u], 4)
                    last = (i == 1 and u == 2)
                    if last and par == 0: wvm(("s1", t + 1) if t < 7 else ("s2", 0))
                    if u and typ == "R": A.e(f"{MF} {acc}, {v(x,4)}, {w}, {c}")
                    else: A.e(f"{MF} {acc}, {w}, {v(x,4)}, {c}")
                    if last: A.e("s_barrier")
                    if h < 15:
                        rd1(n + 2, i, (u,))
                        if not last: gq.pull(3)
                    else:
                        fi = 3*i + u
                        rd2(fi >> 1, fi >> 1, (fi & 1,))
        sd.add(f"v_mul_f32 v{T1}, s{sSC}, v{RS}", "s_nop 3")
        for i in range(16): sd.add(f"v_mul_f32 v{ACC1+i}, v{T1}, v{ACC1+i}")
        for i in range(8): sd.add(f"v_cvt_pk_bf16_f32 v{ACC1+i}, v{ACC1+2*i}, v{ACC1+2*i+1}")
        def st(txt, tag, pre=None):
            def f():
                if pre: A.e(pre)
                A.vmem(txt, tag)
            f.store = tag
            return f
        DRAIN = lambda: None
        sd.q.insert(len(sd.q) - 4, st(f"buffer_store_dwordx4 {v(ACC1,4)}, v{LO}, {srd(SWS)}, s{sHSO} offen sc1", "qk"))
        sd.add(st(f"buffer_store_dwordx4 {v(ACC1+4,4)}, v{LO}, {srd(SWS)}, s{sHSO} offen sc1", "qk", f"s_add_u32 s{sHSO}, s{sHSO}, 65536"))
        RVR = [X, X + 4, ACC1 + 8, ACC1 + 12]
        GATE = lambda: None
        sd.add(GATE)
        if typ == "R":
            def rvread():
                for q in range(4): A.lds(f"ds_read_b128 {v(RVR[q],4)}, v{T3} offset:{32*q}", "rv")
            sd.add(lambda: A.wait(lgkm=["rv"]))
            for t in range(2):
                a = ACCA + 16*t
                for f in range(2):
                    for i in range(8): sd.add(f"v_mul_f32 v{a+8*f+i}, v{RVR[2*f+(i>>2)]+(i&3)}, v{a+8*f+i}")
                    for i in range(4): sd.add(f"v_cvt_pk_bf16_f32 v{a+8*f+i}, v{a+8*f+2*i}, v{a+8*f+2*i+1}")
                    sd.add(st(f"buffer_store_dwordx4 {v(a+8*f,4)}, v{T0}, {srd(SWS)}, s{sHS2} offen offset:{256*f} sc1", "qk",
                              f"s_add_u32 s{sHS2}, s{sHS2}, {4*65536}" if (t == 1 and f == 0) else None))
        else:
            for t in range(2):
                sl_ = silu_list(ACCA + 16*t, X, ACCA + 16*t + 8, sHS2, t*1024, "ha")
                sl_[-1].store = "ha"
                sd.add(*sl_)
        sd.add(DRAIN, "s_nop 1")
        V0 = VFR[0][0]
        sd.add(f"v_and_b32 v{V0}, {27*16}, v{LO}", f"v_cmp_eq_u32 vcc, 0x100, v{V0}\ns_nop 1\nv_cndmask_b32 v{V0}, 0, v{ONES}, vcc")
        for i in range(1, 32): sd.add(f"v_mov_b32 v{V0+i}, v{V0}")
        def cost(x): return 8 if (isinstance(x, str) and x.startswith(("v_exp", "v_rcp"))) else (16 if callable(x) else 4)
        curblk = [0]
        stq = []
        def pullc(budget, novm=False):
            while sd.q and budget > 0:
                x = sd.q[0]
                if x is GATE:
                    if curblk[0] < 1: return
                    sd.q.pop(0); continue
                if x is DRAIN:
                    if stq: return
                    sd.q.pop(0); continue
                if getattr(x, "store", False):
                    stq.append(sd.q.pop(0)); continue
                if novm and callable(x): return
                budget -= cost(x); sd.pull(1)
        def pullst(n):
            for _ in range(n):
                if stq: stq.pop(0)()
        def pending(tag): return any(getattr(x, "store", None) == tag for x in sd.q + stq)
        CG2 = X + 12
        G2 = X + 16
        gl2 = cs_loads(G2)
        cb2, BX2 = cs_build(G2, 2)
        fq = OPT["fq"] if typ == "P" else OPT["fqr"]
        for blk in range(11):
            curblk[0] = blk
            ks = list(range(3*blk, min(3*blk + 3, 32)))
            stamp(A, f"b{blk}")
            if blk == 1 and typ == "R":
                assert sd.q[0] is GATE
                rvread()
            if blk == 2:
                cs_publish(CS2, CG2, 262144)
                A.e(f"s_add_u32 s{sCSR}, s{sCSR}, 262144")
                A.e(f"v_mov_b32 v{VE}, s{sTAG}"); A.e(f"v_lshlrev_b32 v{PA}, 3, v{LO}")
                A.e(f"v_add_u32 v{RAH}, s{sRAH}, v{LO}"); A.e(f"v_add_u32 v{WD1}, {8192-1024}, v{WD0}")
            if blk == fq + 1: wg_flag(F1, sGI, sRB)
            if blk == OPT["fa"] + 1 and typ == "P": wg_flag(F2, sRB, sGI)
            if blk == OPT["i3"]: dq.add(*issue2_list(3))
            if blk == 6:
                for x in gl2: dq.add(lambda x=x: A.vmem(x, "gran2"))
            if 3*blk + 3 < 32 and 8 + ((3*blk + 3) >> 3) > cur[0]:
                adv(RG, cur[0]); cur[0] += 1
            if blk == OPT["pk"] + 1:
                A.vmem(f"buffer_load_dwordx4 {v(Q,4)}, v{LO}, {srd(SWS)}, s{sVO} offen sc1", "q")
                kv_issue(0, ("kv", 0), True)
                dq.add(lambda: A.vmem(f"buffer_load_dwordx4 {v(K01[0],4)}, v{LO}, {srd(SWS)}, s{sKB} offen sc1", "q"))
                dq.add(lambda: None)
                dq.add(lambda: A.vmem(f"buffer_load_dwordx4 {v(K01[1],4)}, v{LO}, {srd(SWS)}, s{sKB} offen offset:1024 sc1", "q"))
                dq.add(lambda: kv_issue(1, ("kv", 1)))
            rvb = OPT["rvb"] if typ == "P" else OPT["rvr"]
            if blk == 0: rvb = 128
            early = len(stq) > 0
            if early: pullst(1)
            else: dq.pull(1)
            pullc(rvb // 2)
            dq.pull(1)
            pullc(rvb // 2)
            if not early or OPT["spp"] > 1: pullst(1)
            if blk == fq:
                assert not pending("qk")
                A.wait(vm=["qk"])
            if blk == OPT["fa"] and typ == "P":
                assert not pending("ha")
                A.wait(vm=["ha"])
            if blk == 9:
                A.wait(vm=["gran2"])
                retry(gl2, [G2 + 4*q + 3 for q in range(4)], f"L_g2_{typ}")
                sd.add(*cb2)
            if blk == OPT["pk"] - 1: one_load(0, [sP0, sP1, sP2], "0xffff")
            if blk == OPT["pk"]:
                stamp(A, "bp1")
                one_check(0, [sP0, sP1, sP2], "0xffff")
                stamp(A, "p1")
            if blk == 10:
                pullc(10000)
                assert not stq
            A.wait(lgkm="all")
            A.e("s_barrier")
            if blk < 2:
                for i in range(3 if blk == 0 else 1):
                    for p in range(2):
                        for t in range(2): tiny(CS2[t], WF[2*i+t] + 2*p, blk == 0 and i == 0 and p == 0)
                        A.e("s_nop 0")
            if blk == 10:
                for t in range(2): A.e(f"{MF} {v(ACCB+16*t,16)}, {v(G2,4)}, {v(BX2[t],4)}, {v(ACCB+16*t,16)}")
            bst = {0: 1, 3: 2, 6: 3}.get(blk)
            for i, n in enumerate(ks):
                x = X + 4*n
                for t in range(2):
                    acc = v(ACCB + 16*t, 16)
                    c = "0" if n == 0 else acc
                    last = (i == len(ks) - 1 and t == 1)
                    if last and bst: wvm(("s2", bst))
                    if last and blk == 10: A.wait(vm=[("kv", 0)])
                    A.e(f"{MF} {acc}, {v(WF[2*i+t],4)}, {v(x,4)}, {c}")
                    if last: A.e("s_barrier")
                    rd2(n + 3, i, (t,))
                    if not last: pullc(OPT["m2b"], True)
        dq.flush()
        assert not sd.q
        stamp(A, "p2end")
        endvm.append(list(A.vm))
        if typ == "P": A.e("s_branch L_A_done")
    endvm = []
    passes("P")
    A.label("L_R"); passes("R")
    assert all(x == endvm[0] for x in endvm), endvm
    A.label("L_A_done")
    if OPT["pk"] == 10:
        A.vmem(f"buffer_load_dwordx4 {v(Q,4)}, v{LO}, {srd(SWS)}, s{sVO} offen sc1", "q")
        A.vmem(f"buffer_load_dwordx4 {v(K01[0],4)}, v{LO}, {srd(SWS)}, s{sKB} offen sc1", "q")
        A.vmem(f"buffer_load_dwordx4 {v(K01[1],4)}, v{LO}, {srd(SWS)}, s{sKB} offen offset:1024 sc1", "q")
        A.e(f"s_lshl_b32 s{sT1}, s{sTQ}, 10")
        A.e(f"s_add_u32 s{sT0}, s{sKB}, s{sT1}")
        A.e(f"s_cmp_eq_u32 s{sKH}, 1"); A.e("s_cbranch_scc1 L_nokv0")
        A.e(f"s_sub_u32 m0, s{sT1}, 0"); A.e(f"s_add_u32 s{sT2}, s{sT0}, 1024")
        A.e(f"buffer_load_dwordx4 v{LO}, {srd(SWS)}, s{sT2} offen sc1 lds")
        A.e(f"s_add_u32 s{sT0}, s{sT0}, {VF - KF - 1024}"); A.e(f"s_add_u32 s{sT2}, s{sKB}, {VF - KF}"); A.e(f"s_max_u32 s{sT0}, s{sT0}, s{sT2}")
        A.e(f"s_add_u32 m0, s{sT1}, 4096"); A.e("s_nop 0")
        A.e(f"buffer_load_dwordx4 v{LO}, {srd(SWS)}, s{sT0} offen sc1 lds")
        A.label("L_nokv0")
        A.e(f"s_add_u32 s{sKO}, s{sKO}, 4096")
        kv_issue(1, ("kv", 1))
    A.e(f"s_lshr_b32 s{sP0}, s{sTM}, 1"); A.e(f"s_lshl_b32 s{sP0}, s{sP0}, 11"); A.e(f"s_add_u32 s{sP0}, s{sP0}, {F2}"); A.e(f"s_add_u32 s{sP1}, s{sP0}, 32768")
    if OPT["ss"] == 3: one_load(4, [sP0], "0xfff")
    for i in range(4): A.e(f"v_mov_b32 v{96+i}, 0")
    A.e("s_nop 2")
    Z = v(96, 4)
    XRES, XA = 28, 19
    sOO = sXO
    A.e(f"s_lshl_b32 s{sT2}, s{sW}, 13")
    A.e(f"v_and_b32 v{T0}, 0x380, v{LO}"); A.e(f"v_and_b32 v{XA}, 0x70, v{LO}")
    A.e(f"v_lshl_add_u32 v{XA}, v{T0}, 3, v{XA}"); A.e(f"v_add_u32 v{XA}, s{sT2}, v{XA}")
    A.e(f"s_lshl_b32 s{sOO}, s{sTM}, 16"); A.e(f"s_lshl_b32 s{sT0}, s{sTN}, 7"); A.e(f"s_add_u32 s{sOO}, s{sOO}, s{sT0}")
    sl = silu_list(ACCB, 112, ACCB + 8, sHS3, 0, "hb") + silu_list(ACCB + 16, 112, ACCB + 24, sHS3, 1024, "hb")
    for k, r in enumerate((128, 144, 160, 176)):
        run(sl[10*k:10*k+10]); A.e(f"{MF} {v(r,16)}, {Z}, {Z}, 0")
    run(sl[40:85])
    A.wait(vm=["q"])
    for b in range(2):
        A.e(f"{MF} {v(S[b],16)}, {v(K01[b],4)}, {v(Q,4)}, 0"); run(sl[85+4*b:89+4*b])
    run(sl[93:])
    A.e(f"v_max_f32 v{T0}, v{S[0]}, v{S[0]+1}")
    for i in range(2, 32, 2): A.e(f"v_max3_f32 v{T0}, v{T0}, v{S[0]+i}, v{S[0]+i+1}")
    A.e(f"v_mov_b32 v{T1}, v{T0}"); A.e(f"s_mov_b32 s{sI}, 0"); A.e("s_nop 0")
    A.e(f"v_permlane32_swap_b32 v{T0}, v{T1}"); A.e("s_nop 0")
    A.e(f"v_max_f32 v{T0}, v{T0}, v{T1}")
    A.e(f"v_sub_f32 v{C}, {hx(-80.0)}, v{T0}")
    for i in range(1, 16): A.e(f"v_mov_b32 v{C+i}, v{C}")
    A.e("s_nop 1")
    A.e(f"{MF} {v(S[0],16)}, {v(K01[0],4)}, {v(Q,4)}, {v(C,16)}")
    if OPT["pk"] == 10: A.e("s_waitcnt vmcnt(3)")
    A.e("s_barrier")
    A.e("s_setprio 3")
    A.e(f"{MF} {v(O,16)}, {Z}, {Z}, 0")
    stamp(A, "BB0")
    A.e("s_setprio 0")

    def w_issue(slot, tag):
        A.e(f"s_add_u32 m0, s{sMW}, {slot*16384}")
        A.e("s_nop 0")
        A.vmem(f"buffer_load_dwordx4 v{WD0}, {srd(SCUR)}, s{sWSO} offen lds", tag)
        A.vmem(f"buffer_load_dwordx4 v{WD1}, {srd(SCUR)}, s{sWSO} offen offset:1024 lds", tag)
        A.e(f"s_add_u32 s{sWSO}, s{sWSO}, {128*1024}")
    def h_issue(slot, tag):
        A.e(f"s_add_u32 m0, s{sMH}, {slot*16384}")
        A.e("s_nop 0")
        A.vmem(f"buffer_load_dwordx4 v{LO}, {srd(SWS)}, s{sAO} offen sc1 lds", tag)
        A.vmem(f"buffer_load_dwordx4 v{LO}, {srd(SWS)}, s{sAO2} offen offset:1024 sc1 lds", tag)
        A.e(f"s_add_u32 s{sAO}, s{sAO}, 8192"); A.e(f"s_add_u32 s{sAO2}, s{sAO2}, 8192")
    def wait_oldest(tags, extra=""):
        n = None
        for tg in tags:
            idx = [k for k, t_ in enumerate(A.vm) if t_ == tg]
            if not idx: continue
            last = idx[0]
            while last + 1 < len(A.vm) and A.vm[last + 1] == tg: last += 1
            n = len(A.vm) - 1 - last
            A.vm = A.vm[last+1:]
        parts = ([f"vmcnt({n})"] if n is not None else []) + ([extra] if extra else [])
        if parts: A.e("s_waitcnt " + " ".join(parts))
    RET = 78 if not INSTR else 98
    SS = OPT["ss"]
    def side_reads(pi):
        pp = pi & 3
        for i in range(4):
            for p in range(2): A.e(f"ds_read_b64_tr_b16 {v(DW[i]+2*p,2)}, v{RAW} offset:{pp*16384 + i*2048 + p*1024}")
            A.e(f"ds_read_b128 {v(HF[i],4)}, v{RAH} offset:{pp*16384 + i*2048}")
    def w_next(n):
        if n == SS + 14:
            for i in range(4): A.e(f"s_mov_b32 s{SCUR+i}, s{SO+i}")
            A.e(f"s_lshl_b32 s{sWSO}, s{sW}, 14"); A.e(f"s_lshl_b32 s{sT2}, s{sTN}, 7"); A.e(f"s_add_u32 s{sWSO}, s{sWSO}, s{sT2}")
        w_issue(n & 3, ("w", n))
    def prelude(pi):
        pp = pi & 3
        side = pi >= SS
        def reads():
            for i in range(4): A.e(f"ds_read_b128 {v(KFR[i],4)}, v{LO} offset:{pp*8192 + i*1024}")
            A.e(f"s_mov_b64 exec, s[{sMSK}:{sMSK+1}]")
            for i in range(4):
                for f in range(2): A.e(f"ds_read_b128 {v(VFR[i][f],4)}, v{LO} offset:{pp*8192 + 4096 + i*1024 + f*256}")
            A.e("s_mov_b64 exec, -1")
            if side: side_reads(pi)
        n = pi + 3
        ca = SS - 3
        if pi == ca + 1:
            for q in range(SS, n): h_issue(q & 3, ("h", q))
        reads()
        if pi == ca: one_check(4, [sP0], "0xfff")
        if pi == 2: wg_flag(F2 + 32768, sRB, sGI)
        if pi == SS + 2: one_check(4, [sP1], "0xffff")
        if pi == ca - 1: one_load(4, [sP0], "0xfff")
        if pi == SS + 1: one_load(4, [sP1], "0xffff")
        if pi == 0: kv_issue(2, ("kv", 2))
        if n <= 16: kv_issue(n & 3, ("kv", n))
        if pi > ca and n < SS + 14: h_issue(n & 3, ("h", n))
        if n >= SS: w_next(n)
        if pi == 13:
            A.vmem(f"buffer_load_dwordx4 {v(XRES,4)}, v{XA}, {srd(SX)}, s{sOO} offen", "xres")
        if OPT["wow"] and pi in (9, 10, 11):
            m = pi - 8
            if SS + 14 + m > 18:
                A.e(f"s_lshl_b32 s{sT0}, s{sW}, 14"); A.e(f"s_lshl_b32 s{sT1}, s{sTN}, 7"); A.e(f"s_add_u32 s{sT0}, s{sT0}, s{sT1}")
                A.e(f"s_add_u32 s{sT0}, s{sT0}, {m*128*1024}")
                A.vmem(f"buffer_load_dwordx4 {v(68,4)}, v{WD0}, {srd(SO)}, s{sT0} offen", "pf")
                A.vmem(f"buffer_load_dwordx4 {v(68,4)}, v{WD1}, {srd(SO)}, s{sT0} offen offset:1024", "pf")
        need = [("h", pi + 1), ("w", pi + 1)] + ([("h", 17), ("w", 17)] if pi == 15 else [])
        if pi == 1: A.wait(vm=["hb"])
        A.wait(vm=[("kv", pi + 1)] + [t_ for t_ in need if t_ in A.vm[-5:] or pi == 15])
        A.e("s_waitcnt lgkmcnt(0)")
        if pi == 15: A.e(f"s_cmp_eq_u32 s{sKH}, 1")
        else: A.e(f"s_cmp_eq_u32 s{sKH}, 2")
        A.e(f"s_call_b64 s[{RET}:{RET+1}], L_burst")
        A.vm = A.vm[-5:]
        if pi in (0, 1, 2, 3, 7, 11) and INSTR:
            A.e("s_setprio 3"); stamp(A, f"it{pi >> 2}" if pi >= 3 else f"ph{pi}"); A.e("s_setprio 0")
    for pi in range(16): prelude(pi)
    A.e("s_setprio 1")
    stamp(A, "drain")
    A.e(f"s_mov_b64 exec, s[{sMSK}:{sMSK+1}]")
    for f in range(2): A.e(f"ds_read_b128 {v(VFR[0][f],4)}, v{LO} offset:{4096 + f*256}")
    A.e("s_mov_b64 exec, -1")
    A.e(f"s_mul_i32 s{sT0}, s{sTBq}, 144"); A.e(f"s_add_u32 s{sT0}, s{sT0}, s{sHD}"); A.e(f"s_lshl_b32 s{sT0}, s{sT0}, 10")
    A.e(f"s_add_u32 s{sT0}, s{sT0}, {ACTF + 112*1024}")
    A.e("s_waitcnt lgkmcnt(0)")
    for f in range(2): A.e(f"{MF} {v(O,16)}, {v(VFR[0][f],4)}, {v(P[1]+4*f,4)}, {v(O,16)}")
    A.e(f"s_lshl_b32 s{sT1}, s{sTBq}, 5"); A.e(f"s_add_u32 s{sT1}, s{sT1}, s{sHD}"); A.e(f"s_lshl_b32 s{sT1}, s{sT1}, 7")
    A.e(f"s_add_u32 s{sT1}, s{sT1}, {F3}")
    A.e(f"v_mov_b32 v{T1}, {hx(2.0**100)}")
    A.e(f"s_mov_b32 s{sFB}, 0")
    A.e("s_nop 5")
    A.e(f"v_rcp_f32 v{T3}, v{O+8}")
    A.e(f"v_mov_b32 v{T0}, v{O+8}")
    for i in range(8): A.e(f"v_fma_f32 v{T0}, v{O+i}, 0, v{T0}")
    A.e(f"v_cmp_nlt_f32 vcc, v{T0}, v{T1}")
    A.e("s_nop 3")
    A.e("s_cbranch_vccnz L_fallback")
    A.label("L_fin")
    for i in range(8): A.e(f"v_mul_f32 v{O+i}, v{O+i}, v{T3}")
    for i in range(4): A.e(f"v_cvt_pk_bf16_f32 v{P[0]+i}, v{O+2*i}, v{O+2*i+1}")
    A.e(f"buffer_store_dwordx4 {v(P[0],4)}, v{LO}, {srd(SWS)}, s{sT0} offen sc1")
    w_next(19)
    def leftover(pi):
        side_reads(pi)
        for i in range(4):
            A.e(f"s_waitcnt lgkmcnt({9 - 3*i})")
            A.e(f"{MF} {v(DACC,16)}, {v(DW[i],4)}, {v(HF[i],4)}, {v(DACC,16)}")
    for pi in range(16, SS + 14): leftover(pi)
    A.e(f"s_lshl_b32 s{sP0}, s{sTM}, 13"); A.e(f"s_lshl_b32 s{sT2}, s{sW}, 7"); A.e(f"s_add_u32 s{sP0}, s{sP0}, s{sT2}"); A.e(f"s_add_u32 s{sP0}, s{sP0}, {F3}")
    A.e(f"v_lshlrev_b32 v{PA}, 6, v{LO}")
    A.e(f"s_mul_i32 s{sAO}, s{sTM}, {2*144*1024}"); A.e(f"s_add_u32 s{sAO}, s{sAO}, s{sMK}")
    A.e(f"s_add_u32 s{sAO}, s{sAO}, {ACTF + 112*1024}"); A.e(f"s_add_u32 s{sAO2}, s{sAO}, {144*1024 - 1024}")
    L, T2 = 102, 103
    A.e(f"v_lshrrev_b32 v{L}, 4, v{LO}")
    A.e(f"v_lshrrev_b32 v101, 10, v{XA}")
    A.e(f"v_and_b32 v{T2}, 7, v{L}")
    A.e(f"v_and_b32 v{T0}, 31, v{L}"); A.e(f"v_lshrrev_b32 v{T1}, 5, v{L}")
    A.e(f"v_xor_b32 v{T1}, v{T1}, v{T2}")
    A.e(f"v_lshlrev_b32 v{T0}, 8, v{T0}")
    A.e(f"s_lshr_b32 s{sT0}, s{sW}, 1"); A.e(f"s_lshl_b32 s{sT0}, s{sT0}, 13")
    A.e(f"s_and_b32 s{sT2}, s{sW}, 1"); A.e(f"s_lshl_b32 s{sT2}, s{sT2}, 7"); A.e(f"s_add_u32 s{sT0}, s{sT0}, s{sT2}")
    A.e(f"v_add_u32 v{T0}, s{sT0}, v{T0}")
    A.e(f"v_lshl_add_u32 v104, v{T1}, 4, v{T0}")
    for q in range(1, 4): A.e(f"v_xor_b32 v{104+q}, {32*q}, v104")
    A.e(f"v_and_b32 v{T1}, 7, v101")
    A.e(f"v_lshlrev_b32 v{T2}, 1, v{T2}"); A.e(f"v_xor_b32 v{T2}, v{T2}, v{T1}")
    A.e(f"v_lshlrev_b32 v{T0}, 8, v101")
    A.e(f"v_lshl_add_u32 v108, v{T2}, 4, v{T0}"); A.e("v_xor_b32 v109, 16, v108")
    A.e("s_waitcnt vmcnt(2)")
    flag_store(sT1)
    stamp(A, "f3")
    for i in range(4):
        A.e(f"v_lshlrev_b32 v{112+2*i}, 16, v{XRES+i}"); A.e(f"v_and_b32 v{113+2*i}, 0xffff0000, v{XRES+i}")
    A.e("s_waitcnt vmcnt(1)")
    A.e("s_barrier")
    A.e("s_mov_b64 exec, 0xff"); run(floads([sP0])); A.e("s_mov_b64 exec, -1")
    WOF = 192
    late = [m for m in range(4) if SS + 14 + m > 19]
    for m in late: w_next(SS + 14 + m)
    def wo_read(k):
        for p in range(2):
            A.e(f"ds_read_b64_tr_b16 {v(WOF+4*k+2*p,2)}, v{RAW} offset:{((SS+14+(k>>2))&3)*16384 + (k&3)*2048 + p*1024}")
    for k in range(16):
        if (k >> 2) not in late: wo_read(k)
    A.e("s_mov_b64 exec, 0xff")
    A.e(f"s_waitcnt vmcnt({2*len(late)})")
    retry(floads([sP0]), PT[:1], "L_p3")
    A.e("s_mov_b64 exec, -1")
    stamp(A, "p3")
    A.vm = []
    for k in range(4): h_issue(k, ("o", k))
    OF = 32
    nsp = OPT["osp"] + 1
    per = 4 // nsp
    for gi_ in range(nsp):
        A.wait(vm=[("o", per*gi_ + per - 1)])
        if gi_ == 0: A.e("s_waitcnt lgkmcnt(0)")
        A.e("s_barrier")
        if gi_ == 0: stamp(A, "obar")
        kk = range(4*per*gi_, 4*per*(gi_ + 1))
        for k in kk: A.e(f"ds_read_b128 {v(OF+4*k,4)}, v{RAH} offset:{(k>>2)*16384 + (k&3)*2048}")
        lk = [k for k in range(16) if (k >> 2) in late] if gi_ == 0 else []
        assert nsp == 2 and all(m >= 2 for m in late)
        for j, k in enumerate(kk):
            A.e(f"s_waitcnt lgkmcnt({min(15, len(kk)-1-j + 2*min(j, len(lk)))})")
            A.e(f"{MF} {v(DACC,16)}, {v(WOF+4*k,4)}, {v(OF+4*k,4)}, {v(DACC,16)}")
            if j < len(lk): wo_read(lk[j])
    stamp(A, "cmf")
    A.e("s_nop 11")
    for q in range(4): A.e(f"ds_write_b128 v{104+q}, {v(DACC+4*q,4)}")
    A.e("s_waitcnt lgkmcnt(0)")
    A.e("s_barrier")
    stamp(A, "cbar")
    for w in range(2):
        A.e(f"ds_read_b128 {v(32+8*w,4)}, v108 offset:{w*16384}")
        A.e(f"ds_read_b128 {v(36+8*w,4)}, v109 offset:{w*16384}")
    for w in range(2):
        A.e(f"s_waitcnt lgkmcnt({2-2*w})")
        for i in range(8): A.e(f"v_add_f32 v{112+i}, v{112+i}, v{32+8*w+i}")
    for i in range(4): A.e(f"v_cvt_pk_bf16_f32 v{XRES+i}, v{112+2*i}, v{113+2*i}")
    A.e(f"buffer_store_dwordx4 {v(XRES,4)}, v{XA}, {srd(SOUT)}, s{sOO} offen{('', ' sc1', ' nt', ' sc0 sc1')[OPT['ost']]}")
    A.e(f"s_or_b32 s{sT0}, s2, s{sW}"); A.e(f"s_cmp_lg_u32 s{sT0}, 0"); A.e("s_cbranch_scc1 L_noep")
    A.e(f"s_mov_b32 s{sT0}, {EPOCH}")
    flag_store(sT0)
    A.label("L_noep")
    if SPIN:
        A.label("L_spin")
        A.e("s_memrealtime s[76:77]"); A.e("s_waitcnt lgkmcnt(0)")
        A.e("s_sub_u32 s76, s76, s74"); A.e(f"s_cmp_lt_u32 s76, {OPT.get('T', 6000)}"); A.e("s_cbranch_scc1 L_spin")
    if INSTR:
        A.e("s_waitcnt vmcnt(0)")
        stamp(A, "end")
        A.e("s_memrealtime s[98:99]"); A.e("s_waitcnt lgkmcnt(0)")
        A.e(f"s_lshl_b32 s{sT0}, s2, 3"); A.e(f"s_add_u32 s{sT0}, s{sT0}, s{sW}"); A.e(f"s_lshl_b32 s{sT0}, s{sT0}, 8")
        A.e(f"s_add_u32 s{sT0}, s{sT0}, {PROF}")
        A.e("v_writelane_b32 v127, s74, 0"); A.e("v_writelane_b32 v127, s98, 1")
        A.e(f"v_writelane_b32 v127, s{sSPIN}, 2"); A.e(f"v_writelane_b32 v127, s{sFB}, 3")
        A.e(f"v_lshrrev_b32 v{T0}, 2, v{LO}")
        A.e(f"buffer_store_dword v127, v{T0}, {srd(SWS)}, s{sT0} offen")
    A.e("s_endpgm")
    A.raw("    .p2align 6"); A.e("s_nop 0")
    A.label("L_burst")
    A.e("s_barrier")
    for i in range(4):
        b = i & 1; nb = b ^ 1
        e = [f"v_exp_f32 v{S[b]+j}, v{S[b]+j}" for j in range(16)]
        c = [f"v_cvt_pk_bf16_f32 v{P[b]+j}, v{S[b]+2*j}, v{S[b]+2*j+1}" for j in range(8)]
        qk = f"{MF} {v(S[nb],16)}, {v(KFR[i],4)}, {v(Q,4)}, {v(C,16)}"
        pv0 = f"{MF} {v(O,16)}, {v(VFR[i][0],4)}, {v(P[nb],4)}, {v(O,16)}"
        pv1 = f"{MF} {v(O,16)}, {v(VFR[i][1],4)}, {v(P[nb]+4,4)}, {v(O,16)}"
        sm = f"{MF} {v(DACC,16)}, {v(DW[i],4)}, {v(HF[i],4)}, {v(DACC,16)}"
        run(e[0:4] + [qk] + e[4:10] + [pv0] + e[10:16] + [pv1] + c + [sm])
    A.e("s_waitcnt vmcnt(5)")
    A.e("s_cbranch_scc1 L_bret")
    A.e("s_barrier")
    A.label("L_bret")
    A.e(f"s_setpc_b64 s[{RET}:{RET+1}]")
    A.label("L_fallback")
    A.e(f"s_mov_b32 s{sFB}, 1"); A.e(f"s_mov_b32 s{sI}, 0")
    A.e(f"s_mov_b32 s{sVO}, s{sKB}")
    A.e(f"v_mov_b32 v{T0}, 0xff800000")
    A.label("L_maxloop")
    A.e(f"buffer_load_dwordx4 {v(KFR[0],4)}, v{LO}, {srd(SWS)}, s{sVO} offen sc1"); A.e("s_waitcnt vmcnt(0)")
    A.e(f"{MF} {v(S[0],16)}, {v(KFR[0],4)}, {v(Q,4)}, 0")
    A.e("s_nop 7"); A.e("s_nop 3")
    for i in range(0, 16, 2): A.e(f"v_max3_f32 v{T0}, v{T0}, v{S[0]+i}, v{S[0]+i+1}")
    A.e(f"s_add_u32 s{sVO}, s{sVO}, 1024")
    A.e(f"s_add_u32 s{sI}, s{sI}, 1"); A.e(f"s_cmp_lt_u32 s{sI}, 64"); A.e("s_cbranch_scc1 L_maxloop")
    A.e(f"v_mov_b32 v{T1}, v{T0}"); A.e("s_nop 1")
    A.e(f"v_permlane32_swap_b32 v{T0}, v{T1}"); A.e("s_nop 0")
    A.e(f"v_max_f32 v{T0}, v{T0}, v{T1}")
    for i in range(16): A.e(f"v_sub_f32 v{C+i}, 0, v{T0}")
    for i in range(16): A.e(f"v_mov_b32 v{O+i}, 0")
    A.e(f"s_mov_b32 s{sI}, 0")
    A.label("L_fbloop")
    A.e(f"s_add_u32 s{sVO}, s{sKB}, {VF-KF}")
    A.e(f"buffer_load_dwordx4 {v(KFR[0],4)}, v{LO}, {srd(SWS)}, s{sKB} offen sc1")
    A.e(f"s_mov_b64 exec, s[{sMSK}:{sMSK+1}]")
    A.e(f"buffer_load_dwordx4 {v(VFR[0][0],4)}, v{LO}, {srd(SWS)}, s{sVO} offen sc1")
    A.e(f"buffer_load_dwordx4 {v(VFR[0][1],4)}, v{LO}, {srd(SWS)}, s{sVO} offen offset:256 sc1")
    A.e("s_mov_b64 exec, -1")
    A.e("s_waitcnt vmcnt(0)")
    A.e(f"{MF} {v(S[0],16)}, {v(KFR[0],4)}, {v(Q,4)}, {v(C,16)}")
    A.e("s_nop 7"); A.e("s_nop 3")
    for i in range(16): A.e(f"v_exp_f32 v{S[0]+i}, v{S[0]+i}")
    A.e("s_nop 0")
    for i in range(8): A.e(f"v_cvt_pk_bf16_f32 v{P[0]+i}, v{S[0]+2*i}, v{S[0]+2*i+1}")
    A.e("s_nop 1")
    for f in range(2): A.e(f"{MF} {v(O,16)}, {v(VFR[0][f],4)}, {v(P[0]+4*f,4)}, {v(O,16)}")
    A.e(f"s_add_u32 s{sKB}, s{sKB}, 1024")
    A.e(f"s_add_u32 s{sI}, s{sI}, 1"); A.e(f"s_cmp_lt_u32 s{sI}, 64"); A.e("s_cbranch_scc1 L_fbloop")
    A.e("s_nop 7"); A.e("s_nop 3")
    A.e(f"v_rcp_f32 v{T3}, v{O+8}"); A.e("s_nop 0")
    A.e("s_branch L_fin")
    A.label("L_end")
    A.e("s_endpgm")
    return A

HEADER = open("parallel_sum__softmax_full_mha__swiglu_ffn__prompt.s.ref").read().split("; Override")[0]
def build():
    A = gen()
    body = A.text()
    probs = check_hazards(body)
    out = HEADER + "; @launch grid=(256,1,1) block=(512,1,1) lds=163840\n" + '.amdgcn_target "amdgcn-amd-amdhsa--gfx950"\n' + body
    out += KD.format(name=NAME, nvgpr=256, nsgpr=102, accum=256)
    return out, probs

if __name__ == "__main__":
    if len(sys.argv) > 2 and sys.argv[2].startswith("spin:"): SPIN = sys.argv[2][5:]
    elif len(sys.argv) > 2 and sys.argv[2] != "0": INSTR = sys.argv[2]
    for kv in sys.argv[3:]:
        k_, v_ = kv.split("="); OPT[k_] = int(v_)
    out, probs = build()
    if INSTR: out += "; STAMPS " + ",".join(STAMPS) + "\n"
    open(sys.argv[1], "w").write(out)
    print("hazards:", len(probs), "chars:", len(out))
```

```python
import sys, struct
from asmlib import *

QF, KF, VF, ACTF = 0, 2 << 20, 4 << 20, 8 << 20
FLG = 20 << 20
F1 = FLG
EPOCH = FLG + 49152
STT = FLG + 65536
F2 = FLG + 131072
F3 = FLG + 262144
CSG = FLG + 524288
PROF = 24 << 20
WS_SIZE = 32 << 20
KA = dict(x=0, wqkv=8, wo=16, bx=24, wg=32, wu=40, wd=48, out=56, dbg=64, ws=72)
SZ = dict(x=2048*512*2, wqkv=512*1536*2, wo=512*512*2, wg=512*1792*2, wu=512*1792*2, wd=1792*512*2, out=2048*512*2, ws=WS_SIZE)
LOG2E = 1.4426950408889634
def f2u(f): return struct.unpack("<I", struct.pack("<f", f))[0]
def hx(f): return "0x%08x" % f2u(f)
NAME = "parallel_sum__softmax_full_mha__swiglu_ffn__prompt_kernel"
INSTR = False
OPT = dict(ol=1, lp=0, gs=0, gc=14, jit=1, rv0=128, rotm=0, spl=0, cpf=1, e1=0, ost=2, wow=0, ss=3, tlb=0, pre=2, fq=3, fqr=4, pk=8, rvb=96, rvr=128, m2b=8, fa=8, i3=3, osp=1, spp=2)

WRING, HRING = 32768, 98304
SL, SCR = 40960, 32768

SX, SQ, SG, SU, SD, SO, SOUT, SWS = 4, 8, 12, 16, 20, 24, 28, 32
SCUR = 36
(sRB, sGI, sHD, sJ, sTM, sTN, sW, sTQ, sKH, sROT, sTAG, sT0, sT1, sT2, sXB, sXO, sKB, sMW, sONE, sTB, sI,
 sKO, sVO, sWSO, sHSO, sMK, sSPIN, sXCD, sLA, sLB) = range(40, 70)
sMSK = 70
sMH, sHS3 = 72, 73
sAO, sFB, sTBq, sLQ, sRAH, sM1, sM2, sSC, sHS2, sAO2, sRK, sSCR, sCSW, sCSR, sT3, sP0, sP1, sP2 = range(80, 98)
MF = "v_mfma_f32_32x32x16_bf16"
def srd(b): return f"s[{b}:{b+3}]"

STAMPS = []
SPIN = None
def stamp(A, name, dyn=0):
    if SPIN and name == SPIN:
        A.e("s_memrealtime s[74:75]"); A.e("s_waitcnt lgkmcnt(0)"); A.lgkm = []
    if not INSTR: return
    if INSTR == "min" and name not in ("start", "B2", "b0", "BB0", "it0", "drain", "p3", "end"): return
    if name not in STAMPS:
        STAMPS.append(name)
        for i in range(1, dyn): STAMPS.append(f"{name}+{i}")
    i = STAMPS.index(name) + 4
    assert i + dyn < 64
    if INSTR == "min" and name in ("B2", "b0", "BB0", "drain") :
        if name + "R" not in STAMPS: STAMPS.append(name + "R")
        A.e("s_memrealtime s[76:77]"); A.e("s_waitcnt lgkmcnt(0)")
        A.e(f"v_writelane_b32 v127, s76, {STAMPS.index(name + 'R') + 4}")
    A.e("s_memtime s[76:77]")
    if dyn: A.e(f"s_add_u32 s78, s{sI}, {i}")
    A.e("s_waitcnt lgkmcnt(0)"); A.lgkm = []
    A.e(f"v_writelane_b32 v127, s76, {i}" if not dyn else "s_mov_b32 s79, m0\ns_mov_b32 m0, s78\ns_nop 0\nv_writelane_b32 v127, s76, m0\ns_mov_b32 m0, s79")

class Side:
    def __init__(self, A): self.q = []; self.A = A
    def add(self, *xs): self.q.extend(xs)
    def pull(self, n):
        for _ in range(n):
            if not self.q: return
            x = self.q.pop(0)
            if callable(x): x()
            else: self.A.e(x)
    def flush(self): self.pull(len(self.q))

def gen():
    A = Asm()
    def run(lst):
        for x in lst: x() if callable(x) else A.e(x)
    nl = [0]
    def lab(p): nl[0] += 1; return f"L_{p}{nl[0]}"
    def retry(loads, tagregs, label, tmp=None):
        A.label(label + "_chk")
        if len(tagregs) == 1: A.e(f"v_cmp_ne_u32 vcc, s{sTAG}, v{tagregs[0]}")
        else:
            t_ = list(tagregs)
            lo, hi = tmp
            A.e(f"v_min3_u32 v{lo}, v{t_[0]}, v{t_[1]}, v{t_[2]}"); A.e(f"v_max3_u32 v{hi}, v{t_[0]}, v{t_[1]}, v{t_[2]}")
            if len(t_) > 3:
                A.e(f"v_min3_u32 v{lo}, v{lo}, v{t_[3]}, v{t_[-1]}"); A.e(f"v_max3_u32 v{hi}, v{hi}, v{t_[3]}, v{t_[-1]}")
            A.e(f"v_xor_b32 v{lo}, s{sTAG}, v{lo}"); A.e(f"v_xor_b32 v{hi}, s{sTAG}, v{hi}"); A.e(f"v_or_b32 v{lo}, v{lo}, v{hi}")
            A.e(f"v_cmp_ne_u32 vcc, 0, v{lo}")
        A.e(f"s_cmp_eq_u32 s{sSPIN}, 0")
        A.e(f"s_cbranch_scc1 {label}_ok")
        A.e("s_nop 0")
        A.e(f"s_cbranch_vccz {label}_ok")
        A.e(f"s_sub_u32 s{sSPIN}, s{sSPIN}, 1")
        A.e("s_sleep 1")
        run(loads)
        A.e("s_waitcnt vmcnt(0)")
        A.e(f"s_branch {label}_chk")
        A.label(label + "_ok")

    A.raw(".text"); A.raw(f".globl {NAME}"); A.raw(".p2align 8"); A.raw(f".type {NAME},@function"); A.label(NAME)
    A.e("s_cmp_ge_u32 s2, 256"); A.e("s_cbranch_scc1 L_end")
    if SPIN: stamp(A, "start")
    if INSTR:
        A.e("s_memrealtime s[74:75]"); A.e("v_mov_b32 v127, 0")
        stamp(A, "start")
    items = [("x", SX), ("ws", SWS), ("wqkv", SQ), ("wg", SG), ("wu", SU), ("wd", SD), ("wo", SO), ("out", SOUT)]
    for n, b in items: A.e(f"s_load_dwordx2 s[{b}:{b+1}], s[0:1], {KA[n]}")
    RAW, T0, T1, WD0, T3, LO = 1, 2, 3, 4, 5, 6
    L, T2 = 40, 41
    A.e(f"v_lshrrev_b32 v{T0}, 6, v0"); A.e(f"v_and_b32 v{L}, 63, v0")
    A.e(f"v_readfirstlane_b32 s{sW}, v{T0}")
    A.e(f"s_lshr_b32 s{sT1}, s2, 3")
    if OPT["cpf"]:
        A.e(f"s_getpc_b64 s[{SCUR}:{SCUR+1}]")
        A.label("L_pc")
        A.e(f"s_lshl_b32 s{sT0}, s{sT1}, 3")
        A.e(f"s_cmp_eq_u32 s{sW}, 0"); A.e(f"s_cselect_b32 s{sT0}, s{sT0}, 0"); A.e(f"s_cselect_b32 s{sT2}, 0xff, -1")
        A.e(f"s_cmp_gt_u32 s{sW}, 1"); A.e("s_cbranch_scc1 L_nocpf")
        A.e(f"v_add_lshl_u32 v{T0}, v{L}, s{sT0}, 7")
        A.e(f"v_min_u32 v{T0}, L_end-L_pc, v{T0}")
        A.e(f"s_mov_b32 exec_lo, s{sT2}"); A.e("s_mov_b32 exec_hi, 0")
        A.e(f"global_load_dword v95, v{T0}, s[{SCUR}:{SCUR+1}]")
        A.e("s_mov_b64 exec, -1")
        A.label("L_nocpf")
    for n, b in items:
        A.e(f"s_mov_b32 s{b+2}, {SZ[n]}"); A.e(f"s_mov_b32 s{b+3}, 0x00020000")
    A.e(f"v_lshlrev_b32 v{LO}, 4, v{L}")
    A.e(f"s_and_b32 s{sXCD}, s2, 7")
    sSUB, sGQ, sROW = sKO, sVO, sT3
    A.e(f"s_and_b32 s{sRB}, s{sXCD}, 1"); A.e(f"s_lshl_b32 s{sRB}, s{sRB}, 3")
    A.e(f"s_and_b32 s{sT0}, s{sT1}, 7"); A.e(f"s_add_u32 s{sRB}, s{sRB}, s{sT0}")
    A.e(f"s_lshr_b32 s{sSUB}, s{sT1}, 3"); A.e(f"s_lshr_b32 s{sGQ}, s{sXCD}, 1")
    if OPT["rotm"] == 1:
        A.e(f"s_add_u32 s{sROT}, s{sSUB}, s{sRB}"); A.e(f"s_lshl_b32 s{sROT}, s{sROT}, 2")
    elif OPT["rotm"] == 2:
        A.e(f"s_add_u32 s{sROT}, s{sSUB}, s{sRB}"); A.e(f"s_lshl_b32 s{sROT}, s{sROT}, 1")
    elif OPT["rotm"] == 3:
        A.e(f"s_mov_b32 s{sROT}, 0")
    else: A.e(f"s_lshl1_add_u32 s{sROT}, s{sSUB}, s{sRB}")
    A.e(f"s_and_b32 s{sTQ}, s{sW}, 3"); A.e(f"s_lshr_b32 s{sKH}, s{sW}, 2")
    A.e(f"s_lshl2_add_u32 s{sTB}, s{sRB}, s{sTQ}")
    A.e(f"s_mul_i32 s{sGI}, s{sGQ}, 3"); A.e(f"s_add_u32 s{sGI}, s{sGI}, s{sSUB}")
    A.e(f"s_add_u32 s{sT2}, s{sGQ}, 12")
    A.e(f"s_cmp_eq_u32 s{sSUB}, 3"); A.e(f"s_cselect_b32 s{sGI}, s{sT2}, s{sGI}")
    A.e(f"s_lshl4_add_u32 s{sROW}, s{sRB}, s{sGI}"); A.e(f"s_lshl3_add_u32 s{sROW}, s{sROW}, s{sW}")
    A.e(f"s_lshl_b32 s{sT2}, s{sROW}, 10")
    A.e(f"s_mov_b32 s{sT0}, {EPOCH}")
    ACC1, ACCA, ACCB = 16, 32, 64
    XD, QD, RQ, XRD, GRAN, CS1, CG = 64, 66, 67, 68, 72, 76, 88
    RS, NEGM = 0, 7
    RG = [8, 9]; ONES = 10; CS2 = [12, 122]; SD2 = 126
    WF = [96 + 4*i for i in range(6)]
    GD, UD = 120, 121
    X = 128
    A.e(f"s_lshl_b32 s{sXO}, s{sTB}, 15"); A.e(f"s_lshl_b32 s{sI}, s{sKH}, 14"); A.e(f"s_add_u32 s{sXO}, s{sXO}, s{sI}")
    A.e(f"s_lshl_b32 s{sXB}, s{sTQ}, 12"); A.e(f"s_lshl_b32 s{sI}, s{sKH}, 11"); A.e(f"s_add_u32 s{sXB}, s{sXB}, s{sI}")
    A.e(f"s_lshl_b32 s{sLQ}, s{sGI}, 7")
    A.e(f"s_lshl_b32 s{sI}, s{sGI}, 8"); A.e(f"s_sub_u32 s{sI}, s{sI}, {8*128}")
    A.e(f"s_cmp_ge_u32 s{sGI}, 12"); A.e(f"s_cselect_b32 s{sLA}, s{sI}, s{sLQ}")
    A.e(f"s_lshr_b32 s{sI}, s{sW}, 1"); A.e(f"s_mul_i32 s{sM1}, s{sI}, 6144")
    A.e(f"s_and_b32 s{sI}, s{sW}, 1"); A.e(f"s_lshl_b32 s{sI}, s{sI}, 10"); A.e(f"s_add_u32 s{sM1}, s{sM1}, s{sI}")
    A.e(f"s_mov_b32 s{sJ}, s{sT1}")
    A.e(f"v_lshrrev_b32 v{T0}, 3, v{L}"); A.e(f"v_lshlrev_b32 v{WD0}, 10, v{T0}")
    A.e(f"v_lshrrev_b32 v{T1}, 4, v{L}"); A.e(f"v_and_b32 v{T2}, 7, v{L}"); A.e(f"v_xor_b32 v{T1}, v{T1}, v{T2}")
    A.e(f"v_lshl_add_u32 v{XD}, v{T1}, 4, v{WD0}")
    A.e(f"v_xor_b32 v{XD+1}, 64, v{XD}")
    A.e(f"v_add_u32 v{XD+1}, 7168, v{XD+1}")
    A.e(f"v_bfe_u32 v{T1}, v{L}, 2, 1"); A.e(f"v_bfe_u32 v{T3}, v{L}, 4, 1"); A.e(f"v_xor_b32 v{T1}, v{T1}, v{T3}")
    A.e(f"v_lshlrev_b32 v{T1}, 2, v{T1}"); A.e(f"v_and_or_b32 v{T1}, v{L}, 3, v{T1}")
    A.e(f"v_mul_u32_u24 v{QD}, 3072, v{T0}"); A.e(f"v_lshl_add_u32 v{QD}, v{T1}, 4, v{QD}")
    A.e(f"v_lshl_add_u32 v{WD0}, v{T1}, 4, v{WD0}")
    A.e(f"v_mul_u32_u24 v{T0}, 3584, v{T0}")
    A.e(f"v_and_b32 v{T1}, 1, v{L}"); A.e(f"v_lshl_add_u32 v{T0}, v{T1}, 4, v{T0}")
    A.e(f"v_bfe_u32 v{T1}, v{L}, 1, 2"); A.e(f"v_xor_b32 v{T1}, v{T1}, v{T3}")
    A.e(f"v_lshl_add_u32 v{GD}, v{T1}, 5, v{T0}")
    A.e(f"v_xor_b32 v{UD}, 64, v{GD}")
    A.e("s_waitcnt lgkmcnt(0)"); stamp(A, "karg")
    A.vmem(f"buffer_load_dwordx4 v[16:19], v{LO}, {srd(SX)}, s{sT2} offen", "row")
    A.e("s_mov_b64 exec, 1")
    A.vmem(f"buffer_load_dword v20, off, {srd(SWS)}, s{sT0} sc1", "row")
    A.e("s_mov_b64 exec, -1")

    def issue1_list(typ, t):
        sb = (t & 3)*SL
        out = []
        def fx():
            A.e(f"s_add_u32 s{sT2}, s{sROT}, {t}"); A.e(f"s_and_b32 s{sT2}, s{sT2}, 7")
            A.e(f"s_lshl_b32 s{sT0}, s{sT2}, 7")
            A.e(f"s_add_u32 m0, s{sXB}, {sb + 24576}")
            A.e(f"s_add_u32 s{sT0}, s{sT0}, s{sXO}")
            A.vmem(f"buffer_load_dwordx4 v{XD}, {srd(SX)}, s{sT0} offen lds", ("s1", t))
        def fx2():
            A.e(f"s_add_u32 m0, s{sXB}, {sb + 24576}")
            A.e(f"s_lshl3_add_u32 s{sT2}, s{sT2}, s{sW}")
            A.vmem(f"buffer_load_dwordx4 v{XD+1}, {srd(SX)}, s{sT0} offen offset:1024 lds", ("s1", t))
        out += [fx, fx2]
        for u in range(3):
            def f(u=u):
                if u == 0:
                    A.e(f"s_mul_i32 s{sT1}, s{sT2}, {8*3072}")
                    A.e(f"s_add_u32 m0, s{sM1}, {sb}")
                    A.e(f"s_add_u32 s{sT0}, s{sT1}, s{sLQ}")
                elif u == 1:
                    if typ == "P": A.e(f"s_mul_i32 s{sT1}, s{sT2}, {8*3584}")
                    A.e(f"s_add_u32 m0, s{sM1}, {sb + 2048}")
                    A.e(f"s_add_u32 s{sT0}, s{sT1}, s{sLA}")
                else:
                    A.e(f"s_add_u32 m0, s{sM1}, {sb + 4096}")
                    if typ == "R": A.e(f"s_add_u32 s{sT0}, s{sT0}, 128")
                    else: A.e("s_nop 0")
                ad, sr = (QD, SQ) if (u == 0 or typ == "R") else ((GD, SG), (UD, SU))[u-1]
                A.vmem(f"buffer_load_dwordx4 v{ad}, {srd(sr)}, s{sT0} offen lds", ("s1", t))
            out.append(f)
        for f in out: f.tag = ("s1", t)
        return out
    def issue2_list(st):
        out = []
        for u in range(2):
            for hb in range(2):
                def f(u=u, hb=hb):
                    if u == 0 and hb == 0:
                        A.e(f"s_add_u32 s{sT2}, s{sRK}, {2*st}"); A.e(f"s_and_b32 s{sT2}, s{sT2}, 7")
                        A.e(f"s_lshl2_add_u32 s{sT2}, s{sT2}, s{sTQ}")
                        A.e(f"s_mul_i32 s{sT2}, s{sT2}, {16*3584}"); A.e(f"s_add_u32 s{sT2}, s{sT2}, s{sLB}")
                    A.e(f"s_add_u32 m0, s{sM2}, {st*SL + u*2048 + hb*1024}")
                    if u == 0 and hb == 0: A.e(f"s_add_u32 s{sT1}, s{sT2}, {8*3584}")
                    else: A.e("s_nop 0")
                    ad, sr = ((GD, SG), (UD, SU))[u]
                    A.vmem(f"buffer_load_dwordx4 v{ad}, {srd(sr)}, s{sT1 if hb else sT2} offen lds", ("s2", st))
                f.tag = ("s2", st)
                out.append(f)
        return out
    def typed_issue(ts, tagl):
        sv = list(A.vm)
        A.e(f"s_cmp_ge_u32 s{sGI}, 12"); A.e(f"s_cbranch_scc1 L_ti{tagl}_R")
        for t in ts: run(issue1_list("P", t))
        A.e(f"s_branch L_ti{tagl}_done")
        A.label(f"L_ti{tagl}_R"); A.vm = sv
        for t in ts: run(issue1_list("R", t))
        A.label(f"L_ti{tagl}_done")
    if OPT["spl"]:
        l0 = issue1_list("P", 0)
        run(l0[:3])
        A.e(f"s_mov_b32 s{sP0}, s{sT2}"); A.e(f"s_mov_b32 s{sFB}, s{sT1}")
    else: typed_issue([0, 1] if OPT["e1"] else [0], "a")
    stamp(A, "i0")
    A.e(f"s_and_b32 s{sT0}, s{sJ}, 7")
    A.e(f"s_and_b32 s{sTM}, s{sXCD}, 3"); A.e(f"s_lshl3_add_u32 s{sTM}, s{sTM}, s{sT0}")
    A.e(f"s_lshr_b32 s{sTN}, s{sXCD}, 2"); A.e(f"s_lshl2_add_u32 s{sTN}, s{sTN}, s{sSUB}")
    A.e(f"s_and_b32 s{sT0}, s{sJ}, 3"); A.e(f"s_lshl2_add_u32 s{sHD}, s{sXCD}, s{sT0}")
    A.e(f"s_lshr_b32 s{sJ}, s{sJ}, 2")
    A.e(f"s_add_u32 s{sLB}, s{sLQ}, {12*128}")
    A.e(f"s_lshl_b32 s{sM2}, s{sW}, 12")
    A.e(f"s_add_u32 s{sRK}, s{sROT}, s{sKH}")
    A.e(f"s_mov_b32 s{sSPIN}, 0x40000")
    A.e(f"s_mov_b32 s{sONE}, 0x3f803f80")
    A.e(f"s_mov_b32 s{sMSK}, 0xffff"); A.e(f"s_mov_b32 s{sMSK+1}, 0xffff")
    A.e(f"s_mov_b32 s{sI}, {hx(-0.25)}"); A.e(f"s_mov_b32 s{sSC}, {hx(-1/LOG2E)}")
    A.e(f"s_cmp_lt_u32 s{sGI}, 8"); A.e(f"s_cselect_b32 s{sSC}, s{sI}, s{sSC}")
    A.e(f"s_lshl_b32 s{sT0}, s{sTB}, 10"); A.e(f"s_lshl_b32 s{sI}, s{sKH}, 17"); A.e(f"s_add_u32 s{sT0}, s{sT0}, s{sI}")
    A.e(f"s_lshl_b32 s{sHSO}, s{sGI}, 18"); A.e(f"s_add_u32 s{sHSO}, s{sHSO}, s{sT0}")
    A.e(f"s_lshl_b32 s{sT1}, s{sLA}, 11"); A.e(f"s_add_u32 s{sT1}, s{sT1}, s{sT0}")
    A.e(f"s_mul_i32 s{sT0}, s{sTB}, {144*1024}"); A.e(f"s_lshl_b32 s{sI}, s{sKH}, 11"); A.e(f"s_add_u32 s{sT0}, s{sT0}, s{sI}")
    A.e(f"s_lshl_b32 s{sI}, s{sLQ}, 5"); A.e(f"s_add_u32 s{sT0}, s{sT0}, s{sI}"); A.e(f"s_add_u32 s{sHS2}, s{sT0}, {ACTF}")
    A.e(f"s_add_u32 s{sHS3}, s{sHS2}, {48*1024}")
    A.e(f"s_cmp_ge_u32 s{sGI}, 12"); A.e(f"s_cselect_b32 s{sHS2}, s{sT1}, s{sHS2}")
    A.e(f"s_lshl1_add_u32 s{sI}, s{sGI}, s{sKH}"); A.e(f"s_lshl_b32 s{sI}, s{sI}, 13"); A.e(f"s_add_u32 s{sI}, s{sI}, {CSG}")
    A.e(f"s_lshl_b32 s{sT0}, s{sRB}, 9"); A.e(f"s_add_u32 s{sCSW}, s{sI}, s{sT0}")
    A.e(f"s_and_b32 s{sT0}, s{sT0}, 4096"); A.e(f"s_add_u32 s{sCSR}, s{sI}, s{sT0}")
    A.e(f"s_lshl3_add_u32 s{sTBq}, s{sJ}, s{sW}")
    A.e(f"s_lshl_b32 s{sKB}, s{sHD}, 16"); A.e(f"s_lshl_b32 s{sVO}, s{sTBq}, 10"); A.e(f"s_add_u32 s{sVO}, s{sVO}, s{sKB}")
    A.e(f"s_add_u32 s{sKB}, s{sKB}, {KF}")
    A.e(f"s_mul_i32 s{sI}, s{sKH}, {VF - KF - 2048}"); A.e(f"s_add_u32 s{sKO}, s{sKB}, s{sI}"); A.e(f"s_lshl_b32 s{sI}, s{sTQ}, 10")
    A.e(f"s_add_u32 s{sKO}, s{sKO}, s{sI}"); A.e(f"s_add_u32 s{sKO}, s{sKO}, 1024")
    A.e(f"s_lshl_b32 s{sMK}, s{sW}, 10")
    A.e(f"s_lshl_b32 s{sMW}, s{sW}, 11"); A.e(f"s_add_u32 s{sMH}, s{sMW}, {HRING}"); A.e(f"s_add_u32 s{sMW}, s{sMW}, {WRING}")
    A.e(f"s_lshl_b32 s{sWSO}, s{sW}, 14"); A.e(f"s_lshl_b32 s{sI}, s{sTN}, 7"); A.e(f"s_add_u32 s{sWSO}, s{sWSO}, s{sI}")
    A.e(f"s_mul_i32 s{sAO}, s{sTM}, {2*144*1024}"); A.e(f"s_add_u32 s{sAO}, s{sAO}, s{sMK}")
    A.e(f"s_add_u32 s{sAO}, s{sAO}, {ACTF}"); A.e(f"s_add_u32 s{sAO2}, s{sAO}, {144*1024 - 1024}")
    A.e(f"s_lshl_b32 s{sT1}, s{sKH}, 13"); A.e(f"s_bfe_u32 s{sI}, s{sW}, 0x10001"); A.e(f"s_lshl_b32 s{sI}, s{sI}, 10")
    A.e(f"s_add_u32 s{sRAH}, s{sT1}, s{sI}"); A.e(f"s_add_u32 s{sRAH}, s{sRAH}, {HRING}")
    for i in range(4): A.e(f"s_mov_b32 s{SCUR+i}, s{SD+i}")
    if OPT["spl"]: A.e(f"s_mov_b32 s{sSCR}, s{sP0}")
    A.e(f"s_lshl_b32 s{sP0}, s{sXCD}, 11"); A.e(f"s_add_u32 s{sP0}, s{sP0}, {F1}"); A.e(f"s_add_u32 s{sP1}, s{sP0}, {8*2048}")
    A.e(f"s_lshr_b32 s{sP2}, s{sXCD}, 1"); A.e(f"s_lshl_b32 s{sP2}, s{sP2}, 11"); A.e(f"s_add_u32 s{sP2}, s{sP2}, {F1 + 12*2048}")
    A.e(f"v_and_b32 v{T0}, 31, v{L}")
    A.e(f"v_bfe_u32 v{T1}, v{L}, 1, 3")
    A.e(f"v_lshrrev_b32 v{T2}, 5, v{L}")
    A.e(f"v_xor_b32 v{T1}, v{T1}, v{T2}")
    A.e(f"s_lshl_b32 s{sT0}, s{sTQ}, 12"); A.e(f"s_add_u32 s{sT0}, s{sT0}, 24576")
    A.e(f"v_lshlrev_b32 v{T0}, 7, v{T0}"); A.e(f"v_add_u32 v{T0}, s{sT0}, v{T0}")
    A.e(f"v_lshl_add_u32 v{XRD}, v{T1}, 4, v{T0}")
    for kk in range(1, 4): A.e(f"v_xor_b32 v{XRD+kk}, {32*kk}, v{XRD}")
    A.e(f"v_bfe_u32 v{T0}, v{L}, 2, 2")
    A.e(f"v_and_b32 v42, 3, v{L}"); A.e(f"v_lshlrev_b32 v42, 3, v42"); A.e(f"v_lshl_add_u32 v42, v{T0}, 7, v42")
    A.e(f"v_lshl_add_u32 v{T1}, v{T2}, 10, v42")
    A.e(f"v_lshrrev_b32 v{T0}, 1, v{T0}")
    A.e(f"v_xor_b32 v{RQ}, s{sKH}, v{T0}"); A.e(f"v_lshl_add_u32 v{RQ}, v{RQ}, 6, v{T1}")
    A.e(f"v_lshl_add_u32 v{RQ}, v{T3}, 5, v{RQ}")
    A.e(f"s_and_b32 s{sI}, s{sW}, 1"); A.e(f"s_add_u32 s{sT1}, s{sT1}, {WRING}")
    A.e(f"v_xor_b32 v{RAW}, s{sI}, v{T0}"); A.e(f"v_lshl_add_u32 v{RAW}, v{RAW}, 6, v42")
    A.e(f"v_lshl_add_u32 v{RAW}, v{T2}, 9, v{RAW}"); A.e(f"v_lshl_add_u32 v{RAW}, v{T3}, 5, v{RAW}"); A.e(f"v_add_u32 v{RAW}, s{sT1}, v{RAW}")
    A.e(f"v_lshl_add_u32 v{T1}, v{T3}, 11, v{T1}")
    A.e(f"v_lshl_add_u32 v{T0}, v{T3}, 1, v{T0}")
    A.e(f"s_lshl_b32 s{sT0}, s{sKH}, 1")
    A.e(f"v_xor_b32 v{T0}, s{sT0}, v{T0}")
    A.e(f"v_lshl_add_u32 v{RG[0]}, v{T0}, 5, v{T1}")
    A.e(f"v_xor_b32 v{RG[1]}, 32, v{RG[0]}")
    A.e(f"v_mov_b32 v{ONES}, s{sONE}"); A.e(f"v_mov_b32 v{ONES+1}, s{sONE}")
    A.e(f"v_and_b32 v{T0}, 0x2ff, v{LO}"); A.e(f"v_lshl_add_u32 v{T0}, v{T3}, 16, v{T0}")
    A.e(f"s_lshl_b32 s{sI}, s{sW}, 7"); A.e(f"s_add_u32 s{sI}, s{sI}, {SCR + 6144}")
    A.e(f"v_lshl_add_u32 v{T3}, v{T2}, 4, s{sI}")
    A.e(f"v_and_b32 v93, 31, v{L}"); A.e(f"v_lshlrev_b32 v94, 4, v93"); A.e(f"v_lshl_add_u32 v93, v93, 2, s{sI}")
    A.e("v_mov_b32 v21, 0"); A.e("v_mov_b32 v22, 0")
    if OPT["spl"]:
        A.e(f"s_mov_b32 s{sT2}, s{sSCR}"); A.e(f"s_mov_b32 s{sT1}, s{sFB}")
        sv = list(A.vm)
        A.e(f"s_cmp_ge_u32 s{sGI}, 12"); A.e("s_cbranch_scc1 L_sp_R")
        run(issue1_list("P", 0)[3:]); A.e("s_branch L_sp_d")
        A.label("L_sp_R"); A.vm = sv
        run(issue1_list("R", 0)[3:])
        A.label("L_sp_d")
    A.wait(vm=["row"])
    stamp(A, "row")
    for i in range(4):
        A.e(f"v_dot2c_f32_bf16 v21, s{sONE}, v{16+i}"); A.e(f"v_dot2c_f32_bf16 v22, v{16+i}, v{16+i}")
    A.e(f"v_readfirstlane_b32 s{sTAG}, v20")
    A.e("s_nop 1")
    for sh in (1, 2, 4, 8):
        A.e(f"v_add_f32_dpp v21, v21, v21 row_ror:{sh} row_mask:0xf bank_mask:0xf")
        A.e(f"v_add_f32_dpp v22, v22, v22 row_ror:{sh} row_mask:0xf bank_mask:0xf")
        A.e("s_nop 0")
    A.e(f"s_mul_i32 s{sTAG}, s{sTAG}, 1664525"); A.e(f"s_add_u32 s{sTAG}, s{sTAG}, 1013904223")
    for op in ("v_permlane16_swap_b32", "v_permlane32_swap_b32"):
        A.e("v_mov_b32 v23, v21"); A.e("v_mov_b32 v24, v22"); A.e("s_nop 1")
        A.e(f"{op} v21, v23"); A.e(f"{op} v22, v24"); A.e("s_nop 0")
        A.e("v_add_f32 v21, v21, v23"); A.e("v_add_f32 v22, v22, v24")
    A.e(f"v_mul_f32 v21, {hx(1/512)}, v21"); A.e(f"v_mul_f32 v22, {hx(1/512)}, v22")
    A.e("v_fma_f32 v22, -v21, v21, v22"); A.e("v_max_f32 v22, 0, v22")
    A.e("v_cvt_pk_bf16_f32 v16, -v21, -v21")
    A.e("v_cvt_pk_bf16_f32 v22, v22, v22"); A.e("v_lshlrev_b32 v22, 16, v22")
    A.e(f"v_add_f32 v22, {hx(1e-5)}, v22")
    A.e("v_cvt_pk_bf16_f32 v22, v22, v22"); A.e("v_lshlrev_b32 v22, 16, v22")
    A.e("v_sqrt_f32 v22, v22"); A.e(f"v_mov_b32 v19, s{sTAG}")
    A.e("v_cvt_pk_bf16_f32 v22, v22, v22"); A.e("v_lshlrev_b32 v22, 16, v22")
    A.e("v_rcp_f32 v17, v22"); A.e("v_mul_f32 v18, v22, v22")
    A.e(f"s_lshl_b32 s{sT0}, s{sROW}, 4"); A.e(f"s_add_u32 s{sT0}, s{sT0}, {STT}")
    A.e("s_mov_b64 exec, 1")
    A.e(f"buffer_store_dwordx4 v[16:19], off, {srd(SWS)}, s{sT0} sc1")
    A.e("s_mov_b64 exec, -1")
    A.e(f"s_cmp_ge_u32 s{sGI}, 8"); A.e("s_cbranch_scc1 L_nopo")
    A.e("v_mov_b32 v24, -1")
    A.e(f"s_add_u32 s{sI}, s{sHS2}, {112*1024}")
    A.e(f"buffer_store_dwordx4 v[24:27], v{LO}, {srd(SWS)}, s{sI} offen sc1")
    A.e(f"buffer_store_dwordx4 v[24:27], v{LO}, {srd(SWS)}, s{sI} offen offset:1024 sc1")
    A.label("L_nopo")
    if OPT["pre"] > 1 and not OPT["e1"]: typed_issue(list(range(1, OPT["pre"])), "b")
    A.wait(vm=[("s1", 0)])
    A.e("s_barrier")
    stamp(A, "B2")
    A.e(f"s_cmp_ge_u32 s{sGI}, 12"); A.e("s_cbranch_scc1 L_R")
    vm0, lg0 = list(A.vm), list(A.lgkm)

    Q = 24
    RAH, WD1, VE, PA = 122, 123, 124, 125
    PT = [16, 17, 18]
    K01 = [224, 228]
    VFR = [[32 + 8*i, 36 + 8*i] for i in range(4)]
    KFR = [96 + 4*i for i in range(4)]
    P = [176, 184]
    S = [192, 208]; O = 224; C = 240
    DACC = 128
    DW = [144 + 4*i for i in range(4)]; HF = [160 + 4*i for i in range(4)]
    def silu_list(acc, E, H, soff_s, imm, tag):
        o = []
        for i in range(8): o.append(f"v_mul_f32 v{E+i}, v{RS}, v{acc+i}")
        for i in range(8): o.append(f"v_exp_f32 v{E+i}, v{E+i}")
        for i in range(8): o.append(f"v_mul_f32 v{acc+i}, v{acc+i}, v{acc+8+i}")
        for i in range(8): o.append(f"v_fma_f32 v{E+i}, v{E+i}, v{SD2}, v{SD2}")
        for i in range(8): o.append(f"v_rcp_f32 v{E+i}, v{E+i}")
        for i in range(8): o.append(f"v_mul_f32 v{acc+i}, v{acc+i}, v{E+i}")
        for i in range(4): o.append(f"v_cvt_pk_bf16_f32 v{H+i}, v{acc+2*i}, v{acc+2*i+1}")
        o.append(lambda: A.vmem(f"buffer_store_dwordx4 {v(H,4)}, v{LO}, {srd(SWS)}, s{soff_s} offen offset:{imm} sc1", tag))
        return o
    def flag_store(soff):
        A.e("s_mov_b64 exec, 1")
        A.e(f"buffer_store_dword v{VE}, off, {srd(SWS)}, s{soff} sc1")
        A.e("s_mov_b64 exec, -1")
    def wg_flag(base, major, minor, wave=0):
        lb = lab("fl")
        A.e(f"s_cmp_lg_u32 s{sW}, {wave}"); A.e(f"s_cbranch_scc1 {lb}")
        A.e(f"s_lshl4_add_u32 s{sT3}, s{major}, s{minor}"); A.e(f"s_lshl_b32 s{sT3}, s{sT3}, 7"); A.e(f"s_add_u32 s{sT3}, s{sT3}, {base}")
        flag_store(sT3)
        A.label(lb)
    def floads(soffs): return [f"buffer_load_dword v{PT[i]}, v{PA}, {srd(SWS)}, s{so} offen sc1" for i, so in enumerate(soffs)]
    mark = [0]
    def one_load(wave, soffs, mask):
        lb = lab("fl")
        A.e(f"s_cmp_lg_u32 s{sW}, {wave}"); A.e(f"s_cbranch_scc1 {lb}")
        A.e(f"s_mov_b64 exec, {mask}"); run(floads(soffs)); A.e("s_mov_b64 exec, -1")
        A.label(lb)
        mark[0] = A.nvm
    def one_check(wave, soffs, mask):
        cnt = A.nvm - mark[0]
        lb = lab("ck")
        A.e(f"s_cmp_lg_u32 s{sW}, {wave}"); A.e(f"s_cbranch_scc1 {lb}")
        A.e("s_setprio 3")
        A.e(f"s_mov_b64 exec, {mask}")
        A.e(f"s_waitcnt vmcnt({cnt})")
        retry(floads(soffs), PT[:len(soffs)], lb + "r", (20, 21))
        A.e("s_mov_b64 exec, -1")
        A.e("s_setprio 0")
        A.label(lb)
    def kv_issue(slot, tag, first=False):
        so = sKO
        if first:
            A.e(f"s_mul_i32 s{sT0}, s{sKH}, {VF - KF}"); A.e(f"s_add_u32 s{sT0}, s{sT0}, s{sKB}"); A.e(f"s_max_u32 s{sT0}, s{sT0}, s{sKO}")
            so = sT0
        A.e(f"s_add_u32 m0, s{sMK}, {slot*8192}")
        A.e("s_nop 0")
        A.vmem(f"buffer_load_dwordx4 v{LO}, {srd(SWS)}, s{so} offen sc1 lds", tag)
        A.e(f"s_add_u32 s{sKO}, s{sKO}, 4096")
    def tiny(acc, sp, first): A.e(f"v_mfma_f32_4x4x4_16b_bf16 {v(acc,4)}, {v(ONES,2)}, {v(sp,2)}, {'0' if first else v(acc,4)}")
    def cs_publish(accs, G, imm):
        lb = lab("cp")
        A.e(f"s_cmp_lg_u32 s{sTQ}, 0"); A.e(f"s_cbranch_scc1 {lb}")
        for a in accs: A.e(f"v_permlane32_swap_b32 v{a}, v{a+1}")
        A.e(f"v_mov_b32 v{G+3}, s{sTAG}")
        for i, a in enumerate(accs): A.e(f"v_add_f32 v{G+i}, v{a}, v{a+1}")
        A.e(f"s_add_u32 s{sT3}, s{sCSW}, {imm}")
        A.e("s_mov_b32 exec_hi, 0")
        A.e(f"buffer_store_dwordx4 {v(G,4)}, v{LO}, {srd(SWS)}, s{sT3} offen sc1")
        A.e("s_mov_b64 exec, -1")
        A.label(lb)
    def cs_loads(G): return [f"buffer_load_dwordx4 {v(G+4*q,4)}, v{LO}, {srd(SWS)}, s{sCSR} offen offset:{1024*q} sc1" for q in range(4)]
    def cs_build(G, n):
        o = []
        for u in range(n): o += [f"v_add_f32 v{G+u}, v{G+u}, v{G+4+u}", f"v_add_f32 v{G+8+u}, v{G+8+u}, v{G+12+u}"]
        for u in range(n): o.append(f"v_add_f32 v{G+u}, v{G+u}, v{G+8+u}")
        for u in range(n): o.append(f"v_cvt_pk_bf16_f32 v{G+4+u}, v{G+u}, v{G+u}")
        for u in range(n): o.append(f"v_lshlrev_b32 v{G+4+u}, 16, v{G+4+u}")
        for u in range(n): o.append(f"v_sub_f32 v{G+4+u}, v{G+u}, v{G+4+u}")
        for u in range(n): o.append(f"v_cvt_pk_bf16_f32 v{G+u}, v{G+u}, v{G+4+u}")
        for u in range(n, 4): o.append(f"v_mov_b32 v{G+u}, 0")
        pat = "00m0000m00"
        for i, ch in enumerate(pat):
            if n == 2 and i < 2: continue
            o.append(f"v_mov_b32 v{G+4+i}, {'v%d' % NEGM if ch == 'm' else 0}")
        return o, [G + 6, G + 10, G + 4]

    def passes(typ):
        A.vm, A.lgkm = list(vm0), list(lg0)
        sd = Side(A); dq = Side(A); gq = Side(A)
        def wvm(tag):
            assert not any(getattr(f, "tag", None) == tag for f in dq.q), tag
            assert tag in A.issued, tag
            A.wait(vm=[tag])
        cur = [0]
        def rd1(n, slot, us=(0, 1, 2)):
            t, kk = n >> 2, n & 3
            assert t == cur[0]
            for u in us:
                for p in range(2):
                    if u == 0 or typ == "R": rc, off = RQ, kk*6144 + u*2048 + p*512
                    else: rc, off = RG[u-1], kk*6144 + 2048 + p*512
                    A.lds(f"ds_read_b64_tr_b16 {v(WF[3*slot+u]+2*p,2)}, v{rc} offset:{off}", "w")
        def rd2(n, slot, ts=(0, 1)):
            if n >= 32: return
            st, kk = n >> 3, n & 7
            for t in ts:
                for p in range(2):
                    off = (8 + st - cur[0])*SL + kk*4096 + p*512
                    assert 0 <= off < 65536
                    A.lds(f"ds_read_b64_tr_b16 {v(WF[2*slot+t]+2*p,2)}, v{RG[t]} offset:{off}", "w")
        def adv(regs, g):
            d = SL if (g & 3) != 3 else (-3*SL) & 0xffffffff
            for r in regs: A.e(f"v_add_u32 v{r}, {hex(d)}, v{r}")
        rd1(0, 0); rd1(1, 1)
        A.e(f"s_cmp_lg_u32 s{sKH}, 1"); A.e(f"s_cbranch_scc1 L_off_{typ}")
        A.e("s_barrier")
        A.label(f"L_off_{typ}")
        for t in range(OPT["pre"], 3): dq.add(*issue1_list(typ, t))
        gl = [f"buffer_load_dwordx4 {v(GRAN,4)}, v94, {srd(SWS)}, s{sT3} offen sc1"] + cs_loads(CS1)
        cb1, BX1 = cs_build(CS1, 3)
        for h in range(16):
            t, par = h >> 1, h & 1
            if par == 0:
                stamp(A, f"a{t}")
                if t + 3 < 8: dq.add(*issue1_list(typ, t + 3))
                elif not OPT["jit"]: dq.add(*issue2_list(t - 5))
                elif t == 5: dq.add(*issue2_list(0))
                elif t == 7: dq.add(*issue2_list(1))
            for i in range(2):
                A.lds(f"ds_read_b128 {v(X+4*(2*h+i),4)}, v{XRD+2*par+i}", "x")
            if par:
                adv(([RQ] if t < 7 else []) + RG, t); cur[0] += 1
                if t < 7: adv(range(XRD, XRD + 4), t)
            if h == 2: cs_publish([CS1, CS1 + 4, CS1 + 8], CG, 0)
            if h == 3 and OPT["tlb"]:
                lb = lab("tl")
                A.e(f"s_cmp_lg_u32 s{sW}, 1"); A.e(f"s_cbranch_scc1 {lb}")
                A.e(f"v_lshlrev_b32 v95, 17, v{LO}")
                A.e("s_mov_b64 exec, 0x1ff")
                A.e(f"buffer_load_dword v92, v95, {srd(SWS)}, 0 offen sc1")
                A.e("s_mov_b64 exec, 1")
                for sr in (SD, SO, SOUT): A.e(f"buffer_load_dword v92, off, {srd(sr)}, 0")
                A.e("s_mov_b64 exec, -1")
                A.label(lb)
            dq.pull(5 if len(dq.q) > 6 else (3 if t < 5 else (1 if (OPT["jit"] and t < 7) else 2)))
            if h == 7: A.e(f"s_lshl_b32 s{sT3}, s{sTB}, 9"); A.e(f"s_add_u32 s{sT3}, s{sT3}, {STT}")
            gsch = {0: (7, 9, 10, 11, 12), 1: (9, 10, 10, 11, 11)}[OPT["gs"]]
            for gi_, hh in enumerate(gsch):
                if hh == h: A.vmem(gl[gi_], "gran")
            if h == OPT["gc"]:
                A.wait(vm=["gran"])
                retry(gl, [GRAN + 3] + [CS1 + 4*q + 3 for q in range(4)], f"L_gr_{typ}", (92, 95))
                A.e(f"v_mul_f32 v{RS}, {hx(-LOG2E)}, v{GRAN+1}"); A.e(f"v_mov_b32 v{SD2}, v{GRAN+2}"); A.e(f"v_mov_b32 v{NEGM}, v{GRAN}")
                if typ == "R": A.lds(f"ds_write_b32 v93, v{GRAN+1}", "x")
                gq.add(*cb1)
            if h == 15: gq.flush()
            A.wait(lgkm="all")
            A.e("s_barrier")
            if h < 2:
                for i in range(2):
                    for p in range(2):
                        for u in range(3): tiny(CS1 + 4*u, WF[3*i+u] + 2*p, h == 0 and i == 0 and p == 0)
            if h == 15:
                for u in range(3):
                    acc = v((ACC1, ACCA, ACCA + 16)[u], 16)
                    if u and typ == "R": A.e(f"{MF} {acc}, {v(BX1[u],4)}, {v(CS1,4)}, {acc}")
                    else: A.e(f"{MF} {acc}, {v(CS1,4)}, {v(BX1[u],4)}, {acc}")
            for i in range(2):
                n = 2*h + i
                x = X + 4*n
                for u in range(3):
                    acc = v((ACC1, ACCA, ACCA + 16)[u], 16)
                    c = "0" if n == 0 else acc
                    w = v(WF[3*i+u], 4)
                    last = (i == 1 and u == 2)
                    if last and par == 0: wvm(("s1", t + 1) if t < 7 else ("s2", 0))
                    if u and typ == "R": A.e(f"{MF} {acc}, {v(x,4)}, {w}, {c}")
                    else: A.e(f"{MF} {acc}, {w}, {v(x,4)}, {c}")
                    if last: A.e("s_barrier")
                    if h < 15:
                        rd1(n + 2, i, (u,))
                        if not last: gq.pull(3)
                    else:
                        fi = 3*i + u
                        rd2(fi >> 1, fi >> 1, (fi & 1,))
        sd.add(f"v_mul_f32 v{T1}, s{sSC}, v{RS}", "s_nop 3")
        for i in range(16): sd.add(f"v_mul_f32 v{ACC1+i}, v{T1}, v{ACC1+i}")
        for i in range(8): sd.add(f"v_cvt_pk_bf16_f32 v{ACC1+i}, v{ACC1+2*i}, v{ACC1+2*i+1}")
        def st(txt, tag, pre=None):
            def f():
                if pre: A.e(pre)
                A.vmem(txt, tag)
            f.store = tag
            return f
        DRAIN = lambda: None
        sd.q.insert(len(sd.q) - 4, st(f"buffer_store_dwordx4 {v(ACC1,4)}, v{LO}, {srd(SWS)}, s{sHSO} offen sc1", "qk"))
        sd.add(st(f"buffer_store_dwordx4 {v(ACC1+4,4)}, v{LO}, {srd(SWS)}, s{sHSO} offen sc1", "qk", f"s_add_u32 s{sHSO}, s{sHSO}, 65536"))
        RVR = [X, X + 4, ACC1 + 8, ACC1 + 12]
        GATE = lambda: None
        sd.add(GATE)
        if typ == "R":
            def rvread():
                for q in range(4): A.lds(f"ds_read_b128 {v(RVR[q],4)}, v{T3} offset:{32*q}", "rv")
            sd.add(lambda: A.wait(lgkm=["rv"]))
            for t in range(2):
                a = ACCA + 16*t
                for f in range(2):
                    for i in range(8): sd.add(f"v_mul_f32 v{a+8*f+i}, v{RVR[2*f+(i>>2)]+(i&3)}, v{a+8*f+i}")
                    for i in range(4): sd.add(f"v_cvt_pk_bf16_f32 v{a+8*f+i}, v{a+8*f+2*i}, v{a+8*f+2*i+1}")
                    sd.add(st(f"buffer_store_dwordx4 {v(a+8*f,4)}, v{T0}, {srd(SWS)}, s{sHS2} offen offset:{256*f} sc1", "qk",
                              f"s_add_u32 s{sHS2}, s{sHS2}, {4*65536}" if (t == 1 and f == 0) else None))
        else:
            for t in range(2):
                sl_ = silu_list(ACCA + 16*t, X, ACCA + 16*t + 8, sHS2, t*1024, "ha")
                sl_[-1].store = "ha"
                sd.add(*sl_)
        sd.add(DRAIN, "s_nop 1")
        V0 = VFR[0][0]
        sd.add(f"v_and_b32 v{V0}, {27*16}, v{LO}", f"v_cmp_eq_u32 vcc, 0x100, v{V0}\ns_nop 1\nv_cndmask_b32 v{V0}, 0, v{ONES}, vcc")
        for i in range(1, 32): sd.add(f"v_mov_b32 v{V0+i}, v{V0}")
        def cost(x): return 8 if (isinstance(x, str) and x.startswith(("v_exp", "v_rcp"))) else (16 if callable(x) else 4)
        curblk = [0]
        stq = []
        def pullc(budget, novm=False):
            while sd.q and budget > 0:
                x = sd.q[0]
                if x is GATE:
                    if curblk[0] < 1: return
                    sd.q.pop(0); continue
                if x is DRAIN:
                    if stq: return
                    sd.q.pop(0); continue
                if getattr(x, "store", False):
                    stq.append(sd.q.pop(0)); continue
                if novm and callable(x): return
                budget -= cost(x); sd.pull(1)
        def pullst(n):
            for _ in range(n):
                if stq: stq.pop(0)()
        def pending(tag): return any(getattr(x, "store", None) == tag for x in sd.q + stq)
        CG2 = X + 12
        G2 = X + 16
        gl2 = cs_loads(G2)
        cb2, BX2 = cs_build(G2, 2)
        fq = OPT["fq"] if typ == "P" else OPT["fqr"]
        for blk in range(11):
            curblk[0] = blk
            ks = list(range(3*blk, min(3*blk + 3, 32)))
            stamp(A, f"b{blk}")
            if blk == 1 and typ == "R":
                while sd.q[0] is not GATE:
                    curblk[0] = 0; pullc(4); curblk[0] = 1
                rvread()
            if blk == 2:
                cs_publish(CS2, CG2, 262144)
                A.e(f"s_add_u32 s{sCSR}, s{sCSR}, 262144")
                A.e(f"v_mov_b32 v{VE}, s{sTAG}"); A.e(f"v_lshlrev_b32 v{PA}, 3, v{LO}")
                A.e(f"v_add_u32 v{RAH}, s{sRAH}, v{LO}"); A.e(f"v_add_u32 v{WD1}, {8192-1024}, v{WD0}")
            if blk == fq + 1: wg_flag(F1, sGI, sRB)
            if blk == OPT["fa"] + 1 and typ == "P": wg_flag(F2, sRB, sGI)
            if OPT["jit"] and blk == 0: dq.add(*issue2_list(2))
            if blk == OPT["i3"]: dq.add(*issue2_list(3))
            if blk == 6:
                for x in gl2: dq.add(lambda x=x: A.vmem(x, "gran2"))
            if 3*blk + 3 < 32 and 8 + ((3*blk + 3) >> 3) > cur[0]:
                adv(RG, cur[0]); cur[0] += 1
            if blk == OPT["pk"] + 1:
                A.vmem(f"buffer_load_dwordx4 {v(Q,4)}, v{LO}, {srd(SWS)}, s{sVO} offen sc1", "q")
                kv_issue(0, ("kv", 0), True)
                dq.add(lambda: A.vmem(f"buffer_load_dwordx4 {v(K01[0],4)}, v{LO}, {srd(SWS)}, s{sKB} offen sc1", "q"))
                dq.add(lambda: None)
                dq.add(lambda: A.vmem(f"buffer_load_dwordx4 {v(K01[1],4)}, v{LO}, {srd(SWS)}, s{sKB} offen offset:1024 sc1", "q"))
                dq.add(lambda: kv_issue(1, ("kv", 1)))
            rvb = OPT["rvb"] if typ == "P" else OPT["rvr"]
            if blk == 0: rvb = OPT["rv0"]
            early = len(stq) > 0
            if early: pullst(1)
            else: dq.pull(1)
            pullc(rvb // 2)
            dq.pull(1)
            pullc(rvb // 2)
            if not early or OPT["spp"] > 1: pullst(1)
            if blk == fq:
                assert not pending("qk")
                A.wait(vm=["qk"])
            if blk == OPT["fa"] and typ == "P":
                assert not pending("ha")
                A.wait(vm=["ha"])
            if blk == 9:
                A.wait(vm=["gran2"])
                retry(gl2, [G2 + 4*q + 3 for q in range(4)], f"L_g2_{typ}", (X + 12, X + 13))
                sd.add(*cb2)
            if blk == OPT["pk"] - 1: one_load(0, [sP0, sP1, sP2], "0xffff")
            if blk == OPT["pk"]:
                stamp(A, "bp1")
                one_check(0, [sP0, sP1, sP2], "0xffff")
                stamp(A, "p1")
            if blk == 10:
                pullc(10000)
                assert not stq
            A.wait(lgkm="all")
            A.e("s_barrier")
            if blk < 2:
                for i in range(3 if blk == 0 else 1):
                    for p in range(2):
                        for t in range(2): tiny(CS2[t], WF[2*i+t] + 2*p, blk == 0 and i == 0 and p == 0)
                        A.e("s_nop 0")
            if blk == 10:
                for t in range(2): A.e(f"{MF} {v(ACCB+16*t,16)}, {v(G2,4)}, {v(BX2[t],4)}, {v(ACCB+16*t,16)}")
            bst = {0: 1, 3: 2, 6: 3}.get(blk)
            for i, n in enumerate(ks):
                x = X + 4*n
                for t in range(2):
                    acc = v(ACCB + 16*t, 16)
                    c = "0" if n == 0 else acc
                    last = (i == len(ks) - 1 and t == 1)
                    if last and bst: wvm(("s2", bst))
                    if last and blk == 10: A.wait(vm=[("kv", 0)])
                    A.e(f"{MF} {acc}, {v(WF[2*i+t],4)}, {v(x,4)}, {c}")
                    if last: A.e("s_barrier")
                    rd2(n + 3, i, (t,))
                    if not last: pullc(OPT["m2b"], True)
        dq.flush()
        assert not sd.q
        stamp(A, "p2end")
        endvm.append(list(A.vm))
        if typ == "P": A.e("s_branch L_A_done")
    endvm = []
    passes("P")
    A.label("L_R"); passes("R")
    assert all(x == endvm[0] for x in endvm), endvm
    A.label("L_A_done")
    if OPT["pk"] == 10:
        A.vmem(f"buffer_load_dwordx4 {v(Q,4)}, v{LO}, {srd(SWS)}, s{sVO} offen sc1", "q")
        A.vmem(f"buffer_load_dwordx4 {v(K01[0],4)}, v{LO}, {srd(SWS)}, s{sKB} offen sc1", "q")
        A.vmem(f"buffer_load_dwordx4 {v(K01[1],4)}, v{LO}, {srd(SWS)}, s{sKB} offen offset:1024 sc1", "q")
        A.e(f"s_lshl_b32 s{sT1}, s{sTQ}, 10")
        A.e(f"s_add_u32 s{sT0}, s{sKB}, s{sT1}")
        A.e(f"s_cmp_eq_u32 s{sKH}, 1"); A.e("s_cbranch_scc1 L_nokv0")
        A.e(f"s_sub_u32 m0, s{sT1}, 0"); A.e(f"s_add_u32 s{sT2}, s{sT0}, 1024")
        A.e(f"buffer_load_dwordx4 v{LO}, {srd(SWS)}, s{sT2} offen sc1 lds")
        A.e(f"s_add_u32 s{sT0}, s{sT0}, {VF - KF - 1024}"); A.e(f"s_add_u32 s{sT2}, s{sKB}, {VF - KF}"); A.e(f"s_max_u32 s{sT0}, s{sT0}, s{sT2}")
        A.e(f"s_add_u32 m0, s{sT1}, 4096"); A.e("s_nop 0")
        A.e(f"buffer_load_dwordx4 v{LO}, {srd(SWS)}, s{sT0} offen sc1 lds")
        A.label("L_nokv0")
        A.e(f"s_add_u32 s{sKO}, s{sKO}, 4096")
        kv_issue(1, ("kv", 1))
    A.e(f"s_lshr_b32 s{sP0}, s{sTM}, 1"); A.e(f"s_lshl_b32 s{sP0}, s{sP0}, 11"); A.e(f"s_add_u32 s{sP0}, s{sP0}, {F2}"); A.e(f"s_add_u32 s{sP1}, s{sP0}, 32768")
    if OPT["ss"] == 3: one_load(4, [sP0], "0xfff")
    for i in range(4): A.e(f"v_mov_b32 v{96+i}, 0")
    A.e("s_nop 2")
    Z = v(96, 4)
    XRES, XA = 28, 19
    sOO = sXO
    A.e(f"s_lshl_b32 s{sT2}, s{sW}, 13")
    A.e(f"v_and_b32 v{T0}, 0x380, v{LO}"); A.e(f"v_and_b32 v{XA}, 0x70, v{LO}")
    A.e(f"v_lshl_add_u32 v{XA}, v{T0}, 3, v{XA}"); A.e(f"v_add_u32 v{XA}, s{sT2}, v{XA}")
    A.e(f"s_lshl_b32 s{sOO}, s{sTM}, 16"); A.e(f"s_lshl_b32 s{sT0}, s{sTN}, 7"); A.e(f"s_add_u32 s{sOO}, s{sOO}, s{sT0}")
    sl = silu_list(ACCB, 112, ACCB + 8, sHS3, 0, "hb") + silu_list(ACCB + 16, 112, ACCB + 24, sHS3, 1024, "hb")
    for k, r in enumerate((128, 144, 160, 176)):
        run(sl[10*k:10*k+10]); A.e(f"{MF} {v(r,16)}, {Z}, {Z}, 0")
    run(sl[40:85])
    A.wait(vm=["q"])
    for b in range(2):
        A.e(f"{MF} {v(S[b],16)}, {v(K01[b],4)}, {v(Q,4)}, 0"); run(sl[85+4*b:89+4*b])
    run(sl[93:])
    A.e(f"v_max_f32 v{T0}, v{S[0]}, v{S[0]+1}")
    for i in range(2, 32, 2): A.e(f"v_max3_f32 v{T0}, v{T0}, v{S[0]+i}, v{S[0]+i+1}")
    A.e(f"v_mov_b32 v{T1}, v{T0}"); A.e(f"s_mov_b32 s{sI}, 0"); A.e("s_nop 0")
    A.e(f"v_permlane32_swap_b32 v{T0}, v{T1}"); A.e("s_nop 0")
    A.e(f"v_max_f32 v{T0}, v{T0}, v{T1}")
    A.e(f"v_sub_f32 v{C}, {hx(-80.0)}, v{T0}")
    for i in range(1, 16): A.e(f"v_mov_b32 v{C+i}, v{C}")
    A.e("s_nop 1")
    A.e(f"{MF} {v(S[0],16)}, {v(K01[0],4)}, {v(Q,4)}, {v(C,16)}")
    if OPT["pk"] == 10: A.e("s_waitcnt vmcnt(3)")
    A.e("s_barrier")
    A.e("s_setprio 3")
    A.e(f"{MF} {v(O,16)}, {Z}, {Z}, 0")
    stamp(A, "BB0")
    A.e("s_setprio 0")

    def w_issue(slot, tag):
        A.e(f"s_add_u32 m0, s{sMW}, {slot*16384}")
        A.e("s_nop 0")
        A.vmem(f"buffer_load_dwordx4 v{WD0}, {srd(SCUR)}, s{sWSO} offen lds", tag)
        A.vmem(f"buffer_load_dwordx4 v{WD1}, {srd(SCUR)}, s{sWSO} offen offset:1024 lds", tag)
        A.e(f"s_add_u32 s{sWSO}, s{sWSO}, {128*1024}")
    def h_issue(slot, tag):
        A.e(f"s_add_u32 m0, s{sMH}, {slot*16384}")
        A.e("s_nop 0")
        A.vmem(f"buffer_load_dwordx4 v{LO}, {srd(SWS)}, s{sAO} offen sc1 lds", tag)
        A.vmem(f"buffer_load_dwordx4 v{LO}, {srd(SWS)}, s{sAO2} offen offset:1024 sc1 lds", tag)
        A.e(f"s_add_u32 s{sAO}, s{sAO}, 8192"); A.e(f"s_add_u32 s{sAO2}, s{sAO2}, 8192")
    def wait_oldest(tags, extra=""):
        n = None
        for tg in tags:
            idx = [k for k, t_ in enumerate(A.vm) if t_ == tg]
            if not idx: continue
            last = idx[0]
            while last + 1 < len(A.vm) and A.vm[last + 1] == tg: last += 1
            n = len(A.vm) - 1 - last
            A.vm = A.vm[last+1:]
        parts = ([f"vmcnt({n})"] if n is not None else []) + ([extra] if extra else [])
        if parts: A.e("s_waitcnt " + " ".join(parts))
    RET = 78 if not INSTR else 98
    RET2 = 100
    SS = OPT["ss"]
    V63 = 88
    def side_reads(pi):
        pp = pi & 3
        for i in range(4):
            for p in range(2): A.e(f"ds_read_b64_tr_b16 {v(DW[i]+2*p,2)}, v{RAW} offset:{pp*16384 + i*2048 + p*1024}")
            A.e(f"ds_read_b128 {v(HF[i],4)}, v{RAH} offset:{pp*16384 + i*2048}")
    def w_next(n):
        if n == SS + 14:
            for i in range(4): A.e(f"s_mov_b32 s{SCUR+i}, s{SO+i}")
            A.e(f"s_lshl_b32 s{sWSO}, s{sW}, 14"); A.e(f"s_lshl_b32 s{sT2}, s{sTN}, 7"); A.e(f"s_add_u32 s{sWSO}, s{sWSO}, s{sT2}")
        w_issue(n & 3, ("w", n))
    def prelude(pi):
        pp = pi & 3
        side = pi >= SS
        def reads():
            for i in range(4): A.e(f"ds_read_b128 {v(KFR[i],4)}, v{LO} offset:{pp*8192 + i*1024}")
            A.e(f"s_mov_b64 exec, s[{sMSK}:{sMSK+1}]")
            for i in range(4):
                for f in range(2): A.e(f"ds_read_b128 {v(VFR[i][f],4)}, v{LO} offset:{pp*8192 + 4096 + i*1024 + f*256}")
            A.e("s_mov_b64 exec, -1")
            if side: side_reads(pi)
        n = pi + 3
        ca = SS - 3
        if pi == ca + 1:
            for q in range(SS, n): h_issue(q & 3, ("h", q))
        reads()
        if pi == ca: one_check(4, [sP0], "0xfff")
        if pi == 2: wg_flag(F2 + 32768, sRB, sGI)
        if pi == SS + 2: one_check(4, [sP1], "0xffff")
        if pi == ca - 1: one_load(4, [sP0], "0xfff")
        if pi == SS + 1: one_load(4, [sP1], "0xffff")
        if pi == 0: kv_issue(2, ("kv", 2))
        if n <= 16: kv_issue(n & 3, ("kv", n))
        if pi > ca and n < SS + 14: h_issue(n & 3, ("h", n))
        if n >= SS: w_next(n)
        if n >= SS + 14:
            A.e(f"s_add_u32 m0, s{sMH}, {(n & 3)*16384}")
            A.e(f"s_add_u32 s{sT0}, s{sWSO}, {128*1024}")
            A.vmem(f"buffer_load_dwordx4 v{WD0}, {srd(SCUR)}, s{sT0} offen lds", ("w", n + 2))
            A.vmem(f"buffer_load_dwordx4 v{WD1}, {srd(SCUR)}, s{sT0} offen offset:1024 lds", ("w", n + 2))
        if pi == 13:
            A.vmem(f"buffer_load_dwordx4 {v(XRES,4)}, v{XA}, {srd(SX)}, s{sOO} offen", "xres")
        if OPT["wow"] and pi in (9, 10, 11):
            m = pi - 8
            if SS + 14 + m > 18:
                A.e(f"s_lshl_b32 s{sT0}, s{sW}, 14"); A.e(f"s_lshl_b32 s{sT1}, s{sTN}, 7"); A.e(f"s_add_u32 s{sT0}, s{sT0}, s{sT1}")
                A.e(f"s_add_u32 s{sT0}, s{sT0}, {m*128*1024}")
                A.vmem(f"buffer_load_dwordx4 {v(68,4)}, v{WD0}, {srd(SO)}, s{sT0} offen", "pf")
                A.vmem(f"buffer_load_dwordx4 {v(68,4)}, v{WD1}, {srd(SO)}, s{sT0} offen offset:1024", "pf")
        if pi == 14: A.wait(vm=[("kv", 16)])
        if pi == 15:
            A.e("s_setprio 3")
            for i in range(8): A.e(f"v_mov_b32 v{V63+i}, v{VFR[0][0]}")
            A.e("s_setprio 0")
            A.e(f"s_mov_b64 exec, s[{sMSK}:{sMSK+1}]")
            for f in range(2): A.e(f"ds_read_b128 {v(V63+4*f,4)}, v{LO} offset:{4096 + f*256}")
            A.e("s_mov_b64 exec, -1")
        need = [("h", pi + 1), ("w", pi + 1)]
        if pi == 1: A.wait(vm=["hb"])
        A.wait(vm=[("kv", pi + 1)] + [t_ for t_ in need if t_ in A.vm[-5:] or pi == 15])
        A.e("s_waitcnt lgkmcnt(0)")
        if pi == 15: A.e(f"s_cmp_eq_u32 s{sKH}, 1")
        else: A.e(f"s_cmp_eq_u32 s{sKH}, 2")
        A.e(f"s_call_b64 s[{RET}:{RET+1}], L_burst")
        A.vm = A.vm[-5:]
        if pi in (0, 1, 2, 3, 7, 11) and INSTR:
            A.e("s_setprio 3"); stamp(A, f"it{pi >> 2}" if pi >= 3 else f"ph{pi}"); A.e("s_setprio 0")
    for pi in range(16): prelude(pi)
    A.e("s_setprio 1")
    stamp(A, "drain")
    for f in range(2): A.e(f"{MF} {v(O,16)}, {v(V63+4*f,4)}, {v(P[1]+4*f,4)}, {v(O,16)}")
    side_reads(16)
    A.e(f"s_mul_i32 s{sT0}, s{sTBq}, 144"); A.e(f"s_add_u32 s{sT0}, s{sT0}, s{sHD}"); A.e(f"s_lshl_b32 s{sT0}, s{sT0}, 10")
    A.e(f"s_add_u32 s{sT0}, s{sT0}, {ACTF + 112*1024}")
    A.e(f"s_bfe_u32 s{sT1}, s{sW}, 0x10001"); A.e(f"s_lshl1_add_u32 s{sT1}, s{sTM}, s{sT1}"); A.e(f"s_mul_i32 s{sAO}, s{sT1}, {144*1024}")
    A.e(f"s_and_b32 s{sT2}, s{sW}, 1")
    A.e(f"v_mov_b32 v{T1}, {hx(2.0**100)}")
    A.e(f"s_mov_b32 s{sFB}, 0")
    A.e(f"v_rcp_f32 v{T3}, v{O+8}")
    A.e(f"v_mov_b32 v{T0}, v{O+8}")
    for i in range(8): A.e(f"v_fma_f32 v{T0}, v{O+i}, 0, v{T0}")
    A.e(f"v_cmp_nlt_f32 vcc, v{T0}, v{T1}")
    A.e("s_nop 3")
    A.e("s_cbranch_vccnz L_fallback")
    A.label("L_fin")
    for i in range(8): A.e(f"v_mul_f32 v{O+i}, v{O+i}, v{T3}")
    for i in range(4): A.e(f"v_cvt_pk_bf16_f32 v{P[0]+i}, v{O+2*i}, v{O+2*i+1}")
    A.e(f"v_min_u32 v{P[0]}, -2, v{P[0]}")
    A.e(f"buffer_store_dwordx4 {v(P[0],4)}, v{LO}, {srd(SWS)}, s{sT0} offen sc1")
    assert SS == 3
    OF, WOF, ACC2 = 32, 192, 64
    sO = [sAO, sAO2, sP0, sP1]
    A.e(f"s_lshl1_add_u32 s{sT1}, s{sKH}, s{sT2}"); A.e(f"s_lshl_b32 s{sT1}, s{sT1}, 11"); A.e(f"s_add_u32 s{sAO}, s{sAO}, s{sT1}")
    A.e(f"s_add_u32 s{sAO}, s{sAO}, {ACTF + 112*1024}")
    for m in range(1, 4): A.e(f"s_add_u32 s{sO[m]}, s{sAO}, {m*8192}")
    def oload(k): return f"buffer_load_dwordx4 {v(OF+4*k,4)}, v{LO}, {srd(SWS)}, s{sO[k>>1]} offen offset:{(k&1)*1024} sc1"
    if OPT["ol"] == 0:
        for k in range(8): A.e(oload(k))
    for i in range(4):
        A.e(f"s_waitcnt lgkmcnt({9 - 3*i})")
        A.e(f"{MF} {v(DACC,16)}, {v(DW[i],4)}, {v(HF[i],4)}, {v(DACC,16)}")
    RW = [110, 111, 100, 101]
    A.e(f"s_lshl_b32 s{sT1}, s{sT2}, 12")
    A.e(f"v_add_u32 v{RW[0]}, s{sT1}, v{RAW}"); A.e(f"v_xor_b32 v{RW[1]}, 64, v{RW[0]}")
    A.e(f"v_add_u32 v{RW[2]}, 0x10000, v{RW[0]}"); A.e(f"v_add_u32 v{RW[3]}, 0x10000, v{RW[1]}")
    A.e("s_waitcnt vmcnt(%d)" % (9 if OPT["ol"] == 0 else 1))
    A.e("s_barrier")
    stamp(A, "f3")
    if OPT["ol"] == 1:
        for k in range(8): A.e(oload(k))
    for k in range(8):
        m, e = k >> 1, k & 1
        for tt in range(2):
            for p in range(2):
                A.e(f"ds_read_b64_tr_b16 {v(WOF+8*k+4*tt+2*p,2)}, v{RW[2*(m>>1)+tt]} offset:{((17+(m&1))&3)*16384 + e*2048 + p*1024}")
    L, T2, TK = 102, 103, 99
    A.e(f"v_lshrrev_b32 v{L}, 4, v{LO}")
    A.e(f"v_lshrrev_b32 v{TK}, 10, v{XA}")
    A.e(f"v_and_b32 v{T2}, 7, v{L}")
    A.e(f"v_and_b32 v{T0}, 31, v{L}"); A.e(f"v_lshrrev_b32 v{T1}, 5, v{L}")
    A.e(f"v_xor_b32 v{T1}, v{T1}, v{T2}")
    A.e(f"v_lshlrev_b32 v{T0}, 8, v{T0}")
    A.e(f"s_lshr_b32 s{sT0}, s{sW}, 1"); A.e(f"s_lshl_b32 s{sT0}, s{sT0}, 13")
    A.e(f"s_lshl_b32 s{sT2}, s{sT2}, 7"); A.e(f"s_add_u32 s{sT0}, s{sT0}, s{sT2}")
    A.e(f"v_add_u32 v{T0}, s{sT0}, v{T0}")
    A.e(f"v_lshl_add_u32 v104, v{T1}, 4, v{T0}")
    A.e(f"v_xor_b32 v80, 0x80, v104"); A.e(f"v_add_u32 v80, {81920}, v80")
    for q in range(1, 4): A.e(f"v_xor_b32 v{104+q}, {32*q}, v104"); A.e(f"v_xor_b32 v{80+q}, {32*q}, v80")
    A.e(f"v_and_b32 v{T1}, 7, v{TK}")
    A.e(f"v_lshlrev_b32 v{T2}, 1, v{T2}"); A.e(f"v_xor_b32 v{T2}, v{T2}, v{T1}")
    A.e(f"v_lshlrev_b32 v{T0}, 8, v{TK}")
    A.e(f"v_lshl_add_u32 v108, v{T2}, 4, v{T0}"); A.e("v_xor_b32 v109, 16, v108")
    A.e(f"v_add_u32 v84, {81920}, v108"); A.e(f"v_add_u32 v85, {81920}, v109")
    for i in range(4):
        A.e(f"v_lshlrev_b32 v{112+2*i}, 16, v{XRES+i}"); A.e(f"v_and_b32 v{113+2*i}, 0xffff0000, v{XRES+i}")
    A.e("s_waitcnt lgkmcnt(0)")
    for k in range(8):
        A.e(f"s_waitcnt vmcnt({7-k})")
        A.label(f"L_oc{k}")
        A.e(f"v_cmp_eq_u32 vcc, -1, v{OF+4*k}")
        A.e("s_nop 1")
        A.e(f"s_cbranch_vccz L_ok{k}")
        if OPT["lp"]: A.e(f"s_add_u32 s{sT3}, s{sO[k>>1]}, {(k&1)*1024 + 1008}")
        A.e(f"s_call_b64 s[{RET2}:{RET2+1}], L_refresh")
        A.e(f"s_cbranch_scc0 L_oc{k}")
        A.label(f"L_ok{k}")
        A.e(f"{MF} {v(DACC,16)}, {v(WOF+8*k,4)}, {v(OF+4*k,4)}, {v(DACC,16)}")
        A.e(f"{MF} {v(ACC2,16)}, {v(WOF+8*k+4,4)}, {v(OF+4*k,4)}, {'0' if k == 0 else v(ACC2,16)}")
    stamp(A, "p3")
    A.e("s_nop 10")
    for q in range(4): A.e(f"ds_write_b128 v{104+q}, {v(DACC+4*q,4)}")
    for q in range(4): A.e(f"ds_write_b128 v{80+q}, {v(ACC2+4*q,4)}")
    A.e("s_waitcnt lgkmcnt(0)")
    A.e("s_barrier")
    stamp(A, "cbar")
    for w in range(4):
        a0, a1 = (108, 109) if w < 2 else (84, 85)
        A.e(f"ds_read_b128 {v(32+8*w,4)}, v{a0} offset:{(w&1)*16384}")
        A.e(f"ds_read_b128 {v(36+8*w,4)}, v{a1} offset:{(w&1)*16384}")
    for w in range(4):
        A.e(f"s_waitcnt lgkmcnt({6-2*w})")
        for i in range(8): A.e(f"v_add_f32 v{112+i}, v{112+i}, v{32+8*w+i}")
    for i in range(4): A.e(f"v_cvt_pk_bf16_f32 v{XRES+i}, v{112+2*i}, v{113+2*i}")
    A.e(f"buffer_store_dwordx4 {v(XRES,4)}, v{XA}, {srd(SOUT)}, s{sOO} offen{('', ' sc1', ' nt', ' sc0 sc1')[OPT['ost']]}")
    A.e(f"s_or_b32 s{sT0}, s2, s{sW}"); A.e(f"s_cmp_lg_u32 s{sT0}, 0"); A.e("s_cbranch_scc1 L_noep")
    A.e(f"s_mov_b32 s{sT0}, {EPOCH}")
    flag_store(sT0)
    A.label("L_noep")
    if SPIN:
        A.label("L_spin")
        A.e("s_memrealtime s[76:77]"); A.e("s_waitcnt lgkmcnt(0)")
        A.e("s_sub_u32 s76, s76, s74"); A.e(f"s_cmp_lt_u32 s76, {OPT.get('T', 6000)}"); A.e("s_cbranch_scc1 L_spin")
    if INSTR:
        A.e("s_waitcnt vmcnt(0)")
        stamp(A, "end")
        A.e("s_memrealtime s[98:99]"); A.e("s_waitcnt lgkmcnt(0)")
        A.e(f"s_lshl_b32 s{sT0}, s2, 3"); A.e(f"s_add_u32 s{sT0}, s{sT0}, s{sW}"); A.e(f"s_lshl_b32 s{sT0}, s{sT0}, 8")
        A.e(f"s_add_u32 s{sT0}, s{sT0}, {PROF}")
        A.e("v_writelane_b32 v127, s74, 0"); A.e("v_writelane_b32 v127, s98, 1")
        A.e(f"v_writelane_b32 v127, s{sSPIN}, 2"); A.e(f"v_writelane_b32 v127, s{sFB}, 3")
        A.e(f"v_lshrrev_b32 v{T0}, 2, v{LO}")
        A.e(f"buffer_store_dword v127, v{T0}, {srd(SWS)}, s{sT0} offen")
    A.e("s_endpgm")
    A.raw("    .p2align 6"); A.e("s_nop 0")
    A.label("L_burst")
    A.e("s_barrier")
    for i in range(4):
        b = i & 1; nb = b ^ 1
        e = [f"v_exp_f32 v{S[b]+j}, v{S[b]+j}" for j in range(16)]
        c = [f"v_cvt_pk_bf16_f32 v{P[b]+j}, v{S[b]+2*j}, v{S[b]+2*j+1}" for j in range(8)]
        qk = f"{MF} {v(S[nb],16)}, {v(KFR[i],4)}, {v(Q,4)}, {v(C,16)}"
        pv0 = f"{MF} {v(O,16)}, {v(VFR[i][0],4)}, {v(P[nb],4)}, {v(O,16)}"
        pv1 = f"{MF} {v(O,16)}, {v(VFR[i][1],4)}, {v(P[nb]+4,4)}, {v(O,16)}"
        sm = f"{MF} {v(DACC,16)}, {v(DW[i],4)}, {v(HF[i],4)}, {v(DACC,16)}"
        run(e[0:4] + [qk] + e[4:10] + [pv0] + e[10:16] + [pv1] + c + [sm])
    A.e("s_waitcnt vmcnt(5)")
    A.e("s_cbranch_scc1 L_bret")
    A.e("s_barrier")
    A.label("L_bret")
    A.e(f"s_setpc_b64 s[{RET}:{RET+1}]")
    A.label("L_refresh")
    if OPT["lp"]:
        A.e("s_mov_b64 exec, 1")
        A.label("L_lp")
        A.e(f"buffer_load_dword v{T0}, off, {srd(SWS)}, s{sT3} sc1")
        A.e(f"s_max_u32 s{sSPIN}, s{sSPIN}, 1"); A.e(f"s_sub_u32 s{sSPIN}, s{sSPIN}, 1")
        A.e("s_waitcnt vmcnt(0)")
        A.e(f"v_cmp_eq_u32 vcc, -1, v{T0}")
        A.e(f"s_cmp_eq_u32 s{sSPIN}, 0"); A.e("s_cbranch_scc1 L_lpo")
        A.e("s_cbranch_vccnz L_lp")
        A.label("L_lpo")
        A.e("s_mov_b64 exec, -1")
    else:
        A.e("s_waitcnt vmcnt(0)")
        A.e("s_sleep 1")
    for k in range(8):
        A.e(f"v_cmp_eq_u32 vcc, -1, v{OF+4*k}")
        A.e("s_nop 1")
        A.e(f"s_cbranch_vccz L_rf{k}")
        A.e(oload(k))
        A.label(f"L_rf{k}")
    A.e("s_waitcnt vmcnt(0)")
    A.e(f"s_max_u32 s{sSPIN}, s{sSPIN}, 1"); A.e(f"s_sub_u32 s{sSPIN}, s{sSPIN}, 1")
    A.e(f"s_cmp_eq_u32 s{sSPIN}, 0")
    A.e(f"s_setpc_b64 s[{RET2}:{RET2+1}]")
    A.label("L_fallback")
    A.e(f"s_mov_b32 s{sFB}, 1"); A.e(f"s_mov_b32 s{sI}, 0")
    A.e(f"s_mov_b32 s{sVO}, s{sKB}")
    A.e(f"v_mov_b32 v{T0}, 0xff800000")
    A.label("L_maxloop")
    A.e(f"buffer_load_dwordx4 {v(KFR[0],4)}, v{LO}, {srd(SWS)}, s{sVO} offen sc1"); A.e("s_waitcnt vmcnt(0)")
    A.e(f"{MF} {v(S[0],16)}, {v(KFR[0],4)}, {v(Q,4)}, 0")
    A.e("s_nop 7"); A.e("s_nop 3")
    for i in range(0, 16, 2): A.e(f"v_max3_f32 v{T0}, v{T0}, v{S[0]+i}, v{S[0]+i+1}")
    A.e(f"s_add_u32 s{sVO}, s{sVO}, 1024")
    A.e(f"s_add_u32 s{sI}, s{sI}, 1"); A.e(f"s_cmp_lt_u32 s{sI}, 64"); A.e("s_cbranch_scc1 L_maxloop")
    A.e(f"v_mov_b32 v{T1}, v{T0}"); A.e("s_nop 1")
    A.e(f"v_permlane32_swap_b32 v{T0}, v{T1}"); A.e("s_nop 0")
    A.e(f"v_max_f32 v{T0}, v{T0}, v{T1}")
    for i in range(16): A.e(f"v_sub_f32 v{C+i}, 0, v{T0}")
    for i in range(16): A.e(f"v_mov_b32 v{O+i}, 0")
    A.e(f"s_mov_b32 s{sI}, 0")
    A.label("L_fbloop")
    A.e(f"s_add_u32 s{sVO}, s{sKB}, {VF-KF}")
    A.e(f"buffer_load_dwordx4 {v(KFR[0],4)}, v{LO}, {srd(SWS)}, s{sKB} offen sc1")
    A.e(f"s_mov_b64 exec, s[{sMSK}:{sMSK+1}]")
    A.e(f"buffer_load_dwordx4 {v(VFR[0][0],4)}, v{LO}, {srd(SWS)}, s{sVO} offen sc1")
    A.e(f"buffer_load_dwordx4 {v(VFR[0][1],4)}, v{LO}, {srd(SWS)}, s{sVO} offen offset:256 sc1")
    A.e("s_mov_b64 exec, -1")
    A.e("s_waitcnt vmcnt(0)")
    A.e(f"{MF} {v(S[0],16)}, {v(KFR[0],4)}, {v(Q,4)}, {v(C,16)}")
    A.e("s_nop 7"); A.e("s_nop 3")
    for i in range(16): A.e(f"v_exp_f32 v{S[0]+i}, v{S[0]+i}")
    A.e("s_nop 0")
    for i in range(8): A.e(f"v_cvt_pk_bf16_f32 v{P[0]+i}, v{S[0]+2*i}, v{S[0]+2*i+1}")
    A.e("s_nop 1")
    for f in range(2): A.e(f"{MF} {v(O,16)}, {v(VFR[0][f],4)}, {v(P[0]+4*f,4)}, {v(O,16)}")
    A.e(f"s_add_u32 s{sKB}, s{sKB}, 1024")
    A.e(f"s_add_u32 s{sI}, s{sI}, 1"); A.e(f"s_cmp_lt_u32 s{sI}, 64"); A.e("s_cbranch_scc1 L_fbloop")
    A.e("s_nop 7"); A.e("s_nop 3")
    A.e(f"v_rcp_f32 v{T3}, v{O+8}"); A.e("s_nop 0")
    A.e("s_branch L_fin")
    A.label("L_end")
    A.e("s_endpgm")
    return A

HEADER = open("parallel_sum__softmax_full_mha__swiglu_ffn__prompt.s.ref").read().split("; Override")[0]
def build():
    A = gen()
    body = A.text()
    probs = check_hazards(body)
    out = HEADER + "; @launch grid=(256,1,1) block=(512,1,1) lds=163840\n" + '.amdgcn_target "amdgcn-amd-amdhsa--gfx950"\n' + body
    out += KD.format(name=NAME, nvgpr=256, nsgpr=102, accum=256)
    return out, probs

if __name__ == "__main__":
    if len(sys.argv) > 2 and sys.argv[2].startswith("spin:"): SPIN = sys.argv[2][5:]
    elif len(sys.argv) > 2 and sys.argv[2] != "0": INSTR = sys.argv[2]
    for kv in sys.argv[3:]:
        k_, v_ = kv.split("="); OPT[k_] = int(v_)
    out, probs = build()
    if INSTR: out += "; STAMPS " + ",".join(STAMPS) + "\n"
    open(sys.argv[1], "w").write(out)
    print("hazards:", len(probs), "chars:", len(out))
```

```python
import sys, struct
from asmlib import *

QF, KF, VF, ACTF = 0, 2 << 20, 4 << 20, 8 << 20
FLG = 20 << 20
F1 = FLG
EPOCH = FLG + 49152
STT = FLG + 65536
F2 = FLG + 131072
F3 = FLG + 262144
CSG = FLG + 524288
PROF = 24 << 20
WS_SIZE = 32 << 20
KA = dict(x=0, wqkv=8, wo=16, bx=24, wg=32, wu=40, wd=48, out=56, dbg=64, ws=72)
SZ = dict(x=2048*512*2, wqkv=512*1536*2, wo=512*512*2, wg=512*1792*2, wu=512*1792*2, wd=1792*512*2, out=2048*512*2, ws=WS_SIZE)
LOG2E = 1.4426950408889634
def f2u(f): return struct.unpack("<I", struct.pack("<f", f))[0]
def hx(f): return "0x%08x" % f2u(f)
NAME = "parallel_sum__softmax_full_mha__swiglu_ffn__prompt_kernel"
INSTR = False
OPT = dict(sth=-1, cl=24, s1e=1, ol=1, lp=0, gs=0, gc=14, jit=1, rv0=128, rotm=0, spl=0, cpf=1, e1=0, ost=2, wow=0, ss=3, tlb=0, pre=2, fq=3, fqr=4, pk=8, rvb=80, rvr=128, m2b=12, fa=9, i3=3, osp=1, spp=2)

WRING, HRING = 32768, 98304
SL, SCR = 40960, 32768

SX, SQ, SG, SU, SD, SO, SOUT, SWS = 4, 8, 12, 16, 20, 24, 28, 32
SCUR = 36
(sRB, sGI, sHD, sJ, sTM, sTN, sW, sTQ, sKH, sROT, sTAG, sT0, sT1, sT2, sXB, sXO, sKB, sMW, sONE, sTB, sI,
 sKO, sVO, sWSO, sHSO, sMK, sSPIN, sXCD, sLA, sLB) = range(40, 70)
sMSK = 70
sMH, sHS3 = 72, 73
sAO, sFB, sTBq, sLQ, sRAH, sM1, sM2, sSC, sHS2, sAO2, sRK, sSCR, sCSW, sCSR, sT3, sP0, sP1, sP2 = range(80, 98)
MF = "v_mfma_f32_32x32x16_bf16"
def srd(b): return f"s[{b}:{b+3}]"

STAMPS = []
SPIN = None
def stamp(A, name, dyn=0):
    if SPIN and name == SPIN:
        A.e("s_memrealtime s[74:75]"); A.e("s_waitcnt lgkmcnt(0)"); A.lgkm = []
    if not INSTR: return
    if INSTR == "min" and name not in ("start", "B2", "b0", "BB0", "it0", "drain", "p3", "end"): return
    if name not in STAMPS:
        STAMPS.append(name)
        for i in range(1, dyn): STAMPS.append(f"{name}+{i}")
    i = STAMPS.index(name) + 4
    assert i + dyn < 64
    if INSTR == "min" and name in ("B2", "b0", "BB0", "drain") :
        if name + "R" not in STAMPS: STAMPS.append(name + "R")
        A.e("s_memrealtime s[76:77]"); A.e("s_waitcnt lgkmcnt(0)")
        A.e(f"v_writelane_b32 v127, s76, {STAMPS.index(name + 'R') + 4}")
    A.e("s_memtime s[76:77]")
    if dyn: A.e(f"s_add_u32 s78, s{sI}, {i}")
    A.e("s_waitcnt lgkmcnt(0)"); A.lgkm = []
    A.e(f"v_writelane_b32 v127, s76, {i}" if not dyn else "s_mov_b32 s79, m0\ns_mov_b32 m0, s78\ns_nop 0\nv_writelane_b32 v127, s76, m0\ns_mov_b32 m0, s79")

class Side:
    def __init__(self, A): self.q = []; self.A = A
    def add(self, *xs): self.q.extend(xs)
    def pull(self, n):
        for _ in range(n):
            if not self.q: return
            x = self.q.pop(0)
            if callable(x): x()
            else: self.A.e(x)
    def flush(self): self.pull(len(self.q))

def gen():
    A = Asm()
    def run(lst):
        for x in lst: x() if callable(x) else A.e(x)
    nl = [0]
    def lab(p): nl[0] += 1; return f"L_{p}{nl[0]}"
    def retry(loads, tagregs, label, tmp=None):
        A.label(label + "_chk")
        if len(tagregs) == 1: A.e(f"v_cmp_ne_u32 vcc, s{sTAG}, v{tagregs[0]}")
        else:
            t_ = list(tagregs)
            lo, hi = tmp
            A.e(f"v_min3_u32 v{lo}, v{t_[0]}, v{t_[1]}, v{t_[2]}"); A.e(f"v_max3_u32 v{hi}, v{t_[0]}, v{t_[1]}, v{t_[2]}")
            if len(t_) > 3:
                A.e(f"v_min3_u32 v{lo}, v{lo}, v{t_[3]}, v{t_[-1]}"); A.e(f"v_max3_u32 v{hi}, v{hi}, v{t_[3]}, v{t_[-1]}")
            A.e(f"v_xor_b32 v{lo}, s{sTAG}, v{lo}"); A.e(f"v_xor_b32 v{hi}, s{sTAG}, v{hi}"); A.e(f"v_or_b32 v{lo}, v{lo}, v{hi}")
            A.e(f"v_cmp_ne_u32 vcc, 0, v{lo}")
        A.e(f"s_cmp_eq_u32 s{sSPIN}, 0")
        A.e(f"s_cbranch_scc1 {label}_ok")
        A.e("s_nop 0")
        A.e(f"s_cbranch_vccz {label}_ok")
        A.e(f"s_sub_u32 s{sSPIN}, s{sSPIN}, 1")
        A.e("s_sleep 1")
        run(loads)
        A.e("s_waitcnt vmcnt(0)")
        A.e(f"s_branch {label}_chk")
        A.label(label + "_ok")

    A.raw(".text"); A.raw(f".globl {NAME}"); A.raw(".p2align 8"); A.raw(f".type {NAME},@function"); A.label(NAME)
    A.e("s_cmp_ge_u32 s2, 256"); A.e("s_cbranch_scc1 L_end")
    if SPIN: stamp(A, "start")
    if INSTR:
        A.e("s_memrealtime s[74:75]"); A.e("v_mov_b32 v127, 0")
        stamp(A, "start")
    RAW, T0, T1, WD0, T3, LO = 1, 2, 3, 4, 5, 6
    L, T2 = 40, 41
    def ksrd(items):
        for n, b in items:
            A.e(f"s_mov_b32 s{b+2}, {SZ[n]}"); A.e(f"s_mov_b32 s{b+3}, {'0x00020000' if b == SX else 's%d' % (SX+3)}")
    A.e(f"s_getpc_b64 s[{SCUR}:{SCUR+1}]")
    A.label("L_pc")
    A.e(f"s_load_dwordx2 s[{SX}:{SX+1}], s[0:1], {KA['x']}")
    A.e(f"v_lshlrev_b32 v{T1}, 7, v0")
    A.e(f"v_cmp_gt_u32 vcc, {OPT['cl']}, v0")
    A.e(f"s_and_saveexec_b64 s[{sMSK}:{sMSK+1}], vcc")
    A.e("s_cbranch_execz L_nc0")
    A.e(f"global_load_dword v95, v{T1}, s[{SCUR}:{SCUR+1}] offset:128")
    A.label("L_nc0")
    A.e("s_mov_b64 exec, -1")
    A.e(f"v_lshrrev_b32 v{T0}, 6, v0"); A.e(f"v_and_b32 v{L}, 63, v0")
    A.e(f"v_readfirstlane_b32 s{sW}, v{T0}")
    for n, b in [("wqkv", SQ), ("wg", SG), ("wu", SU), ("ws", SWS)]: A.e(f"s_load_dwordx2 s[{b}:{b+1}], s[0:1], {KA[n]}")
    ksrd([("x", SX)])
    sSUB, sGQ, sROW = sKO, sVO, sT3
    ACC1, ACCA, ACCB = 16, 32, 64
    XD, QD, RQ, XRD, GRAN, CS1, CG = 64, 66, 67, 68, 72, 76, 88
    RS, NEGM = 0, 7
    RG = [8, 9]; ONES = 10; CS2 = [12, 122]; SD2 = 126
    WF = [96 + 4*i for i in range(6)]
    GD, UD = 120, 121
    X = 128
    A.e(f"s_and_b32 s{sRB}, s2, 1"); A.e(f"s_bfe_u32 s{sT0}, s2, 0x30003"); A.e(f"s_lshl3_add_u32 s{sRB}, s{sRB}, s{sT0}")
    A.e(f"s_lshr_b32 s{sSUB}, s2, 6")
    A.e(f"s_lshl1_add_u32 s{sROT}, s{sSUB}, s{sRB}")
    A.e(f"s_and_b32 s{sTQ}, s{sW}, 3"); A.e(f"s_lshr_b32 s{sKH}, s{sW}, 2")
    A.e(f"s_lshl2_add_u32 s{sTB}, s{sRB}, s{sTQ}")
    A.e(f"s_lshl1_add_u32 s{sXO}, s{sTB}, s{sKH}"); A.e(f"s_lshl_b32 s{sXO}, s{sXO}, 14")
    A.e(f"s_lshl1_add_u32 s{sXB}, s{sTQ}, s{sKH}"); A.e(f"s_lshl_b32 s{sXB}, s{sXB}, 11")
    A.e(f"v_lshrrev_b32 v{T0}, 3, v{L}"); A.e(f"v_lshlrev_b32 v{WD0}, 10, v{T0}")
    A.e(f"v_lshrrev_b32 v{T1}, 4, v{L}"); A.e(f"v_and_b32 v{T2}, 7, v{L}"); A.e(f"v_xor_b32 v{T1}, v{T1}, v{T2}")
    A.e(f"v_lshl_add_u32 v{XD}, v{T1}, 4, v{WD0}")
    A.e(f"v_xor_b32 v{XD+1}, 64, v{XD}")
    A.e(f"v_add_u32 v{XD+1}, 7168, v{XD+1}")

    def issue1_list(typ, t):
        sb = (t & 3)*SL
        out = []
        def fx():
            A.e(f"s_add_u32 s{sT2}, s{sROT}, {t}"); A.e(f"s_and_b32 s{sT2}, s{sT2}, 7")
            A.e(f"s_lshl_b32 s{sT0}, s{sT2}, 7")
            A.e(f"s_add_u32 m0, s{sXB}, {sb + 24576}")
            A.e(f"s_add_u32 s{sT0}, s{sT0}, s{sXO}")
            A.vmem(f"buffer_load_dwordx4 v{XD}, {srd(SX)}, s{sT0} offen lds", ("s1", t))
        def fx2():
            A.e(f"s_add_u32 m0, s{sXB}, {sb + 24576}")
            A.e(f"s_lshl3_add_u32 s{sT2}, s{sT2}, s{sW}")
            A.vmem(f"buffer_load_dwordx4 v{XD+1}, {srd(SX)}, s{sT0} offen offset:1024 lds", ("s1", t))
        out += [fx, fx2]
        for u in range(3):
            def f(u=u):
                if u == 0:
                    A.e(f"s_mul_i32 s{sT1}, s{sT2}, {8*3072}")
                    A.e(f"s_add_u32 m0, s{sM1}, {sb}")
                    A.e(f"s_add_u32 s{sT0}, s{sT1}, s{sLQ}")
                elif u == 1:
                    if typ == "P": A.e(f"s_mul_i32 s{sT1}, s{sT2}, {8*3584}")
                    A.e(f"s_add_u32 m0, s{sM1}, {sb + 2048}")
                    A.e(f"s_add_u32 s{sT0}, s{sT1}, s{sLA}")
                else:
                    A.e(f"s_add_u32 m0, s{sM1}, {sb + 4096}")
                    if typ == "R": A.e(f"s_add_u32 s{sT0}, s{sT0}, 128")
                    else: A.e("s_nop 0")
                ad, sr = (QD, SQ) if (u == 0 or typ == "R") else ((GD, SG), (UD, SU))[u-1]
                A.vmem(f"buffer_load_dwordx4 v{ad}, {srd(sr)}, s{sT0} offen lds", ("s1", t))
            out.append(f)
        for f in out: f.tag = ("s1", t)
        return out
    def issue2_list(st):
        out = []
        for u in range(2):
            for hb in range(2):
                def f(u=u, hb=hb):
                    if u == 0 and hb == 0:
                        A.e(f"s_add_u32 s{sT2}, s{sRK}, {2*st}"); A.e(f"s_and_b32 s{sT2}, s{sT2}, 7")
                        A.e(f"s_lshl2_add_u32 s{sT2}, s{sT2}, s{sTQ}")
                        A.e(f"s_mul_i32 s{sT2}, s{sT2}, {16*3584}"); A.e(f"s_add_u32 s{sT2}, s{sT2}, s{sLB}")
                    A.e(f"s_add_u32 m0, s{sM2}, {st*SL + u*2048 + hb*1024}")
                    if u == 0 and hb == 0: A.e(f"s_add_u32 s{sT1}, s{sT2}, {8*3584}")
                    else: A.e("s_nop 0")
                    ad, sr = ((GD, SG), (UD, SU))[u]
                    A.vmem(f"buffer_load_dwordx4 v{ad}, {srd(sr)}, s{sT1 if hb else sT2} offen lds", ("s2", st))
                f.tag = ("s2", st)
                out.append(f)
        return out
    def typed_issue(ts, tagl):
        sv = list(A.vm)
        A.e(f"s_cmp_ge_u32 s{sGI}, 12"); A.e(f"s_cbranch_scc1 L_ti{tagl}_R")
        for t in ts: run(issue1_list("P", t))
        A.e(f"s_branch L_ti{tagl}_done")
        A.label(f"L_ti{tagl}_R"); A.vm = sv
        for t in ts: run(issue1_list("R", t))
        A.label(f"L_ti{tagl}_done")
    A.e("s_waitcnt lgkmcnt(0)"); stamp(A, "karg")
    run(issue1_list("P", 0)[:2])
    for n, b in [("wd", SD), ("wo", SO), ("out", SOUT)]: A.e(f"s_load_dwordx2 s[{b}:{b+1}], s[0:1], {KA[n]}")
    ksrd([("wqkv", SQ)])
    A.e(f"s_bfe_u32 s{sGQ}, s2, 0x20001")
    A.e(f"s_mul_i32 s{sGI}, s{sGQ}, 3"); A.e(f"s_add_u32 s{sGI}, s{sGI}, s{sSUB}")
    A.e(f"s_add_u32 s{sI}, s{sGQ}, 12")
    A.e(f"s_cmp_eq_u32 s{sSUB}, 3"); A.e(f"s_cselect_b32 s{sGI}, s{sI}, s{sGI}")
    A.e(f"s_lshl_b32 s{sLQ}, s{sGI}, 7")
    A.e(f"s_lshr_b32 s{sI}, s{sW}, 1"); A.e(f"s_lshl2_add_u32 s{sM1}, s{sI}, s{sW}"); A.e(f"s_lshl_b32 s{sM1}, s{sM1}, 10")
    A.e(f"v_bfe_u32 v{T1}, v{L}, 2, 1"); A.e(f"v_bfe_u32 v{T3}, v{L}, 4, 1"); A.e(f"v_xor_b32 v{T1}, v{T1}, v{T3}")
    A.e(f"v_lshlrev_b32 v{T1}, 2, v{T1}"); A.e(f"v_and_or_b32 v{T1}, v{L}, 3, v{T1}")
    A.e(f"v_mul_u32_u24 v{QD}, 3072, v{T0}"); A.e(f"v_lshl_add_u32 v{QD}, v{T1}, 4, v{QD}")
    run(issue1_list("P", 0)[2:3])
    ksrd([("wg", SG), ("wu", SU), ("ws", SWS)])
    A.e(f"s_lshl_b32 s{sI}, s{sGI}, 8"); A.e(f"s_sub_u32 s{sI}, s{sI}, {8*128}")
    A.e(f"s_cmp_ge_u32 s{sGI}, 12"); A.e(f"s_cselect_b32 s{sLA}, s{sI}, s{sLQ}")
    A.e(f"v_lshl_add_u32 v{WD0}, v{T1}, 4, v{WD0}")
    A.e(f"v_mul_u32_u24 v{T0}, 3584, v{T0}")
    A.e(f"v_and_b32 v{T1}, 1, v{L}"); A.e(f"v_lshl_add_u32 v{T0}, v{T1}, 4, v{T0}")
    A.e(f"v_bfe_u32 v{T1}, v{L}, 1, 2"); A.e(f"v_xor_b32 v{T1}, v{T1}, v{T3}")
    A.e(f"v_lshl_add_u32 v{GD}, v{T1}, 5, v{T0}")
    A.e(f"v_xor_b32 v{UD}, 64, v{GD}")
    A.e(f"v_lshlrev_b32 v{LO}, 4, v{L}")
    sv = list(A.vm)
    A.e("s_cbranch_scc1 L_sp_R")
    run(issue1_list("P", 0)[3:]); A.e("s_branch L_sp_d")
    A.label("L_sp_R"); A.vm = sv
    run(issue1_list("R", 0)[3:])
    A.label("L_sp_d")
    A.e(f"s_lshl4_add_u32 s{sROW}, s{sRB}, s{sGI}"); A.e(f"s_lshl3_add_u32 s{sROW}, s{sROW}, s{sW}")
    A.e(f"s_lshl_b32 s{sT2}, s{sROW}, 10")
    A.e(f"s_mov_b32 s{sT0}, {EPOCH}")
    A.vmem(f"buffer_load_dwordx4 v[88:91], v{LO}, {srd(SX)}, s{sT2} offen", "row")
    A.e("s_mov_b64 exec, 1")
    A.vmem(f"buffer_load_dword v92, off, {srd(SWS)}, s{sT0} sc1", "row")
    A.e("s_mov_b64 exec, -1")
    stamp(A, "i0")
    A.e(f"s_lshr_b32 s{sJ}, s2, 3"); A.e(f"s_and_b32 s{sXCD}, s2, 7")
    A.e(f"s_cmp_lg_u32 s{sW}, 7"); A.e("s_cbranch_scc1 L_nocpf")
    A.e(f"s_lshl_b32 s{sT0}, s{sJ}, 3")
    A.e(f"v_add_lshl_u32 v{T0}, v{L}, s{sT0}, 7")
    A.e(f"v_min_u32 v{T0}, L_end-L_pc, v{T0}")
    A.e("s_mov_b64 exec, 0xff")
    A.e(f"global_load_dword v95, v{T0}, s[{SCUR}:{SCUR+1}]")
    A.e("s_mov_b64 exec, -1")
    A.label("L_nocpf")
    A.e("s_waitcnt lgkmcnt(0)")
    ksrd([("wd", SD), ("wo", SO), ("out", SOUT)])
    A.e(f"s_and_b32 s{sT0}, s{sJ}, 7")
    A.e(f"s_and_b32 s{sTM}, s{sXCD}, 3"); A.e(f"s_lshl3_add_u32 s{sTM}, s{sTM}, s{sT0}")
    A.e(f"s_lshr_b32 s{sTN}, s{sXCD}, 2"); A.e(f"s_lshl2_add_u32 s{sTN}, s{sTN}, s{sSUB}")
    A.e(f"s_and_b32 s{sT0}, s{sJ}, 3"); A.e(f"s_lshl2_add_u32 s{sHD}, s{sXCD}, s{sT0}")
    A.e(f"s_lshr_b32 s{sJ}, s{sJ}, 2")
    A.e(f"s_add_u32 s{sLB}, s{sLQ}, {12*128}")
    A.e(f"s_lshl_b32 s{sM2}, s{sW}, 12")
    A.e(f"s_add_u32 s{sRK}, s{sROT}, s{sKH}")
    A.e(f"s_mov_b32 s{sSPIN}, 0x40000")
    A.e(f"s_mov_b32 s{sONE}, 0x3f803f80")
    A.e(f"s_mov_b32 s{sMSK}, 0xffff"); A.e(f"s_mov_b32 s{sMSK+1}, 0xffff")
    A.e(f"s_mov_b32 s{sI}, {hx(-0.25)}"); A.e(f"s_mov_b32 s{sSC}, {hx(-1/LOG2E)}")
    A.e(f"s_cmp_lt_u32 s{sGI}, 8"); A.e(f"s_cselect_b32 s{sSC}, s{sI}, s{sSC}")
    A.e(f"s_lshl_b32 s{sT0}, s{sTB}, 10"); A.e(f"s_lshl_b32 s{sI}, s{sKH}, 17"); A.e(f"s_add_u32 s{sT0}, s{sT0}, s{sI}")
    A.e(f"s_lshl_b32 s{sHSO}, s{sGI}, 18"); A.e(f"s_add_u32 s{sHSO}, s{sHSO}, s{sT0}")
    A.e(f"s_lshl_b32 s{sT1}, s{sLA}, 11"); A.e(f"s_add_u32 s{sT1}, s{sT1}, s{sT0}")
    A.e(f"s_mul_i32 s{sT0}, s{sTB}, {144*1024}"); A.e(f"s_lshl_b32 s{sI}, s{sKH}, 11"); A.e(f"s_add_u32 s{sT0}, s{sT0}, s{sI}")
    A.e(f"s_lshl_b32 s{sI}, s{sLQ}, 5"); A.e(f"s_add_u32 s{sT0}, s{sT0}, s{sI}"); A.e(f"s_add_u32 s{sHS2}, s{sT0}, {ACTF}")
    A.e(f"s_add_u32 s{sHS3}, s{sHS2}, {48*1024}")
    A.e(f"s_cmp_ge_u32 s{sGI}, 12"); A.e(f"s_cselect_b32 s{sHS2}, s{sT1}, s{sHS2}")
    A.e(f"s_lshl1_add_u32 s{sI}, s{sGI}, s{sKH}"); A.e(f"s_lshl_b32 s{sI}, s{sI}, 13"); A.e(f"s_add_u32 s{sI}, s{sI}, {CSG}")
    A.e(f"s_lshl_b32 s{sT0}, s{sRB}, 9"); A.e(f"s_add_u32 s{sCSW}, s{sI}, s{sT0}")
    A.e(f"s_and_b32 s{sT0}, s{sT0}, 4096"); A.e(f"s_add_u32 s{sCSR}, s{sI}, s{sT0}")
    A.e(f"s_lshl3_add_u32 s{sTBq}, s{sJ}, s{sW}")
    A.e(f"s_lshl_b32 s{sKB}, s{sHD}, 16"); A.e(f"s_lshl_b32 s{sVO}, s{sTBq}, 10"); A.e(f"s_add_u32 s{sVO}, s{sVO}, s{sKB}")
    A.e(f"s_add_u32 s{sKB}, s{sKB}, {KF}")
    A.e(f"s_mul_i32 s{sI}, s{sKH}, {VF - KF - 2048}"); A.e(f"s_add_u32 s{sKO}, s{sKB}, s{sI}"); A.e(f"s_lshl_b32 s{sI}, s{sTQ}, 10")
    A.e(f"s_add_u32 s{sKO}, s{sKO}, s{sI}"); A.e(f"s_add_u32 s{sKO}, s{sKO}, 1024")
    A.e(f"s_lshl_b32 s{sMK}, s{sW}, 10")
    A.e(f"s_lshl_b32 s{sMW}, s{sW}, 11"); A.e(f"s_add_u32 s{sMH}, s{sMW}, {HRING}"); A.e(f"s_add_u32 s{sMW}, s{sMW}, {WRING}")
    A.e(f"s_lshl_b32 s{sWSO}, s{sW}, 14"); A.e(f"s_lshl_b32 s{sI}, s{sTN}, 7"); A.e(f"s_add_u32 s{sWSO}, s{sWSO}, s{sI}")
    A.e(f"s_mul_i32 s{sAO}, s{sTM}, {2*144*1024}"); A.e(f"s_add_u32 s{sAO}, s{sAO}, s{sMK}")
    A.e(f"s_add_u32 s{sAO}, s{sAO}, {ACTF}"); A.e(f"s_add_u32 s{sAO2}, s{sAO}, {144*1024 - 1024}")
    A.e(f"s_lshl_b32 s{sT1}, s{sKH}, 13"); A.e(f"s_bfe_u32 s{sI}, s{sW}, 0x10001"); A.e(f"s_lshl_b32 s{sI}, s{sI}, 10")
    A.e(f"s_add_u32 s{sRAH}, s{sT1}, s{sI}"); A.e(f"s_add_u32 s{sRAH}, s{sRAH}, {HRING}")
    for i in range(4): A.e(f"s_mov_b32 s{SCUR+i}, s{SD+i}")
    A.e(f"s_lshl_b32 s{sP0}, s{sXCD}, 11"); A.e(f"s_add_u32 s{sP0}, s{sP0}, {F1}"); A.e(f"s_add_u32 s{sP1}, s{sP0}, {8*2048}")
    A.e(f"s_lshr_b32 s{sP2}, s{sXCD}, 1"); A.e(f"s_lshl_b32 s{sP2}, s{sP2}, 11"); A.e(f"s_add_u32 s{sP2}, s{sP2}, {F1 + 12*2048}")
    A.e(f"v_and_b32 v{T0}, 31, v{L}")
    A.e(f"v_bfe_u32 v{T1}, v{L}, 1, 3")
    A.e(f"v_lshrrev_b32 v{T2}, 5, v{L}")
    A.e(f"v_xor_b32 v{T1}, v{T1}, v{T2}")
    A.e(f"s_lshl_b32 s{sT0}, s{sTQ}, 12"); A.e(f"s_add_u32 s{sT0}, s{sT0}, 24576")
    A.e(f"v_lshlrev_b32 v{T0}, 7, v{T0}"); A.e(f"v_add_u32 v{T0}, s{sT0}, v{T0}")
    A.e(f"v_lshl_add_u32 v{XRD}, v{T1}, 4, v{T0}")
    for kk in range(1, 4): A.e(f"v_xor_b32 v{XRD+kk}, {32*kk}, v{XRD}")
    A.e(f"v_bfe_u32 v{T0}, v{L}, 2, 2")
    A.e(f"v_and_b32 v42, 3, v{L}"); A.e(f"v_lshlrev_b32 v42, 3, v42"); A.e(f"v_lshl_add_u32 v42, v{T0}, 7, v42")
    A.e(f"v_lshl_add_u32 v{T1}, v{T2}, 10, v42")
    A.e(f"v_lshrrev_b32 v{T0}, 1, v{T0}")
    A.e(f"v_xor_b32 v{RQ}, s{sKH}, v{T0}"); A.e(f"v_lshl_add_u32 v{RQ}, v{RQ}, 6, v{T1}")
    A.e(f"v_lshl_add_u32 v{RQ}, v{T3}, 5, v{RQ}")
    A.e(f"s_and_b32 s{sI}, s{sW}, 1"); A.e(f"s_add_u32 s{sT1}, s{sT1}, {WRING}")
    A.e(f"v_xor_b32 v{RAW}, s{sI}, v{T0}"); A.e(f"v_lshl_add_u32 v{RAW}, v{RAW}, 6, v42")
    A.e(f"v_lshl_add_u32 v{RAW}, v{T2}, 9, v{RAW}"); A.e(f"v_lshl_add_u32 v{RAW}, v{T3}, 5, v{RAW}"); A.e(f"v_add_u32 v{RAW}, s{sT1}, v{RAW}")
    A.e(f"v_lshl_add_u32 v{T1}, v{T3}, 11, v{T1}")
    A.e(f"v_lshl_add_u32 v{T0}, v{T3}, 1, v{T0}")
    A.e(f"s_lshl_b32 s{sT0}, s{sKH}, 1")
    A.e(f"v_xor_b32 v{T0}, s{sT0}, v{T0}")
    A.e(f"v_lshl_add_u32 v{RG[0]}, v{T0}, 5, v{T1}")
    A.e(f"v_xor_b32 v{RG[1]}, 32, v{RG[0]}")
    A.e(f"v_mov_b32 v{ONES}, s{sONE}"); A.e(f"v_mov_b32 v{ONES+1}, s{sONE}")
    A.e(f"v_and_b32 v{T0}, 0x2ff, v{LO}"); A.e(f"v_lshl_add_u32 v{T0}, v{T3}, 16, v{T0}")
    A.e(f"s_lshl_b32 s{sI}, s{sW}, 7"); A.e(f"s_add_u32 s{sI}, s{sI}, {SCR + 6144}")
    A.e(f"v_lshl_add_u32 v{T3}, v{T2}, 4, s{sI}")
    A.e(f"v_and_b32 v93, 31, v{L}"); A.e(f"v_lshlrev_b32 v94, 4, v93"); A.e(f"v_lshl_add_u32 v93, v93, 2, s{sI}")
    A.e("v_mov_b32 v72, 0"); A.e("v_mov_b32 v73, 0")
    if OPT["s1e"] == 1: typed_issue([1], "b")
    def row_stats(typ):
        A.wait(vm=["row"])
        stamp(A, "row")
        for i in range(4):
            A.e(f"v_dot2c_f32_bf16 v72, s{sONE}, v{88+i}"); A.e(f"v_dot2c_f32_bf16 v73, v{88+i}, v{88+i}")
        A.e(f"v_readfirstlane_b32 s{sTAG}, v92")
        A.e("s_nop 1")
        for sh in (1, 2, 4, 8):
            A.e(f"v_add_f32_dpp v72, v72, v72 row_ror:{sh} row_mask:0xf bank_mask:0xf")
            A.e(f"v_add_f32_dpp v73, v73, v73 row_ror:{sh} row_mask:0xf bank_mask:0xf")
            A.e("s_nop 0")
        A.e(f"s_mul_i32 s{sTAG}, s{sTAG}, 1664525"); A.e(f"s_add_u32 s{sTAG}, s{sTAG}, 1013904223")
        for op in ("v_permlane16_swap_b32", "v_permlane32_swap_b32"):
            A.e("v_mov_b32 v74, v72"); A.e("v_mov_b32 v75, v73"); A.e("s_nop 1")
            A.e(f"{op} v72, v74"); A.e(f"{op} v73, v75"); A.e("s_nop 0")
            A.e("v_add_f32 v72, v72, v74"); A.e("v_add_f32 v73, v73, v75")
        A.e(f"v_mul_f32 v72, {hx(1/512)}, v72"); A.e(f"v_mul_f32 v73, {hx(1/512)}, v73")
        A.e("v_fma_f32 v73, -v72, v72, v73"); A.e("v_max_f32 v73, 0, v73")
        A.e("v_cvt_pk_bf16_f32 v88, -v72, -v72")
        A.e("v_cvt_pk_bf16_f32 v73, v73, v73"); A.e("v_lshlrev_b32 v73, 16, v73")
        A.e(f"v_add_f32 v73, {hx(1e-5)}, v73")
        A.e("v_cvt_pk_bf16_f32 v73, v73, v73"); A.e("v_lshlrev_b32 v73, 16, v73")
        A.e("v_sqrt_f32 v73, v73"); A.e(f"v_mov_b32 v91, s{sTAG}")
        A.e("v_cvt_pk_bf16_f32 v73, v73, v73"); A.e("v_lshlrev_b32 v73, 16, v73")
        A.e("v_rcp_f32 v89, v73"); A.e("v_mul_f32 v90, v73, v73")
        A.e(f"s_lshl_b32 s{sI}, s{sROW}, 4"); A.e(f"s_add_u32 s{sI}, s{sI}, {STT}")
        A.e("s_mov_b64 exec, 1")
        A.e(f"buffer_store_dwordx4 v[88:91], off, {srd(SWS)}, s{sI} sc1")
        A.e("s_mov_b64 exec, -1")
        A.e(f"s_cmp_ge_u32 s{sGI}, 8"); A.e(f"s_cbranch_scc1 L_nopo_{typ}")
        A.e("v_mov_b32 v72, -1")
        A.e(f"s_add_u32 s{sI}, s{sHS2}, {112*1024}")
        A.e(f"buffer_store_dwordx4 v[72:75], v{LO}, {srd(SWS)}, s{sI} offen sc1")
        A.e(f"buffer_store_dwordx4 v[72:75], v{LO}, {srd(SWS)}, s{sI} offen offset:1024 sc1")
        A.label(f"L_nopo_{typ}")

    if OPT["sth"] < 0: row_stats("c")
    if not OPT["s1e"]: typed_issue([1], "b")
    A.wait(vm=[("s1", 0)])
    A.e("s_barrier")
    stamp(A, "B2")
    A.e(f"s_cmp_ge_u32 s{sGI}, 12"); A.e("s_cbranch_scc1 L_R")
    vm0, lg0 = list(A.vm), list(A.lgkm)

    Q = 24
    RAH, WD1, VE, PA = 122, 123, 124, 125
    PT = [16, 17, 18]
    K01 = [224, 228]
    VFR = [[32 + 8*i, 36 + 8*i] for i in range(4)]
    KFR = [96 + 4*i for i in range(4)]
    P = [176, 184]
    S = [192, 208]; O = 224; C = 240
    DACC = 128
    DW = [144 + 4*i for i in range(4)]; HF = [160 + 4*i for i in range(4)]
    def silu_list(acc, E, H, soff_s, imm, tag):
        o = []
        for i in range(8): o.append(f"v_mul_f32 v{E+i}, v{RS}, v{acc+i}")
        for i in range(8): o.append(f"v_exp_f32 v{E+i}, v{E+i}")
        for i in range(8): o.append(f"v_mul_f32 v{acc+i}, v{acc+i}, v{acc+8+i}")
        for i in range(8): o.append(f"v_fma_f32 v{E+i}, v{E+i}, v{SD2}, v{SD2}")
        for i in range(8): o.append(f"v_rcp_f32 v{E+i}, v{E+i}")
        for i in range(8): o.append(f"v_mul_f32 v{acc+i}, v{acc+i}, v{E+i}")
        for i in range(4): o.append(f"v_cvt_pk_bf16_f32 v{H+i}, v{acc+2*i}, v{acc+2*i+1}")
        o.append(lambda: A.vmem(f"buffer_store_dwordx4 {v(H,4)}, v{LO}, {srd(SWS)}, s{soff_s} offen offset:{imm} sc1", tag))
        return o
    def flag_store(soff):
        A.e("s_mov_b64 exec, 1")
        A.e(f"buffer_store_dword v{VE}, off, {srd(SWS)}, s{soff} sc1")
        A.e("s_mov_b64 exec, -1")
    def wg_flag(base, major, minor, wave=0):
        lb = lab("fl")
        A.e(f"s_cmp_lg_u32 s{sW}, {wave}"); A.e(f"s_cbranch_scc1 {lb}")
        A.e(f"s_lshl4_add_u32 s{sT3}, s{major}, s{minor}"); A.e(f"s_lshl_b32 s{sT3}, s{sT3}, 7"); A.e(f"s_add_u32 s{sT3}, s{sT3}, {base}")
        flag_store(sT3)
        A.label(lb)
    def floads(soffs): return [f"buffer_load_dword v{PT[i]}, v{PA}, {srd(SWS)}, s{so} offen sc1" for i, so in enumerate(soffs)]
    mark = [0]
    def one_load(wave, soffs, mask):
        lb = lab("fl")
        A.e(f"s_cmp_lg_u32 s{sW}, {wave}"); A.e(f"s_cbranch_scc1 {lb}")
        A.e(f"s_mov_b64 exec, {mask}"); run(floads(soffs)); A.e("s_mov_b64 exec, -1")
        A.label(lb)
        mark[0] = A.nvm
    def one_check(wave, soffs, mask):
        cnt = A.nvm - mark[0]
        lb = lab("ck")
        A.e(f"s_cmp_lg_u32 s{sW}, {wave}"); A.e(f"s_cbranch_scc1 {lb}")
        A.e("s_setprio 3")
        A.e(f"s_mov_b64 exec, {mask}")
        A.e(f"s_waitcnt vmcnt({cnt})")
        retry(floads(soffs), PT[:len(soffs)], lb + "r", (20, 21))
        A.e("s_mov_b64 exec, -1")
        A.e("s_setprio 0")
        A.label(lb)
    def kv_issue(slot, tag, first=False):
        so = sKO
        if first:
            A.e(f"s_mul_i32 s{sT0}, s{sKH}, {VF - KF}"); A.e(f"s_add_u32 s{sT0}, s{sT0}, s{sKB}"); A.e(f"s_max_u32 s{sT0}, s{sT0}, s{sKO}")
            so = sT0
        A.e(f"s_add_u32 m0, s{sMK}, {slot*8192}")
        A.e("s_nop 0")
        A.vmem(f"buffer_load_dwordx4 v{LO}, {srd(SWS)}, s{so} offen sc1 lds", tag)
        A.e(f"s_add_u32 s{sKO}, s{sKO}, 4096")
    def tiny(acc, sp, first): A.e(f"v_mfma_f32_4x4x4_16b_bf16 {v(acc,4)}, {v(ONES,2)}, {v(sp,2)}, {'0' if first else v(acc,4)}")
    def cs_publish(accs, G, imm):
        lb = lab("cp")
        A.e(f"s_cmp_lg_u32 s{sTQ}, 0"); A.e(f"s_cbranch_scc1 {lb}")
        for a in accs: A.e(f"v_permlane32_swap_b32 v{a}, v{a+1}")
        A.e(f"v_mov_b32 v{G+3}, s{sTAG}")
        for i, a in enumerate(accs): A.e(f"v_add_f32 v{G+i}, v{a}, v{a+1}")
        A.e(f"s_add_u32 s{sT3}, s{sCSW}, {imm}")
        A.e("s_mov_b32 exec_hi, 0")
        A.e(f"buffer_store_dwordx4 {v(G,4)}, v{LO}, {srd(SWS)}, s{sT3} offen sc1")
        A.e("s_mov_b64 exec, -1")
        A.label(lb)
    def cs_loads(G): return [f"buffer_load_dwordx4 {v(G+4*q,4)}, v{LO}, {srd(SWS)}, s{sCSR} offen offset:{1024*q} sc1" for q in range(4)]
    def cs_build(G, n):
        o = []
        for u in range(n): o += [f"v_add_f32 v{G+u}, v{G+u}, v{G+4+u}", f"v_add_f32 v{G+8+u}, v{G+8+u}, v{G+12+u}"]
        for u in range(n): o.append(f"v_add_f32 v{G+u}, v{G+u}, v{G+8+u}")
        for u in range(n): o.append(f"v_cvt_pk_bf16_f32 v{G+4+u}, v{G+u}, v{G+u}")
        for u in range(n): o.append(f"v_lshlrev_b32 v{G+4+u}, 16, v{G+4+u}")
        for u in range(n): o.append(f"v_sub_f32 v{G+4+u}, v{G+u}, v{G+4+u}")
        for u in range(n): o.append(f"v_cvt_pk_bf16_f32 v{G+u}, v{G+u}, v{G+4+u}")
        for u in range(n, 4): o.append(f"v_mov_b32 v{G+u}, 0")
        pat = "00m0000m00"
        for i, ch in enumerate(pat):
            if n == 2 and i < 2: continue
            o.append(f"v_mov_b32 v{G+4+i}, {'v%d' % NEGM if ch == 'm' else 0}")
        return o, [G + 6, G + 10, G + 4]

    def passes(typ):
        A.vm, A.lgkm = list(vm0), list(lg0)
        sd = Side(A); dq = Side(A); gq = Side(A)
        def wvm(tag):
            assert not any(getattr(f, "tag", None) == tag for f in dq.q), tag
            assert tag in A.issued, tag
            A.wait(vm=[tag])
        cur = [0]
        def rd1(n, slot, us=(0, 1, 2)):
            t, kk = n >> 2, n & 3
            assert t == cur[0]
            for u in us:
                for p in range(2):
                    if u == 0 or typ == "R": rc, off = RQ, kk*6144 + u*2048 + p*512
                    else: rc, off = RG[u-1], kk*6144 + 2048 + p*512
                    A.lds(f"ds_read_b64_tr_b16 {v(WF[3*slot+u]+2*p,2)}, v{rc} offset:{off}", "w")
        def rd2(n, slot, ts=(0, 1)):
            if n >= 32: return
            st, kk = n >> 3, n & 7
            for t in ts:
                for p in range(2):
                    off = (8 + st - cur[0])*SL + kk*4096 + p*512
                    assert 0 <= off < 65536
                    A.lds(f"ds_read_b64_tr_b16 {v(WF[2*slot+t]+2*p,2)}, v{RG[t]} offset:{off}", "w")
        def adv(regs, g):
            d = SL if (g & 3) != 3 else (-3*SL) & 0xffffffff
            for r in regs: A.e(f"v_add_u32 v{r}, {hex(d)}, v{r}")
        rd1(0, 0); rd1(1, 1)
        A.e(f"s_cmp_lg_u32 s{sKH}, 1"); A.e(f"s_cbranch_scc1 L_off_{typ}")
        A.e("s_barrier")
        A.label(f"L_off_{typ}")
        for t in range(1 if OPT["s1e"] == 2 else 2, 3): dq.add(*issue1_list(typ, t))
        gl = [f"buffer_load_dwordx4 {v(GRAN,4)}, v94, {srd(SWS)}, s{sT3} offen sc1"] + cs_loads(CS1)
        cb1, BX1 = cs_build(CS1, 3)
        for h in range(16):
            t, par = h >> 1, h & 1
            if par == 0:
                stamp(A, f"a{t}")
                if t + 3 < 8: dq.add(*issue1_list(typ, t + 3))
                elif not OPT["jit"]: dq.add(*issue2_list(t - 5))
                elif t == 5: dq.add(*issue2_list(0))
                elif t == 7: dq.add(*issue2_list(1))
            for i in range(2):
                A.lds(f"ds_read_b128 {v(X+4*(2*h+i),4)}, v{XRD+2*par+i}", "x")
            if par:
                adv(([RQ] if t < 7 else []) + RG, t); cur[0] += 1
                if t < 7: adv(range(XRD, XRD + 4), t)
            if h == OPT["sth"]: row_stats(typ)
            if h == 2: cs_publish([CS1, CS1 + 4, CS1 + 8], CG, 0)
            if h == 3 and OPT["tlb"]:
                lb = lab("tl")
                A.e(f"s_cmp_lg_u32 s{sW}, 1"); A.e(f"s_cbranch_scc1 {lb}")
                A.e(f"v_lshlrev_b32 v95, 17, v{LO}")
                A.e("s_mov_b64 exec, 0x1ff")
                A.e(f"buffer_load_dword v92, v95, {srd(SWS)}, 0 offen sc1")
                A.e("s_mov_b64 exec, 1")
                for sr in (SD, SO, SOUT): A.e(f"buffer_load_dword v92, off, {srd(sr)}, 0")
                A.e("s_mov_b64 exec, -1")
                A.label(lb)
            dq.pull(5 if len(dq.q) > 6 else (3 if t < 5 else (1 if (OPT["jit"] and t < 7) else 2)))
            if h == 7: A.e(f"s_lshl_b32 s{sT3}, s{sTB}, 9"); A.e(f"s_add_u32 s{sT3}, s{sT3}, {STT}")
            gsch = {0: (7, 9, 10, 11, 12), 1: (9, 10, 10, 11, 11)}[OPT["gs"]]
            for gi_, hh in enumerate(gsch):
                if hh == h: A.vmem(gl[gi_], "gran")
            if h == OPT["gc"]:
                A.wait(vm=["gran"])
                retry(gl, [GRAN + 3] + [CS1 + 4*q + 3 for q in range(4)], f"L_gr_{typ}", (92, 95))
                A.e(f"v_mul_f32 v{RS}, {hx(-LOG2E)}, v{GRAN+1}"); A.e(f"v_mov_b32 v{SD2}, v{GRAN+2}"); A.e(f"v_mov_b32 v{NEGM}, v{GRAN}")
                if typ == "R": A.lds(f"ds_write_b32 v93, v{GRAN+1}", "x")
                gq.add(*cb1)
            if h == 15: gq.flush()
            A.wait(lgkm="all")
            A.e("s_barrier")
            if h < 2:
                for i in range(2):
                    for p in range(2):
                        for u in range(3): tiny(CS1 + 4*u, WF[3*i+u] + 2*p, h == 0 and i == 0 and p == 0)
            if h == 15:
                for u in range(3):
                    acc = v((ACC1, ACCA, ACCA + 16)[u], 16)
                    if u and typ == "R": A.e(f"{MF} {acc}, {v(BX1[u],4)}, {v(CS1,4)}, {acc}")
                    else: A.e(f"{MF} {acc}, {v(CS1,4)}, {v(BX1[u],4)}, {acc}")
            for i in range(2):
                n = 2*h + i
                x = X + 4*n
                for u in range(3):
                    acc = v((ACC1, ACCA, ACCA + 16)[u], 16)
                    c = "0" if n == 0 else acc
                    w = v(WF[3*i+u], 4)
                    last = (i == 1 and u == 2)
                    if last and par == 0: wvm(("s1", t + 1) if t < 7 else ("s2", 0))
                    if u and typ == "R": A.e(f"{MF} {acc}, {v(x,4)}, {w}, {c}")
                    else: A.e(f"{MF} {acc}, {w}, {v(x,4)}, {c}")
                    if last: A.e("s_barrier")
                    if h < 15:
                        rd1(n + 2, i, (u,))
                        if not last: gq.pull(3)
                    else:
                        fi = 3*i + u
                        rd2(fi >> 1, fi >> 1, (fi & 1,))
        sd.add(f"v_mul_f32 v{T1}, s{sSC}, v{RS}", "s_nop 3")
        for i in range(16): sd.add(f"v_mul_f32 v{ACC1+i}, v{T1}, v{ACC1+i}")
        for i in range(8): sd.add(f"v_cvt_pk_bf16_f32 v{ACC1+i}, v{ACC1+2*i}, v{ACC1+2*i+1}")
        def st(txt, tag, pre=None):
            def f():
                if pre: A.e(pre)
                A.vmem(txt, tag)
            f.store = tag
            return f
        DRAIN = lambda: None
        sd.q.insert(len(sd.q) - 4, st(f"buffer_store_dwordx4 {v(ACC1,4)}, v{LO}, {srd(SWS)}, s{sHSO} offen sc1", "qk"))
        sd.add(st(f"buffer_store_dwordx4 {v(ACC1+4,4)}, v{LO}, {srd(SWS)}, s{sHSO} offen sc1", "qk", f"s_add_u32 s{sHSO}, s{sHSO}, 65536"))
        RVR = [X, X + 4, ACC1 + 8, ACC1 + 12]
        GATE = lambda: None
        sd.add(GATE)
        if typ == "R":
            def rvread():
                for q in range(4): A.lds(f"ds_read_b128 {v(RVR[q],4)}, v{T3} offset:{32*q}", "rv")
            sd.add(lambda: A.wait(lgkm=["rv"]))
            for t in range(2):
                a = ACCA + 16*t
                for f in range(2):
                    for i in range(8): sd.add(f"v_mul_f32 v{a+8*f+i}, v{RVR[2*f+(i>>2)]+(i&3)}, v{a+8*f+i}")
                    for i in range(4): sd.add(f"v_cvt_pk_bf16_f32 v{a+8*f+i}, v{a+8*f+2*i}, v{a+8*f+2*i+1}")
                    sd.add(st(f"buffer_store_dwordx4 {v(a+8*f,4)}, v{T0}, {srd(SWS)}, s{sHS2} offen offset:{256*f} sc1", "qk",
                              f"s_add_u32 s{sHS2}, s{sHS2}, {4*65536}" if (t == 1 and f == 0) else None))
        else:
            for t in range(2):
                sl_ = silu_list(ACCA + 16*t, X, ACCA + 16*t + 8, sHS2, t*1024, "ha")
                sl_[-1].store = "ha"
                sd.add(*sl_)
        sd.add(DRAIN, "s_nop 1")
        V0 = VFR[0][0]
        sd.add(f"v_and_b32 v{V0}, {27*16}, v{LO}", f"v_cmp_eq_u32 vcc, 0x100, v{V0}\ns_nop 1\nv_cndmask_b32 v{V0}, 0, v{ONES}, vcc")
        for i in range(1, 32): sd.add(f"v_mov_b32 v{V0+i}, v{V0}")
        def cost(x): return 8 if (isinstance(x, str) and x.startswith(("v_exp", "v_rcp"))) else (16 if callable(x) else 4)
        curblk = [0]
        stq = []
        def pullc(budget, novm=False):
            while sd.q and budget > 0:
                x = sd.q[0]
                if x is GATE:
                    if curblk[0] < 1: return
                    sd.q.pop(0); continue
                if x is DRAIN:
                    if stq: return
                    sd.q.pop(0); continue
                if getattr(x, "store", False):
                    stq.append(sd.q.pop(0)); continue
                if novm and callable(x): return
                budget -= cost(x); sd.pull(1)
        def pullst(n):
            for _ in range(n):
                if stq: stq.pop(0)()
        def pending(tag): return any(getattr(x, "store", None) == tag for x in sd.q + stq)
        CG2 = X + 12
        G2 = X + 16
        gl2 = cs_loads(G2)
        cb2, BX2 = cs_build(G2, 2)
        fq = OPT["fq"] if typ == "P" else OPT["fqr"]
        for blk in range(11):
            curblk[0] = blk
            ks = list(range(3*blk, min(3*blk + 3, 32)))
            stamp(A, f"b{blk}")
            if blk == 1 and typ == "R":
                while sd.q[0] is not GATE:
                    curblk[0] = 0; pullc(4); curblk[0] = 1
                rvread()
            if blk == 2:
                cs_publish(CS2, CG2, 262144)
                A.e(f"s_add_u32 s{sCSR}, s{sCSR}, 262144")
                A.e(f"v_mov_b32 v{VE}, s{sTAG}"); A.e(f"v_lshlrev_b32 v{PA}, 3, v{LO}")
                A.e(f"v_add_u32 v{RAH}, s{sRAH}, v{LO}"); A.e(f"v_add_u32 v{WD1}, {8192-1024}, v{WD0}")
            if blk == fq + 1: wg_flag(F1, sGI, sRB)
            if blk == OPT["fa"] + 1 and typ == "P": wg_flag(F2, sRB, sGI)
            if OPT["jit"] and blk == 0: dq.add(*issue2_list(2))
            if blk == OPT["i3"]: dq.add(*issue2_list(3))
            if blk == 6:
                for x in gl2: dq.add(lambda x=x: A.vmem(x, "gran2"))
            if 3*blk + 3 < 32 and 8 + ((3*blk + 3) >> 3) > cur[0]:
                adv(RG, cur[0]); cur[0] += 1
            if blk == OPT["pk"] + 1:
                A.vmem(f"buffer_load_dwordx4 {v(Q,4)}, v{LO}, {srd(SWS)}, s{sVO} offen sc1", "q")
                kv_issue(0, ("kv", 0), True)
                dq.add(lambda: A.vmem(f"buffer_load_dwordx4 {v(K01[0],4)}, v{LO}, {srd(SWS)}, s{sKB} offen sc1", "q"))
                dq.add(lambda: None)
                dq.add(lambda: A.vmem(f"buffer_load_dwordx4 {v(K01[1],4)}, v{LO}, {srd(SWS)}, s{sKB} offen offset:1024 sc1", "q"))
                dq.add(lambda: kv_issue(1, ("kv", 1)))
            rvb = OPT["rvb"] if typ == "P" else OPT["rvr"]
            if blk == 0: rvb = OPT["rv0"]
            early = len(stq) > 0
            if early: pullst(1)
            else: dq.pull(1)
            pullc(rvb // 2)
            dq.pull(1)
            pullc(rvb // 2)
            if not early or OPT["spp"] > 1: pullst(1)
            if blk == fq:
                assert not pending("qk")
                A.wait(vm=["qk"])
            if blk == OPT["fa"] and typ == "P":
                assert not pending("ha")
                A.wait(vm=["ha"])
            if blk == 9:
                A.wait(vm=["gran2"])
                retry(gl2, [G2 + 4*q + 3 for q in range(4)], f"L_g2_{typ}", (X + 12, X + 13))
                sd.add(*cb2)
            if blk == OPT["pk"] - 1: one_load(0, [sP0, sP1, sP2], "0xffff")
            if blk == OPT["pk"]:
                stamp(A, "bp1")
                one_check(0, [sP0, sP1, sP2], "0xffff")
                stamp(A, "p1")
            if blk == 10:
                pullc(10000)
                assert not stq
            A.wait(lgkm="all")
            A.e("s_barrier")
            if blk < 2:
                for i in range(3 if blk == 0 else 1):
                    for p in range(2):
                        for t in range(2): tiny(CS2[t], WF[2*i+t] + 2*p, blk == 0 and i == 0 and p == 0)
                        A.e("s_nop 0")
            if blk == 10:
                for t in range(2): A.e(f"{MF} {v(ACCB+16*t,16)}, {v(G2,4)}, {v(BX2[t],4)}, {v(ACCB+16*t,16)}")
            bst = {0: 1, 3: 2, 6: 3}.get(blk)
            for i, n in enumerate(ks):
                x = X + 4*n
                for t in range(2):
                    acc = v(ACCB + 16*t, 16)
                    c = "0" if n == 0 else acc
                    last = (i == len(ks) - 1 and t == 1)
                    if last and bst: wvm(("s2", bst))
                    if last and blk == 10: A.wait(vm=[("kv", 0)])
                    A.e(f"{MF} {acc}, {v(WF[2*i+t],4)}, {v(x,4)}, {c}")
                    if last: A.e("s_barrier")
                    rd2(n + 3, i, (t,))
                    if not last: pullc(OPT["m2b"], True)
        dq.flush()
        assert not sd.q
        stamp(A, "p2end")
        endvm.append(list(A.vm))
        if typ == "P": A.e("s_branch L_A_done")
    endvm = []
    passes("P")
    A.label("L_R"); passes("R")
    assert all(x == endvm[0] for x in endvm), endvm
    A.label("L_A_done")
    if OPT["pk"] == 10:
        A.vmem(f"buffer_load_dwordx4 {v(Q,4)}, v{LO}, {srd(SWS)}, s{sVO} offen sc1", "q")
        A.vmem(f"buffer_load_dwordx4 {v(K01[0],4)}, v{LO}, {srd(SWS)}, s{sKB} offen sc1", "q")
        A.vmem(f"buffer_load_dwordx4 {v(K01[1],4)}, v{LO}, {srd(SWS)}, s{sKB} offen offset:1024 sc1", "q")
        A.e(f"s_lshl_b32 s{sT1}, s{sTQ}, 10")
        A.e(f"s_add_u32 s{sT0}, s{sKB}, s{sT1}")
        A.e(f"s_cmp_eq_u32 s{sKH}, 1"); A.e("s_cbranch_scc1 L_nokv0")
        A.e(f"s_sub_u32 m0, s{sT1}, 0"); A.e(f"s_add_u32 s{sT2}, s{sT0}, 1024")
        A.e(f"buffer_load_dwordx4 v{LO}, {srd(SWS)}, s{sT2} offen sc1 lds")
        A.e(f"s_add_u32 s{sT0}, s{sT0}, {VF - KF - 1024}"); A.e(f"s_add_u32 s{sT2}, s{sKB}, {VF - KF}"); A.e(f"s_max_u32 s{sT0}, s{sT0}, s{sT2}")
        A.e(f"s_add_u32 m0, s{sT1}, 4096"); A.e("s_nop 0")
        A.e(f"buffer_load_dwordx4 v{LO}, {srd(SWS)}, s{sT0} offen sc1 lds")
        A.label("L_nokv0")
        A.e(f"s_add_u32 s{sKO}, s{sKO}, 4096")
        kv_issue(1, ("kv", 1))
    A.e(f"s_lshr_b32 s{sP0}, s{sTM}, 1"); A.e(f"s_lshl_b32 s{sP0}, s{sP0}, 11"); A.e(f"s_add_u32 s{sP0}, s{sP0}, {F2}"); A.e(f"s_add_u32 s{sP1}, s{sP0}, 32768")
    if OPT["ss"] == 3: one_load(4, [sP0], "0xfff")
    for i in range(4): A.e(f"v_mov_b32 v{96+i}, 0")
    A.e("s_nop 2")
    Z = v(96, 4)
    XRES, XA = 28, 19
    sOO = sXO
    A.e(f"s_lshl_b32 s{sT2}, s{sW}, 13")
    A.e(f"v_and_b32 v{T0}, 0x380, v{LO}"); A.e(f"v_and_b32 v{XA}, 0x70, v{LO}")
    A.e(f"v_lshl_add_u32 v{XA}, v{T0}, 3, v{XA}"); A.e(f"v_add_u32 v{XA}, s{sT2}, v{XA}")
    A.e(f"s_lshl_b32 s{sOO}, s{sTM}, 16"); A.e(f"s_lshl_b32 s{sT0}, s{sTN}, 7"); A.e(f"s_add_u32 s{sOO}, s{sOO}, s{sT0}")
    sl = silu_list(ACCB, 112, ACCB + 8, sHS3, 0, "hb") + silu_list(ACCB + 16, 112, ACCB + 24, sHS3, 1024, "hb")
    for k, r in enumerate((128, 144, 160, 176)):
        run(sl[10*k:10*k+10]); A.e(f"{MF} {v(r,16)}, {Z}, {Z}, 0")
    run(sl[40:85])
    A.wait(vm=["q"])
    for b in range(2):
        A.e(f"{MF} {v(S[b],16)}, {v(K01[b],4)}, {v(Q,4)}, 0"); run(sl[85+4*b:89+4*b])
    run(sl[93:])
    A.e(f"v_max_f32 v{T0}, v{S[0]}, v{S[0]+1}")
    for i in range(2, 32, 2): A.e(f"v_max3_f32 v{T0}, v{T0}, v{S[0]+i}, v{S[0]+i+1}")
    A.e(f"v_mov_b32 v{T1}, v{T0}"); A.e(f"s_mov_b32 s{sI}, 0"); A.e("s_nop 0")
    A.e(f"v_permlane32_swap_b32 v{T0}, v{T1}"); A.e("s_nop 0")
    A.e(f"v_max_f32 v{T0}, v{T0}, v{T1}")
    A.e(f"v_sub_f32 v{C}, {hx(-80.0)}, v{T0}")
    for i in range(1, 16): A.e(f"v_mov_b32 v{C+i}, v{C}")
    A.e("s_nop 1")
    A.e(f"{MF} {v(S[0],16)}, {v(K01[0],4)}, {v(Q,4)}, {v(C,16)}")
    if OPT["pk"] == 10: A.e("s_waitcnt vmcnt(3)")
    A.e("s_barrier")
    A.e("s_setprio 3")
    A.e(f"{MF} {v(O,16)}, {Z}, {Z}, 0")
    stamp(A, "BB0")
    A.e("s_setprio 0")

    def w_issue(slot, tag):
        A.e(f"s_add_u32 m0, s{sMW}, {slot*16384}")
        A.e("s_nop 0")
        A.vmem(f"buffer_load_dwordx4 v{WD0}, {srd(SCUR)}, s{sWSO} offen lds", tag)
        A.vmem(f"buffer_load_dwordx4 v{WD1}, {srd(SCUR)}, s{sWSO} offen offset:1024 lds", tag)
        A.e(f"s_add_u32 s{sWSO}, s{sWSO}, {128*1024}")
    def h_issue(slot, tag):
        A.e(f"s_add_u32 m0, s{sMH}, {slot*16384}")
        A.e("s_nop 0")
        A.vmem(f"buffer_load_dwordx4 v{LO}, {srd(SWS)}, s{sAO} offen sc1 lds", tag)
        A.vmem(f"buffer_load_dwordx4 v{LO}, {srd(SWS)}, s{sAO2} offen offset:1024 sc1 lds", tag)
        A.e(f"s_add_u32 s{sAO}, s{sAO}, 8192"); A.e(f"s_add_u32 s{sAO2}, s{sAO2}, 8192")
    def wait_oldest(tags, extra=""):
        n = None
        for tg in tags:
            idx = [k for k, t_ in enumerate(A.vm) if t_ == tg]
            if not idx: continue
            last = idx[0]
            while last + 1 < len(A.vm) and A.vm[last + 1] == tg: last += 1
            n = len(A.vm) - 1 - last
            A.vm = A.vm[last+1:]
        parts = ([f"vmcnt({n})"] if n is not None else []) + ([extra] if extra else [])
        if parts: A.e("s_waitcnt " + " ".join(parts))
    RET = 78 if not INSTR else 98
    RET2 = 100
    SS = OPT["ss"]
    V63 = 88
    def side_reads(pi):
        pp = pi & 3
        for i in range(4):
            for p in range(2): A.e(f"ds_read_b64_tr_b16 {v(DW[i]+2*p,2)}, v{RAW} offset:{pp*16384 + i*2048 + p*1024}")
            A.e(f"ds_read_b128 {v(HF[i],4)}, v{RAH} offset:{pp*16384 + i*2048}")
    def w_next(n):
        if n == SS + 14:
            for i in range(4): A.e(f"s_mov_b32 s{SCUR+i}, s{SO+i}")
            A.e(f"s_lshl_b32 s{sWSO}, s{sW}, 14"); A.e(f"s_lshl_b32 s{sT2}, s{sTN}, 7"); A.e(f"s_add_u32 s{sWSO}, s{sWSO}, s{sT2}")
        w_issue(n & 3, ("w", n))
    def prelude(pi):
        pp = pi & 3
        side = pi >= SS
        def reads():
            for i in range(4): A.e(f"ds_read_b128 {v(KFR[i],4)}, v{LO} offset:{pp*8192 + i*1024}")
            A.e(f"s_mov_b64 exec, s[{sMSK}:{sMSK+1}]")
            for i in range(4):
                for f in range(2): A.e(f"ds_read_b128 {v(VFR[i][f],4)}, v{LO} offset:{pp*8192 + 4096 + i*1024 + f*256}")
            A.e("s_mov_b64 exec, -1")
            if side: side_reads(pi)
        n = pi + 3
        ca = SS - 3
        if pi == ca + 1:
            for q in range(SS, n): h_issue(q & 3, ("h", q))
        reads()
        if pi == ca: one_check(4, [sP0], "0xfff")
        if pi == 2: wg_flag(F2 + 32768, sRB, sGI)
        if pi == SS + 2: one_check(4, [sP1], "0xffff")
        if pi == ca - 1: one_load(4, [sP0], "0xfff")
        if pi == SS + 1: one_load(4, [sP1], "0xffff")
        if pi == 0: kv_issue(2, ("kv", 2))
        if n <= 16: kv_issue(n & 3, ("kv", n))
        if pi > ca and n < SS + 14: h_issue(n & 3, ("h", n))
        if n >= SS: w_next(n)
        if n >= SS + 14:
            A.e(f"s_add_u32 m0, s{sMH}, {(n & 3)*16384}")
            A.e(f"s_add_u32 s{sT0}, s{sWSO}, {128*1024}")
            A.vmem(f"buffer_load_dwordx4 v{WD0}, {srd(SCUR)}, s{sT0} offen lds", ("w", n + 2))
            A.vmem(f"buffer_load_dwordx4 v{WD1}, {srd(SCUR)}, s{sT0} offen offset:1024 lds", ("w", n + 2))
        if pi == 13:
            A.vmem(f"buffer_load_dwordx4 {v(XRES,4)}, v{XA}, {srd(SX)}, s{sOO} offen", "xres")
        if OPT["wow"] and pi in (9, 10, 11):
            m = pi - 8
            if SS + 14 + m > 18:
                A.e(f"s_lshl_b32 s{sT0}, s{sW}, 14"); A.e(f"s_lshl_b32 s{sT1}, s{sTN}, 7"); A.e(f"s_add_u32 s{sT0}, s{sT0}, s{sT1}")
                A.e(f"s_add_u32 s{sT0}, s{sT0}, {m*128*1024}")
                A.vmem(f"buffer_load_dwordx4 {v(68,4)}, v{WD0}, {srd(SO)}, s{sT0} offen", "pf")
                A.vmem(f"buffer_load_dwordx4 {v(68,4)}, v{WD1}, {srd(SO)}, s{sT0} offen offset:1024", "pf")
        if pi == 14: A.wait(vm=[("kv", 16)])
        if pi == 15:
            A.e("s_setprio 3")
            for i in range(8): A.e(f"v_mov_b32 v{V63+i}, v{VFR[0][0]}")
            A.e("s_setprio 0")
            A.e(f"s_mov_b64 exec, s[{sMSK}:{sMSK+1}]")
            for f in range(2): A.e(f"ds_read_b128 {v(V63+4*f,4)}, v{LO} offset:{4096 + f*256}")
            A.e("s_mov_b64 exec, -1")
        need = [("h", pi + 1), ("w", pi + 1)]
        if pi == 1: A.wait(vm=["hb"])
        A.wait(vm=[("kv", pi + 1)] + [t_ for t_ in need if t_ in A.vm[-5:] or pi == 15])
        A.e("s_waitcnt lgkmcnt(0)")
        if pi == 15: A.e(f"s_cmp_eq_u32 s{sKH}, 1")
        else: A.e(f"s_cmp_eq_u32 s{sKH}, 2")
        A.e(f"s_call_b64 s[{RET}:{RET+1}], L_burst")
        A.vm = A.vm[-5:]
        if pi in (0, 1, 2, 3, 7, 11) and INSTR:
            A.e("s_setprio 3"); stamp(A, f"it{pi >> 2}" if pi >= 3 else f"ph{pi}"); A.e("s_setprio 0")
    for pi in range(16): prelude(pi)
    A.e("s_setprio 1")
    stamp(A, "drain")
    for f in range(2): A.e(f"{MF} {v(O,16)}, {v(V63+4*f,4)}, {v(P[1]+4*f,4)}, {v(O,16)}")
    side_reads(16)
    A.e(f"s_mul_i32 s{sT0}, s{sTBq}, 144"); A.e(f"s_add_u32 s{sT0}, s{sT0}, s{sHD}"); A.e(f"s_lshl_b32 s{sT0}, s{sT0}, 10")
    A.e(f"s_add_u32 s{sT0}, s{sT0}, {ACTF + 112*1024}")
    A.e(f"s_bfe_u32 s{sT1}, s{sW}, 0x10001"); A.e(f"s_lshl1_add_u32 s{sT1}, s{sTM}, s{sT1}"); A.e(f"s_mul_i32 s{sAO}, s{sT1}, {144*1024}")
    A.e(f"s_and_b32 s{sT2}, s{sW}, 1")
    A.e(f"v_mov_b32 v{T1}, {hx(2.0**100)}")
    A.e(f"s_mov_b32 s{sFB}, 0")
    A.e(f"v_rcp_f32 v{T3}, v{O+8}")
    A.e(f"v_mov_b32 v{T0}, v{O+8}")
    for i in range(8): A.e(f"v_fma_f32 v{T0}, v{O+i}, 0, v{T0}")
    A.e(f"v_cmp_nlt_f32 vcc, v{T0}, v{T1}")
    A.e("s_nop 3")
    A.e("s_cbranch_vccnz L_fallback")
    A.label("L_fin")
    for i in range(8): A.e(f"v_mul_f32 v{O+i}, v{O+i}, v{T3}")
    for i in range(4): A.e(f"v_cvt_pk_bf16_f32 v{P[0]+i}, v{O+2*i}, v{O+2*i+1}")
    A.e(f"v_min_u32 v{P[0]}, -2, v{P[0]}")
    A.e(f"buffer_store_dwordx4 {v(P[0],4)}, v{LO}, {srd(SWS)}, s{sT0} offen sc1")
    assert SS == 3
    OF, WOF, ACC2 = 32, 192, 64
    sO = [sAO, sAO2, sP0, sP1]
    A.e(f"s_lshl1_add_u32 s{sT1}, s{sKH}, s{sT2}"); A.e(f"s_lshl_b32 s{sT1}, s{sT1}, 11"); A.e(f"s_add_u32 s{sAO}, s{sAO}, s{sT1}")
    A.e(f"s_add_u32 s{sAO}, s{sAO}, {ACTF + 112*1024}")
    for m in range(1, 4): A.e(f"s_add_u32 s{sO[m]}, s{sAO}, {m*8192}")
    def oload(k): return f"buffer_load_dwordx4 {v(OF+4*k,4)}, v{LO}, {srd(SWS)}, s{sO[k>>1]} offen offset:{(k&1)*1024} sc1"
    if OPT["ol"] == 0:
        for k in range(8): A.e(oload(k))
    for i in range(4):
        A.e(f"s_waitcnt lgkmcnt({9 - 3*i})")
        A.e(f"{MF} {v(DACC,16)}, {v(DW[i],4)}, {v(HF[i],4)}, {v(DACC,16)}")
    RW = [110, 111, 100, 101]
    A.e(f"s_lshl_b32 s{sT1}, s{sT2}, 12")
    A.e(f"v_add_u32 v{RW[0]}, s{sT1}, v{RAW}"); A.e(f"v_xor_b32 v{RW[1]}, 64, v{RW[0]}")
    A.e(f"v_add_u32 v{RW[2]}, 0x10000, v{RW[0]}"); A.e(f"v_add_u32 v{RW[3]}, 0x10000, v{RW[1]}")
    A.e("s_waitcnt vmcnt(%d)" % (9 if OPT["ol"] == 0 else 1))
    A.e("s_barrier")
    stamp(A, "f3")
    if OPT["ol"] == 1:
        for k in range(8): A.e(oload(k))
    for k in range(8):
        m, e = k >> 1, k & 1
        for tt in range(2):
            for p in range(2):
                A.e(f"ds_read_b64_tr_b16 {v(WOF+8*k+4*tt+2*p,2)}, v{RW[2*(m>>1)+tt]} offset:{((17+(m&1))&3)*16384 + e*2048 + p*1024}")
    if OPT["ol"] == 2:
        for k in range(8): A.e(oload(k))
    L, T2, TK = 102, 103, 99
    A.e(f"v_lshrrev_b32 v{L}, 4, v{LO}")
    A.e(f"v_lshrrev_b32 v{TK}, 10, v{XA}")
    A.e(f"v_and_b32 v{T2}, 7, v{L}")
    A.e(f"v_and_b32 v{T0}, 31, v{L}"); A.e(f"v_lshrrev_b32 v{T1}, 5, v{L}")
    A.e(f"v_xor_b32 v{T1}, v{T1}, v{T2}")
    A.e(f"v_lshlrev_b32 v{T0}, 8, v{T0}")
    A.e(f"s_lshr_b32 s{sT0}, s{sW}, 1"); A.e(f"s_lshl_b32 s{sT0}, s{sT0}, 13")
    A.e(f"s_lshl_b32 s{sT2}, s{sT2}, 7"); A.e(f"s_add_u32 s{sT0}, s{sT0}, s{sT2}")
    A.e(f"v_add_u32 v{T0}, s{sT0}, v{T0}")
    A.e(f"v_lshl_add_u32 v104, v{T1}, 4, v{T0}")
    A.e(f"v_xor_b32 v80, 0x80, v104"); A.e(f"v_add_u32 v80, {81920}, v80")
    for q in range(1, 4): A.e(f"v_xor_b32 v{104+q}, {32*q}, v104"); A.e(f"v_xor_b32 v{80+q}, {32*q}, v80")
    A.e(f"v_and_b32 v{T1}, 7, v{TK}")
    A.e(f"v_lshlrev_b32 v{T2}, 1, v{T2}"); A.e(f"v_xor_b32 v{T2}, v{T2}, v{T1}")
    A.e(f"v_lshlrev_b32 v{T0}, 8, v{TK}")
    A.e(f"v_lshl_add_u32 v108, v{T2}, 4, v{T0}"); A.e("v_xor_b32 v109, 16, v108")
    A.e(f"v_add_u32 v84, {81920}, v108"); A.e(f"v_add_u32 v85, {81920}, v109")
    for i in range(4):
        A.e(f"v_lshlrev_b32 v{112+2*i}, 16, v{XRES+i}"); A.e(f"v_and_b32 v{113+2*i}, 0xffff0000, v{XRES+i}")
    A.e("s_waitcnt lgkmcnt(0)")
    for k in range(8):
        A.e(f"s_waitcnt vmcnt({7-k})")
        A.label(f"L_oc{k}")
        A.e(f"v_cmp_eq_u32 vcc, -1, v{OF+4*k}")
        A.e("s_nop 1")
        A.e(f"s_cbranch_vccz L_ok{k}")
        if OPT["lp"]: A.e(f"s_add_u32 s{sT3}, s{sO[k>>1]}, {(k&1)*1024 + 1008}")
        A.e(f"s_call_b64 s[{RET2}:{RET2+1}], L_refresh")
        A.e(f"s_cbranch_scc0 L_oc{k}")
        A.label(f"L_ok{k}")
        A.e(f"{MF} {v(DACC,16)}, {v(WOF+8*k,4)}, {v(OF+4*k,4)}, {v(DACC,16)}")
        A.e(f"{MF} {v(ACC2,16)}, {v(WOF+8*k+4,4)}, {v(OF+4*k,4)}, {'0' if k == 0 else v(ACC2,16)}")
    stamp(A, "p3")
    A.e("s_nop 10")
    for q in range(4): A.e(f"ds_write_b128 v{104+q}, {v(DACC+4*q,4)}")
    for q in range(4): A.e(f"ds_write_b128 v{80+q}, {v(ACC2+4*q,4)}")
    A.e("s_waitcnt lgkmcnt(0)")
    A.e("s_barrier")
    stamp(A, "cbar")
    for w in range(4):
        a0, a1 = (108, 109) if w < 2 else (84, 85)
        A.e(f"ds_read_b128 {v(32+8*w,4)}, v{a0} offset:{(w&1)*16384}")
        A.e(f"ds_read_b128 {v(36+8*w,4)}, v{a1} offset:{(w&1)*16384}")
    for w in range(4):
        A.e(f"s_waitcnt lgkmcnt({6-2*w})")
        for i in range(8): A.e(f"v_add_f32 v{112+i}, v{112+i}, v{32+8*w+i}")
    for i in range(4): A.e(f"v_cvt_pk_bf16_f32 v{XRES+i}, v{112+2*i}, v{113+2*i}")
    A.e(f"buffer_store_dwordx4 {v(XRES,4)}, v{XA}, {srd(SOUT)}, s{sOO} offen{('', ' sc1', ' nt', ' sc0 sc1')[OPT['ost']]}")
    A.e(f"s_or_b32 s{sT0}, s2, s{sW}"); A.e(f"s_cmp_lg_u32 s{sT0}, 0"); A.e("s_cbranch_scc1 L_noep")
    A.e(f"s_mov_b32 s{sT0}, {EPOCH}")
    flag_store(sT0)
    A.label("L_noep")
    if SPIN:
        A.label("L_spin")
        A.e("s_memrealtime s[76:77]"); A.e("s_waitcnt lgkmcnt(0)")
        A.e("s_sub_u32 s76, s76, s74"); A.e(f"s_cmp_lt_u32 s76, {OPT.get('T', 6000)}"); A.e("s_cbranch_scc1 L_spin")
    if INSTR:
        A.e("s_waitcnt vmcnt(0)")
        stamp(A, "end")
        A.e("s_memrealtime s[98:99]"); A.e("s_waitcnt lgkmcnt(0)")
        A.e(f"s_lshl_b32 s{sT0}, s2, 3"); A.e(f"s_add_u32 s{sT0}, s{sT0}, s{sW}"); A.e(f"s_lshl_b32 s{sT0}, s{sT0}, 8")
        A.e(f"s_add_u32 s{sT0}, s{sT0}, {PROF}")
        A.e("v_writelane_b32 v127, s74, 0"); A.e("v_writelane_b32 v127, s98, 1")
        A.e(f"v_writelane_b32 v127, s{sSPIN}, 2"); A.e(f"v_writelane_b32 v127, s{sFB}, 3")
        A.e(f"v_lshrrev_b32 v{T0}, 2, v{LO}")
        A.e(f"buffer_store_dword v127, v{T0}, {srd(SWS)}, s{sT0} offen")
    A.e("s_endpgm")
    A.raw("    .p2align 6"); A.e("s_nop 0")
    A.label("L_burst")
    A.e("s_barrier")
    for i in range(4):
        b = i & 1; nb = b ^ 1
        e = [f"v_exp_f32 v{S[b]+j}, v{S[b]+j}" for j in range(16)]
        c = [f"v_cvt_pk_bf16_f32 v{P[b]+j}, v{S[b]+2*j}, v{S[b]+2*j+1}" for j in range(8)]
        qk = f"{MF} {v(S[nb],16)}, {v(KFR[i],4)}, {v(Q,4)}, {v(C,16)}"
        pv0 = f"{MF} {v(O,16)}, {v(VFR[i][0],4)}, {v(P[nb],4)}, {v(O,16)}"
        pv1 = f"{MF} {v(O,16)}, {v(VFR[i][1],4)}, {v(P[nb]+4,4)}, {v(O,16)}"
        sm = f"{MF} {v(DACC,16)}, {v(DW[i],4)}, {v(HF[i],4)}, {v(DACC,16)}"
        run(e[0:4] + [qk] + e[4:10] + [pv0] + e[10:16] + [pv1] + c + [sm])
    A.e("s_waitcnt vmcnt(5)")
    A.e("s_cbranch_scc1 L_bret")
    A.e("s_barrier")
    A.label("L_bret")
    A.e(f"s_setpc_b64 s[{RET}:{RET+1}]")
    A.label("L_refresh")
    if OPT["lp"]:
        A.e("s_mov_b64 exec, 1")
        A.label("L_lp")
        A.e(f"buffer_load_dword v{T0}, off, {srd(SWS)}, s{sT3} sc1")
        A.e(f"s_max_u32 s{sSPIN}, s{sSPIN}, 1"); A.e(f"s_sub_u32 s{sSPIN}, s{sSPIN}, 1")
        A.e("s_waitcnt vmcnt(0)")
        A.e(f"v_cmp_eq_u32 vcc, -1, v{T0}")
        A.e(f"s_cmp_eq_u32 s{sSPIN}, 0"); A.e("s_cbranch_scc1 L_lpo")
        A.e("s_cbranch_vccnz L_lp")
        A.label("L_lpo")
        A.e("s_mov_b64 exec, -1")
    else:
        A.e("s_waitcnt vmcnt(0)")
        A.e("s_sleep 1")
    for k in range(8):
        A.e(f"v_cmp_eq_u32 vcc, -1, v{OF+4*k}")
        A.e("s_nop 1")
        A.e(f"s_cbranch_vccz L_rf{k}")
        A.e(oload(k))
        A.label(f"L_rf{k}")
    A.e("s_waitcnt vmcnt(0)")
    A.e(f"s_max_u32 s{sSPIN}, s{sSPIN}, 1"); A.e(f"s_sub_u32 s{sSPIN}, s{sSPIN}, 1")
    A.e(f"s_cmp_eq_u32 s{sSPIN}, 0")
    A.e(f"s_setpc_b64 s[{RET2}:{RET2+1}]")
    A.label("L_fallback")
    A.e(f"s_mov_b32 s{sFB}, 1"); A.e(f"s_mov_b32 s{sI}, 0")
    A.e(f"s_mov_b32 s{sVO}, s{sKB}")
    A.e(f"v_mov_b32 v{T0}, 0xff800000")
    A.label("L_maxloop")
    A.e(f"buffer_load_dwordx4 {v(KFR[0],4)}, v{LO}, {srd(SWS)}, s{sVO} offen sc1"); A.e("s_waitcnt vmcnt(0)")
    A.e(f"{MF} {v(S[0],16)}, {v(KFR[0],4)}, {v(Q,4)}, 0")
    A.e("s_nop 7"); A.e("s_nop 3")
    for i in range(0, 16, 2): A.e(f"v_max3_f32 v{T0}, v{T0}, v{S[0]+i}, v{S[0]+i+1}")
    A.e(f"s_add_u32 s{sVO}, s{sVO}, 1024")
    A.e(f"s_add_u32 s{sI}, s{sI}, 1"); A.e(f"s_cmp_lt_u32 s{sI}, 64"); A.e("s_cbranch_scc1 L_maxloop")
    A.e(f"v_mov_b32 v{T1}, v{T0}"); A.e("s_nop 1")
    A.e(f"v_permlane32_swap_b32 v{T0}, v{T1}"); A.e("s_nop 0")
    A.e(f"v_max_f32 v{T0}, v{T0}, v{T1}")
    for i in range(16): A.e(f"v_sub_f32 v{C+i}, 0, v{T0}")
    for i in range(16): A.e(f"v_mov_b32 v{O+i}, 0")
    A.e(f"s_mov_b32 s{sI}, 0")
    A.label("L_fbloop")
    A.e(f"s_add_u32 s{sVO}, s{sKB}, {VF-KF}")
    A.e(f"buffer_load_dwordx4 {v(KFR[0],4)}, v{LO}, {srd(SWS)}, s{sKB} offen sc1")
    A.e(f"s_mov_b64 exec, s[{sMSK}:{sMSK+1}]")
    A.e(f"buffer_load_dwordx4 {v(VFR[0][0],4)}, v{LO}, {srd(SWS)}, s{sVO} offen sc1")
    A.e(f"buffer_load_dwordx4 {v(VFR[0][1],4)}, v{LO}, {srd(SWS)}, s{sVO} offen offset:256 sc1")
    A.e("s_mov_b64 exec, -1")
    A.e("s_waitcnt vmcnt(0)")
    A.e(f"{MF} {v(S[0],16)}, {v(KFR[0],4)}, {v(Q,4)}, {v(C,16)}")
    A.e("s_nop 7"); A.e("s_nop 3")
    for i in range(16): A.e(f"v_exp_f32 v{S[0]+i}, v{S[0]+i}")
    A.e("s_nop 0")
    for i in range(8): A.e(f"v_cvt_pk_bf16_f32 v{P[0]+i}, v{S[0]+2*i}, v{S[0]+2*i+1}")
    A.e("s_nop 1")
    for f in range(2): A.e(f"{MF} {v(O,16)}, {v(VFR[0][f],4)}, {v(P[0]+4*f,4)}, {v(O,16)}")
    A.e(f"s_add_u32 s{sKB}, s{sKB}, 1024")
    A.e(f"s_add_u32 s{sI}, s{sI}, 1"); A.e(f"s_cmp_lt_u32 s{sI}, 64"); A.e("s_cbranch_scc1 L_fbloop")
    A.e("s_nop 7"); A.e("s_nop 3")
    A.e(f"v_rcp_f32 v{T3}, v{O+8}"); A.e("s_nop 0")
    A.e("s_branch L_fin")
    A.label("L_end")
    A.e("s_endpgm")
    return A

HEADER = open("parallel_sum__softmax_full_mha__swiglu_ffn__prompt.s.ref").read().split("; Override")[0]
def build():
    A = gen()
    body = A.text()
    probs = check_hazards(body)
    out = HEADER + "; @launch grid=(256,1,1) block=(512,1,1) lds=163840\n" + '.amdgcn_target "amdgcn-amd-amdhsa--gfx950"\n' + body
    out += KD.format(name=NAME, nvgpr=256, nsgpr=102, accum=256)
    return out, probs

if __name__ == "__main__":
    if len(sys.argv) > 2 and sys.argv[2].startswith("spin:"): SPIN = sys.argv[2][5:]
    elif len(sys.argv) > 2 and sys.argv[2] != "0": INSTR = sys.argv[2]
    for kv in sys.argv[3:]:
        k_, v_ = kv.split("="); OPT[k_] = int(v_)
    out, probs = build()
    if INSTR: out += "; STAMPS " + ",".join(STAMPS) + "\n"
    open(sys.argv[1], "w").write(out)
    print("hazards:", len(probs), "chars:", len(out))
```

```python
import sys, struct
from asmlib import *

QF, KF, VF, ACTF = 0, 2 << 20, 4 << 20, 8 << 20
FLG = 20 << 20
F1 = FLG
EPOCH = FLG + 49152
STT = FLG + 65536
F2 = FLG + 131072
F3 = FLG + 262144
CSG = FLG + 524288
PROF = 24 << 20
WS_SIZE = 32 << 20
KA = dict(x=0, wqkv=8, wo=16, bx=24, wg=32, wu=40, wd=48, out=56, dbg=64, ws=72)
SZ = dict(x=2048*512*2, wqkv=512*1536*2, wo=512*512*2, wg=512*1792*2, wu=512*1792*2, wd=1792*512*2, out=2048*512*2, ws=WS_SIZE)
LOG2E = 1.4426950408889634
def f2u(f): return struct.unpack("<I", struct.pack("<f", f))[0]
def hx(f): return "0x%08x" % f2u(f)
NAME = "parallel_sum__softmax_full_mha__swiglu_ffn__prompt_kernel"
INSTR = False
OPT = dict(sth=-1, cl=24, s1e=1, ol=1, lp=0, gs=0, gc=14, jit=1, rv0=128, rotm=0, spl=0, cpf=1, e1=0, ost=2, wow=0, ss=3, tlb=0, pre=2, fq=3, fqr=4, pk=8, rvb=80, rvr=128, m2b=12, fa=9, i3=3, osp=1, spp=2)

WRING, HRING = 32768, 98304
SL, SCR = 40960, 32768

SX, SQ, SG, SU, SD, SO, SOUT, SWS = 4, 8, 12, 16, 20, 24, 28, 32
SCUR = 36
(sRB, sGI, sHD, sJ, sTM, sTN, sW, sTQ, sKH, sROT, sTAG, sT0, sT1, sT2, sXB, sXO, sKB, sMW, sONE, sTB, sI,
 sKO, sVO, sWSO, sHSO, sMK, sSPIN, sXCD, sLA, sLB) = range(40, 70)
sMSK = 70
sMH, sHS3 = 72, 73
sAO, sFB, sTBq, sLQ, sRAH, sM1, sM2, sSC, sHS2, sAO2, sRK, sSCR, sCSW, sCSR, sT3, sP0, sP1, sP2 = range(80, 98)
MF = "v_mfma_f32_32x32x16_bf16"
def srd(b): return f"s[{b}:{b+3}]"

STAMPS = []
SPIN = None
def stamp(A, name, dyn=0):
    if SPIN and name == SPIN:
        A.e("s_memrealtime s[74:75]"); A.e("s_waitcnt lgkmcnt(0)"); A.lgkm = []
    if not INSTR: return
    if INSTR == "min" and name not in ("start", "B2", "b0", "BB0", "it0", "drain", "p3", "end"): return
    if name not in STAMPS:
        STAMPS.append(name)
        for i in range(1, dyn): STAMPS.append(f"{name}+{i}")
    i = STAMPS.index(name) + 4
    assert i + dyn < 64
    if INSTR == "min" and name in ("B2", "b0", "BB0", "drain") :
        if name + "R" not in STAMPS: STAMPS.append(name + "R")
        A.e("s_memrealtime s[76:77]"); A.e("s_waitcnt lgkmcnt(0)")
        A.e(f"v_writelane_b32 v127, s76, {STAMPS.index(name + 'R') + 4}")
    A.e("s_memtime s[76:77]")
    if dyn: A.e(f"s_add_u32 s78, s{sI}, {i}")
    A.e("s_waitcnt lgkmcnt(0)"); A.lgkm = []
    A.e(f"v_writelane_b32 v127, s76, {i}" if not dyn else "s_mov_b32 s79, m0\ns_mov_b32 m0, s78\ns_nop 0\nv_writelane_b32 v127, s76, m0\ns_mov_b32 m0, s79")

class Side:
    def __init__(self, A): self.q = []; self.A = A
    def add(self, *xs): self.q.extend(xs)
    def pull(self, n):
        for _ in range(n):
            if not self.q: return
            x = self.q.pop(0)
            if callable(x): x()
            else: self.A.e(x)
    def flush(self): self.pull(len(self.q))

def gen():
    A = Asm()
    def run(lst):
        for x in lst: x() if callable(x) else A.e(x)
    nl = [0]
    def lab(p): nl[0] += 1; return f"L_{p}{nl[0]}"
    def retry(loads, tagregs, label, tmp=None):
        A.label(label + "_chk")
        if len(tagregs) == 1: A.e(f"v_cmp_ne_u32 vcc, s{sTAG}, v{tagregs[0]}")
        else:
            t_ = list(tagregs)
            lo, hi = tmp
            A.e(f"v_min3_u32 v{lo}, v{t_[0]}, v{t_[1]}, v{t_[2]}"); A.e(f"v_max3_u32 v{hi}, v{t_[0]}, v{t_[1]}, v{t_[2]}")
            if len(t_) > 3:
                A.e(f"v_min3_u32 v{lo}, v{lo}, v{t_[3]}, v{t_[-1]}"); A.e(f"v_max3_u32 v{hi}, v{hi}, v{t_[3]}, v{t_[-1]}")
            A.e(f"v_xor_b32 v{lo}, s{sTAG}, v{lo}"); A.e(f"v_xor_b32 v{hi}, s{sTAG}, v{hi}"); A.e(f"v_or_b32 v{lo}, v{lo}, v{hi}")
            A.e(f"v_cmp_ne_u32 vcc, 0, v{lo}")
        A.e(f"s_cmp_eq_u32 s{sSPIN}, 0")
        A.e(f"s_cbranch_scc1 {label}_ok")
        A.e("s_nop 0")
        A.e(f"s_cbranch_vccz {label}_ok")
        A.e(f"s_sub_u32 s{sSPIN}, s{sSPIN}, 1")
        A.e("s_sleep 1")
        run(loads)
        A.e("s_waitcnt vmcnt(0)")
        A.e(f"s_branch {label}_chk")
        A.label(label + "_ok")

    A.raw(".text"); A.raw(f".globl {NAME}"); A.raw(".p2align 8"); A.raw(f".type {NAME},@function"); A.label(NAME)
    A.e("s_cmp_ge_u32 s2, 256"); A.e("s_cbranch_scc1 L_end")
    if SPIN: stamp(A, "start")
    if INSTR:
        A.e("s_memrealtime s[74:75]"); A.e("v_mov_b32 v127, 0")
        stamp(A, "start")
    RAW, T0, T1, WD0, T3, LO = 1, 2, 3, 4, 5, 6
    L, T2 = 40, 41
    def ksrd(items):
        for n, b in items:
            A.e(f"s_mov_b32 s{b+2}, {SZ[n]}"); A.e(f"s_mov_b32 s{b+3}, {'0x00020000' if b == SX else 's%d' % (SX+3)}")
    A.e(f"s_getpc_b64 s[{SCUR}:{SCUR+1}]")
    A.label("L_pc")
    A.e(f"s_load_dwordx2 s[{SX}:{SX+1}], s[0:1], {KA['x']}")
    A.e(f"v_lshlrev_b32 v{T1}, 7, v0")
    A.e(f"v_cmp_gt_u32 vcc, {OPT['cl']}, v0")
    A.e(f"s_and_saveexec_b64 s[{sMSK}:{sMSK+1}], vcc")
    A.e("s_cbranch_execz L_nc0")
    A.e(f"global_load_dword v95, v{T1}, s[{SCUR}:{SCUR+1}] offset:128")
    A.label("L_nc0")
    A.e("s_mov_b64 exec, -1")
    A.e(f"v_lshrrev_b32 v{T0}, 6, v0"); A.e(f"v_and_b32 v{L}, 63, v0")
    A.e(f"v_readfirstlane_b32 s{sW}, v{T0}")
    for n, b in [("wqkv", SQ), ("wg", SG), ("wu", SU), ("ws", SWS)]: A.e(f"s_load_dwordx2 s[{b}:{b+1}], s[0:1], {KA[n]}")
    ksrd([("x", SX)])
    sSUB, sGQ, sROW = sKO, sVO, sT3
    ACC1, ACCA, ACCB = 16, 32, 64
    XD, QD, RQ, XRD, GRAN, CS1, CG = 64, 66, 67, 68, 72, 76, 88
    RS, NEGM = 0, 7
    RG = [8, 9]; ONES = 10; CS2 = [12, 122]; SD2 = 126
    WF = [96 + 4*i for i in range(6)]
    GD, UD = 120, 121
    X = 128
    A.e(f"s_and_b32 s{sRB}, s2, 1"); A.e(f"s_bfe_u32 s{sT0}, s2, 0x30003"); A.e(f"s_lshl3_add_u32 s{sRB}, s{sRB}, s{sT0}")
    A.e(f"s_lshr_b32 s{sSUB}, s2, 6")
    A.e(f"s_lshl1_add_u32 s{sROT}, s{sSUB}, s{sRB}")
    A.e(f"s_and_b32 s{sTQ}, s{sW}, 3"); A.e(f"s_lshr_b32 s{sKH}, s{sW}, 2")
    A.e(f"s_lshl2_add_u32 s{sTB}, s{sRB}, s{sTQ}")
    A.e(f"s_lshl1_add_u32 s{sXO}, s{sTB}, s{sKH}"); A.e(f"s_lshl_b32 s{sXO}, s{sXO}, 14")
    A.e(f"s_lshl1_add_u32 s{sXB}, s{sTQ}, s{sKH}"); A.e(f"s_lshl_b32 s{sXB}, s{sXB}, 11")
    A.e(f"v_lshrrev_b32 v{T0}, 3, v{L}"); A.e(f"v_lshlrev_b32 v{WD0}, 10, v{T0}")
    A.e(f"v_lshrrev_b32 v{T1}, 4, v{L}"); A.e(f"v_and_b32 v{T2}, 7, v{L}"); A.e(f"v_xor_b32 v{T1}, v{T1}, v{T2}")
    A.e(f"v_lshl_add_u32 v{XD}, v{T1}, 4, v{WD0}")
    A.e(f"v_xor_b32 v{XD+1}, 64, v{XD}")
    A.e(f"v_add_u32 v{XD+1}, 7168, v{XD+1}")

    def issue1_list(typ, t):
        sb = (t & 3)*SL
        out = []
        def fx():
            A.e(f"s_add_u32 s{sT2}, s{sROT}, {t}"); A.e(f"s_and_b32 s{sT2}, s{sT2}, 7")
            A.e(f"s_lshl_b32 s{sT0}, s{sT2}, 7")
            A.e(f"s_add_u32 m0, s{sXB}, {sb + 24576}")
            A.e(f"s_add_u32 s{sT0}, s{sT0}, s{sXO}")
            A.vmem(f"buffer_load_dwordx4 v{XD}, {srd(SX)}, s{sT0} offen lds", ("s1", t))
        def fx2():
            A.e(f"s_add_u32 m0, s{sXB}, {sb + 24576}")
            A.e(f"s_lshl3_add_u32 s{sT2}, s{sT2}, s{sW}")
            A.vmem(f"buffer_load_dwordx4 v{XD+1}, {srd(SX)}, s{sT0} offen offset:1024 lds", ("s1", t))
        out += [fx, fx2]
        for u in range(3):
            def f(u=u):
                if u == 0:
                    A.e(f"s_mul_i32 s{sT1}, s{sT2}, {8*3072}")
                    A.e(f"s_add_u32 m0, s{sM1}, {sb}")
                    A.e(f"s_add_u32 s{sT0}, s{sT1}, s{sLQ}")
                elif u == 1:
                    if typ == "P": A.e(f"s_mul_i32 s{sT1}, s{sT2}, {8*3584}")
                    A.e(f"s_add_u32 m0, s{sM1}, {sb + 2048}")
                    A.e(f"s_add_u32 s{sT0}, s{sT1}, s{sLA}")
                else:
                    A.e(f"s_add_u32 m0, s{sM1}, {sb + 4096}")
                    if typ == "R": A.e(f"s_add_u32 s{sT0}, s{sT0}, 128")
                    else: A.e("s_nop 0")
                ad, sr = (QD, SQ) if (u == 0 or typ == "R") else ((GD, SG), (UD, SU))[u-1]
                A.vmem(f"buffer_load_dwordx4 v{ad}, {srd(sr)}, s{sT0} offen lds", ("s1", t))
            out.append(f)
        for f in out: f.tag = ("s1", t)
        return out
    def issue2_list(st):
        out = []
        for u in range(2):
            for hb in range(2):
                def f(u=u, hb=hb):
                    if u == 0 and hb == 0:
                        A.e(f"s_add_u32 s{sT2}, s{sRK}, {2*st}"); A.e(f"s_and_b32 s{sT2}, s{sT2}, 7")
                        A.e(f"s_lshl2_add_u32 s{sT2}, s{sT2}, s{sTQ}")
                        A.e(f"s_mul_i32 s{sT2}, s{sT2}, {16*3584}"); A.e(f"s_add_u32 s{sT2}, s{sT2}, s{sLB}")
                    A.e(f"s_add_u32 m0, s{sM2}, {st*SL + u*2048 + hb*1024}")
                    if u == 0 and hb == 0: A.e(f"s_add_u32 s{sT1}, s{sT2}, {8*3584}")
                    else: A.e("s_nop 0")
                    ad, sr = ((GD, SG), (UD, SU))[u]
                    A.vmem(f"buffer_load_dwordx4 v{ad}, {srd(sr)}, s{sT1 if hb else sT2} offen lds", ("s2", st))
                f.tag = ("s2", st)
                out.append(f)
        return out
    def typed_issue(ts, tagl):
        sv = list(A.vm)
        A.e(f"s_cmp_ge_u32 s{sGI}, 12"); A.e(f"s_cbranch_scc1 L_ti{tagl}_R")
        for t in ts: run(issue1_list("P", t))
        A.e(f"s_branch L_ti{tagl}_done")
        A.label(f"L_ti{tagl}_R"); A.vm = sv
        for t in ts: run(issue1_list("R", t))
        A.label(f"L_ti{tagl}_done")
    A.e("s_waitcnt lgkmcnt(0)"); stamp(A, "karg")
    run(issue1_list("P", 0)[:2])
    for n, b in [("wd", SD), ("wo", SO), ("out", SOUT)]: A.e(f"s_load_dwordx2 s[{b}:{b+1}], s[0:1], {KA[n]}")
    ksrd([("wqkv", SQ)])
    A.e(f"s_bfe_u32 s{sGQ}, s2, 0x20001")
    A.e(f"s_mul_i32 s{sGI}, s{sGQ}, 3"); A.e(f"s_add_u32 s{sGI}, s{sGI}, s{sSUB}")
    A.e(f"s_add_u32 s{sI}, s{sGQ}, 12")
    A.e(f"s_cmp_eq_u32 s{sSUB}, 3"); A.e(f"s_cselect_b32 s{sGI}, s{sI}, s{sGI}")
    A.e(f"s_lshl_b32 s{sLQ}, s{sGI}, 7")
    A.e(f"s_lshr_b32 s{sI}, s{sW}, 1"); A.e(f"s_lshl2_add_u32 s{sM1}, s{sI}, s{sW}"); A.e(f"s_lshl_b32 s{sM1}, s{sM1}, 10")
    A.e(f"v_bfe_u32 v{T1}, v{L}, 2, 1"); A.e(f"v_bfe_u32 v{T3}, v{L}, 4, 1"); A.e(f"v_xor_b32 v{T1}, v{T1}, v{T3}")
    A.e(f"v_lshlrev_b32 v{T1}, 2, v{T1}"); A.e(f"v_and_or_b32 v{T1}, v{L}, 3, v{T1}")
    A.e(f"v_mul_u32_u24 v{QD}, 3072, v{T0}"); A.e(f"v_lshl_add_u32 v{QD}, v{T1}, 4, v{QD}")
    run(issue1_list("P", 0)[2:3])
    ksrd([("wg", SG), ("wu", SU), ("ws", SWS)])
    A.e(f"s_lshl_b32 s{sI}, s{sGI}, 8"); A.e(f"s_sub_u32 s{sI}, s{sI}, {8*128}")
    A.e(f"s_cmp_ge_u32 s{sGI}, 12"); A.e(f"s_cselect_b32 s{sLA}, s{sI}, s{sLQ}")
    A.e(f"v_lshl_add_u32 v{WD0}, v{T1}, 4, v{WD0}")
    A.e(f"v_mul_u32_u24 v{T0}, 3584, v{T0}")
    A.e(f"v_and_b32 v{T1}, 1, v{L}"); A.e(f"v_lshl_add_u32 v{T0}, v{T1}, 4, v{T0}")
    A.e(f"v_bfe_u32 v{T1}, v{L}, 1, 2"); A.e(f"v_xor_b32 v{T1}, v{T1}, v{T3}")
    A.e(f"v_lshl_add_u32 v{GD}, v{T1}, 5, v{T0}")
    A.e(f"v_xor_b32 v{UD}, 64, v{GD}")
    A.e(f"v_lshlrev_b32 v{LO}, 4, v{L}")
    sv = list(A.vm)
    A.e("s_cbranch_scc1 L_sp_R")
    run(issue1_list("P", 0)[3:]); A.e("s_branch L_sp_d")
    A.label("L_sp_R"); A.vm = sv
    run(issue1_list("R", 0)[3:])
    A.label("L_sp_d")
    A.e(f"s_lshl4_add_u32 s{sROW}, s{sRB}, s{sGI}"); A.e(f"s_lshl3_add_u32 s{sROW}, s{sROW}, s{sW}")
    A.e(f"s_lshl_b32 s{sT2}, s{sROW}, 10")
    A.e(f"s_mov_b32 s{sT0}, {EPOCH}")
    A.vmem(f"buffer_load_dwordx4 v[88:91], v{LO}, {srd(SX)}, s{sT2} offen", "row")
    A.e("s_mov_b64 exec, 1")
    A.vmem(f"buffer_load_dword v92, off, {srd(SWS)}, s{sT0} sc1", "row")
    A.e("s_mov_b64 exec, -1")
    stamp(A, "i0")
    A.e(f"s_lshr_b32 s{sJ}, s2, 3"); A.e(f"s_and_b32 s{sXCD}, s2, 7")
    A.e(f"s_cmp_lg_u32 s{sW}, 7"); A.e("s_cbranch_scc1 L_nocpf")
    A.e(f"s_lshl_b32 s{sT0}, s{sJ}, 3")
    A.e(f"v_add_lshl_u32 v{T0}, v{L}, s{sT0}, 7")
    A.e(f"v_min_u32 v{T0}, L_end-L_pc, v{T0}")
    A.e("s_mov_b64 exec, 0xff")
    A.e(f"global_load_dword v95, v{T0}, s[{SCUR}:{SCUR+1}]")
    A.e("s_mov_b64 exec, -1")
    A.label("L_nocpf")
    A.e("s_waitcnt lgkmcnt(0)")
    ksrd([("wd", SD), ("wo", SO), ("out", SOUT)])
    A.e(f"s_and_b32 s{sT0}, s{sJ}, 7")
    A.e(f"s_and_b32 s{sTM}, s{sXCD}, 3"); A.e(f"s_lshl3_add_u32 s{sTM}, s{sTM}, s{sT0}")
    A.e(f"s_lshr_b32 s{sTN}, s{sXCD}, 2"); A.e(f"s_lshl2_add_u32 s{sTN}, s{sTN}, s{sSUB}")
    A.e(f"s_and_b32 s{sT0}, s{sJ}, 3"); A.e(f"s_lshl2_add_u32 s{sHD}, s{sXCD}, s{sT0}")
    A.e(f"s_lshr_b32 s{sJ}, s{sJ}, 2")
    A.e(f"s_add_u32 s{sLB}, s{sLQ}, {12*128}")
    A.e(f"s_lshl_b32 s{sM2}, s{sW}, 12")
    A.e(f"s_add_u32 s{sRK}, s{sROT}, s{sKH}")
    A.e(f"s_mov_b32 s{sSPIN}, 0x40000")
    A.e(f"s_mov_b32 s{sONE}, 0x3f803f80")
    A.e(f"s_mov_b32 s{sMSK}, 0xffff"); A.e(f"s_mov_b32 s{sMSK+1}, 0xffff")
    A.e(f"s_mov_b32 s{sI}, {hx(-0.25)}"); A.e(f"s_mov_b32 s{sSC}, {hx(-1/LOG2E)}")
    A.e(f"s_cmp_lt_u32 s{sGI}, 8"); A.e(f"s_cselect_b32 s{sSC}, s{sI}, s{sSC}")
    A.e(f"s_lshl_b32 s{sT0}, s{sTB}, 10"); A.e(f"s_lshl_b32 s{sI}, s{sKH}, 17"); A.e(f"s_add_u32 s{sT0}, s{sT0}, s{sI}")
    A.e(f"s_lshl_b32 s{sHSO}, s{sGI}, 18"); A.e(f"s_add_u32 s{sHSO}, s{sHSO}, s{sT0}")
    A.e(f"s_lshl_b32 s{sT1}, s{sLA}, 11"); A.e(f"s_add_u32 s{sT1}, s{sT1}, s{sT0}")
    A.e(f"s_mul_i32 s{sT0}, s{sTB}, {144*1024}"); A.e(f"s_lshl_b32 s{sI}, s{sKH}, 11"); A.e(f"s_add_u32 s{sT0}, s{sT0}, s{sI}")
    A.e(f"s_lshl_b32 s{sI}, s{sLQ}, 5"); A.e(f"s_add_u32 s{sT0}, s{sT0}, s{sI}"); A.e(f"s_add_u32 s{sHS2}, s{sT0}, {ACTF}")
    A.e(f"s_add_u32 s{sHS3}, s{sHS2}, {48*1024}")
    A.e(f"s_cmp_ge_u32 s{sGI}, 12"); A.e(f"s_cselect_b32 s{sHS2}, s{sT1}, s{sHS2}")
    A.e(f"s_lshl1_add_u32 s{sI}, s{sGI}, s{sKH}"); A.e(f"s_lshl_b32 s{sI}, s{sI}, 13"); A.e(f"s_add_u32 s{sI}, s{sI}, {CSG}")
    A.e(f"s_lshl_b32 s{sT0}, s{sRB}, 9"); A.e(f"s_add_u32 s{sCSW}, s{sI}, s{sT0}")
    A.e(f"s_and_b32 s{sT0}, s{sT0}, 4096"); A.e(f"s_add_u32 s{sCSR}, s{sI}, s{sT0}")
    A.e(f"s_lshl3_add_u32 s{sTBq}, s{sJ}, s{sW}")
    A.e(f"s_lshl_b32 s{sKB}, s{sHD}, 16"); A.e(f"s_lshl_b32 s{sVO}, s{sTBq}, 10"); A.e(f"s_add_u32 s{sVO}, s{sVO}, s{sKB}")
    A.e(f"s_add_u32 s{sKB}, s{sKB}, {KF}")
    A.e(f"s_mul_i32 s{sI}, s{sKH}, {VF - KF - 2048}"); A.e(f"s_add_u32 s{sKO}, s{sKB}, s{sI}"); A.e(f"s_lshl_b32 s{sI}, s{sTQ}, 10")
    A.e(f"s_add_u32 s{sKO}, s{sKO}, s{sI}"); A.e(f"s_add_u32 s{sKO}, s{sKO}, 1024")
    A.e(f"s_lshl_b32 s{sMK}, s{sW}, 10")
    A.e(f"s_lshl_b32 s{sMW}, s{sW}, 11"); A.e(f"s_add_u32 s{sMH}, s{sMW}, {HRING}"); A.e(f"s_add_u32 s{sMW}, s{sMW}, {WRING}")
    A.e(f"s_lshl_b32 s{sWSO}, s{sW}, 14"); A.e(f"s_lshl_b32 s{sI}, s{sTN}, 7"); A.e(f"s_add_u32 s{sWSO}, s{sWSO}, s{sI}")
    A.e(f"s_mul_i32 s{sAO}, s{sTM}, {2*144*1024}"); A.e(f"s_add_u32 s{sAO}, s{sAO}, s{sMK}")
    A.e(f"s_add_u32 s{sAO}, s{sAO}, {ACTF}"); A.e(f"s_add_u32 s{sAO2}, s{sAO}, {144*1024 - 1024}")
    A.e(f"s_lshl_b32 s{sT1}, s{sKH}, 13"); A.e(f"s_bfe_u32 s{sI}, s{sW}, 0x10001"); A.e(f"s_lshl_b32 s{sI}, s{sI}, 10")
    A.e(f"s_add_u32 s{sRAH}, s{sT1}, s{sI}"); A.e(f"s_add_u32 s{sRAH}, s{sRAH}, {HRING}")
    for i in range(4): A.e(f"s_mov_b32 s{SCUR+i}, s{SD+i}")
    A.e(f"s_lshl_b32 s{sP0}, s{sXCD}, 11"); A.e(f"s_add_u32 s{sP0}, s{sP0}, {F1}"); A.e(f"s_add_u32 s{sP1}, s{sP0}, {8*2048}")
    A.e(f"s_lshr_b32 s{sP2}, s{sXCD}, 1"); A.e(f"s_lshl_b32 s{sP2}, s{sP2}, 11"); A.e(f"s_add_u32 s{sP2}, s{sP2}, {F1 + 12*2048}")
    A.e(f"v_and_b32 v{T0}, 31, v{L}")
    A.e(f"v_bfe_u32 v{T1}, v{L}, 1, 3")
    A.e(f"v_lshrrev_b32 v{T2}, 5, v{L}")
    A.e(f"v_xor_b32 v{T1}, v{T1}, v{T2}")
    A.e(f"s_lshl_b32 s{sT0}, s{sTQ}, 12"); A.e(f"s_add_u32 s{sT0}, s{sT0}, 24576")
    A.e(f"v_lshlrev_b32 v{T0}, 7, v{T0}"); A.e(f"v_add_u32 v{T0}, s{sT0}, v{T0}")
    A.e(f"v_lshl_add_u32 v{XRD}, v{T1}, 4, v{T0}")
    for kk in range(1, 4): A.e(f"v_xor_b32 v{XRD+kk}, {32*kk}, v{XRD}")
    A.e(f"v_bfe_u32 v{T0}, v{L}, 2, 2")
    A.e(f"v_and_b32 v42, 3, v{L}"); A.e(f"v_lshlrev_b32 v42, 3, v42"); A.e(f"v_lshl_add_u32 v42, v{T0}, 7, v42")
    A.e(f"v_lshl_add_u32 v{T1}, v{T2}, 10, v42")
    A.e(f"v_lshrrev_b32 v{T0}, 1, v{T0}")
    A.e(f"v_xor_b32 v{RQ}, s{sKH}, v{T0}"); A.e(f"v_lshl_add_u32 v{RQ}, v{RQ}, 6, v{T1}")
    A.e(f"v_lshl_add_u32 v{RQ}, v{T3}, 5, v{RQ}")
    A.e(f"s_and_b32 s{sI}, s{sW}, 1"); A.e(f"s_add_u32 s{sT1}, s{sT1}, {WRING}")
    A.e(f"v_xor_b32 v{RAW}, s{sI}, v{T0}"); A.e(f"v_lshl_add_u32 v{RAW}, v{RAW}, 6, v42")
    A.e(f"v_lshl_add_u32 v{RAW}, v{T2}, 9, v{RAW}"); A.e(f"v_lshl_add_u32 v{RAW}, v{T3}, 5, v{RAW}"); A.e(f"v_add_u32 v{RAW}, s{sT1}, v{RAW}")
    A.e(f"v_lshl_add_u32 v{T1}, v{T3}, 11, v{T1}")
    A.e(f"v_lshl_add_u32 v{T0}, v{T3}, 1, v{T0}")
    A.e(f"s_lshl_b32 s{sT0}, s{sKH}, 1")
    A.e(f"v_xor_b32 v{T0}, s{sT0}, v{T0}")
    A.e(f"v_lshl_add_u32 v{RG[0]}, v{T0}, 5, v{T1}")
    A.e(f"v_xor_b32 v{RG[1]}, 32, v{RG[0]}")
    A.e(f"v_mov_b32 v{ONES}, s{sONE}"); A.e(f"v_mov_b32 v{ONES+1}, s{sONE}")
    A.e(f"v_and_b32 v{T0}, 0x2ff, v{LO}"); A.e(f"v_lshl_add_u32 v{T0}, v{T3}, 16, v{T0}")
    A.e(f"s_lshl_b32 s{sI}, s{sW}, 7"); A.e(f"s_add_u32 s{sI}, s{sI}, {SCR + 6144}")
    A.e(f"v_lshl_add_u32 v{T3}, v{T2}, 4, s{sI}")
    A.e(f"v_and_b32 v93, 31, v{L}"); A.e(f"v_lshlrev_b32 v94, 4, v93"); A.e(f"v_lshl_add_u32 v93, v93, 2, s{sI}")
    A.e("v_mov_b32 v72, 0"); A.e("v_mov_b32 v73, 0")
    if OPT["s1e"] == 1: typed_issue([1], "b")
    def row_stats(typ):
        A.wait(vm=["row"])
        stamp(A, "row")
        for i in range(4):
            A.e(f"v_dot2c_f32_bf16 v72, s{sONE}, v{88+i}"); A.e(f"v_dot2c_f32_bf16 v73, v{88+i}, v{88+i}")
        A.e(f"v_readfirstlane_b32 s{sTAG}, v92")
        A.e("s_nop 1")
        for sh in (1, 2, 4, 8):
            A.e(f"v_add_f32_dpp v72, v72, v72 row_ror:{sh} row_mask:0xf bank_mask:0xf")
            A.e(f"v_add_f32_dpp v73, v73, v73 row_ror:{sh} row_mask:0xf bank_mask:0xf")
            A.e("s_nop 0")
        A.e(f"s_mul_i32 s{sTAG}, s{sTAG}, 1664525"); A.e(f"s_add_u32 s{sTAG}, s{sTAG}, 1013904223")
        for op in ("v_permlane16_swap_b32", "v_permlane32_swap_b32"):
            A.e("v_mov_b32 v74, v72"); A.e("v_mov_b32 v75, v73"); A.e("s_nop 1")
            A.e(f"{op} v72, v74"); A.e(f"{op} v73, v75"); A.e("s_nop 0")
            A.e("v_add_f32 v72, v72, v74"); A.e("v_add_f32 v73, v73, v75")
        A.e(f"v_mul_f32 v72, {hx(1/512)}, v72"); A.e(f"v_mul_f32 v73, {hx(1/512)}, v73")
        A.e("v_fma_f32 v73, -v72, v72, v73"); A.e("v_max_f32 v73, 0, v73")
        A.e("v_cvt_pk_bf16_f32 v88, -v72, -v72")
        A.e("v_cvt_pk_bf16_f32 v73, v73, v73"); A.e("v_lshlrev_b32 v73, 16, v73")
        A.e(f"v_add_f32 v73, {hx(1e-5)}, v73")
        A.e("v_cvt_pk_bf16_f32 v73, v73, v73"); A.e("v_lshlrev_b32 v73, 16, v73")
        A.e("v_sqrt_f32 v73, v73"); A.e(f"v_mov_b32 v91, s{sTAG}")
        A.e("v_cvt_pk_bf16_f32 v73, v73, v73"); A.e("v_lshlrev_b32 v73, 16, v73")
        A.e("v_rcp_f32 v89, v73"); A.e("v_mul_f32 v90, v73, v73")
        A.e(f"s_lshl_b32 s{sI}, s{sROW}, 4"); A.e(f"s_add_u32 s{sI}, s{sI}, {STT}")
        A.e("s_mov_b64 exec, 1")
        A.e(f"buffer_store_dwordx4 v[88:91], off, {srd(SWS)}, s{sI} sc1")
        A.e("s_mov_b64 exec, -1")
        A.e(f"s_cmp_ge_u32 s{sGI}, 8"); A.e(f"s_cbranch_scc1 L_nopo_{typ}")
        A.e("v_mov_b32 v72, -1")
        A.e(f"s_add_u32 s{sI}, s{sHS2}, {112*1024}")
        A.e(f"buffer_store_dwordx4 v[72:75], v{LO}, {srd(SWS)}, s{sI} offen sc1")
        A.e(f"buffer_store_dwordx4 v[72:75], v{LO}, {srd(SWS)}, s{sI} offen offset:1024 sc1")
        A.label(f"L_nopo_{typ}")

    if OPT["sth"] < 0: row_stats("c")
    if not OPT["s1e"]: typed_issue([1], "b")
    A.wait(vm=[("s1", 0)])
    A.e("s_barrier")
    stamp(A, "B2")
    A.e(f"s_cmp_ge_u32 s{sGI}, 12"); A.e("s_cbranch_scc1 L_R")
    vm0, lg0 = list(A.vm), list(A.lgkm)

    Q = 24
    RAH, WD1, VE, PA = 122, 123, 124, 125
    PT = [16, 17, 18]
    K01 = [224, 228]
    VFR = [[32 + 8*i, 36 + 8*i] for i in range(4)]
    KFR = [96 + 4*i for i in range(4)]
    P = [176, 184]
    S = [192, 208]; O = 224; C = 240
    DACC = 128
    DW = [144 + 4*i for i in range(4)]; HF = [160 + 4*i for i in range(4)]
    def silu_list(acc, E, H, soff_s, imm, tag):
        o = []
        for i in range(8): o.append(f"v_mul_f32 v{E+i}, v{RS}, v{acc+i}")
        for i in range(8): o.append(f"v_exp_f32 v{E+i}, v{E+i}")
        for i in range(8): o.append(f"v_mul_f32 v{acc+i}, v{acc+i}, v{acc+8+i}")
        for i in range(8): o.append(f"v_fma_f32 v{E+i}, v{E+i}, v{SD2}, v{SD2}")
        for i in range(8): o.append(f"v_rcp_f32 v{E+i}, v{E+i}")
        for i in range(8): o.append(f"v_mul_f32 v{acc+i}, v{acc+i}, v{E+i}")
        for i in range(4): o.append(f"v_cvt_pk_bf16_f32 v{H+i}, v{acc+2*i}, v{acc+2*i+1}")
        o.append(lambda: A.vmem(f"buffer_store_dwordx4 {v(H,4)}, v{LO}, {srd(SWS)}, s{soff_s} offen offset:{imm} sc1", tag))
        return o
    def flag_store(soff):
        A.e("s_mov_b64 exec, 1")
        A.e(f"buffer_store_dword v{VE}, off, {srd(SWS)}, s{soff} sc1")
        A.e("s_mov_b64 exec, -1")
    def wg_flag(base, major, minor, wave=0):
        lb = lab("fl")
        A.e(f"s_cmp_lg_u32 s{sW}, {wave}"); A.e(f"s_cbranch_scc1 {lb}")
        A.e(f"s_lshl4_add_u32 s{sT3}, s{major}, s{minor}"); A.e(f"s_lshl_b32 s{sT3}, s{sT3}, 7"); A.e(f"s_add_u32 s{sT3}, s{sT3}, {base}")
        flag_store(sT3)
        A.label(lb)
    def floads(soffs): return [f"buffer_load_dword v{PT[i]}, v{PA}, {srd(SWS)}, s{so} offen sc1" for i, so in enumerate(soffs)]
    mark = [0]
    def one_load(wave, soffs, mask):
        lb = lab("fl")
        A.e(f"s_cmp_lg_u32 s{sW}, {wave}"); A.e(f"s_cbranch_scc1 {lb}")
        A.e(f"s_mov_b64 exec, {mask}"); run(floads(soffs)); A.e("s_mov_b64 exec, -1")
        A.label(lb)
        mark[0] = A.nvm
    def one_check(wave, soffs, mask):
        cnt = A.nvm - mark[0]
        lb = lab("ck")
        A.e(f"s_cmp_lg_u32 s{sW}, {wave}"); A.e(f"s_cbranch_scc1 {lb}")
        A.e("s_setprio 3")
        A.e(f"s_mov_b64 exec, {mask}")
        A.e(f"s_waitcnt vmcnt({cnt})")
        retry(floads(soffs), PT[:len(soffs)], lb + "r", (20, 21))
        A.e("s_mov_b64 exec, -1")
        A.e("s_setprio 0")
        A.label(lb)
    def kv_issue(slot, tag, first=False):
        so = sKO
        if first:
            A.e(f"s_mul_i32 s{sT0}, s{sKH}, {VF - KF}"); A.e(f"s_add_u32 s{sT0}, s{sT0}, s{sKB}"); A.e(f"s_max_u32 s{sT0}, s{sT0}, s{sKO}")
            so = sT0
        A.e(f"s_add_u32 m0, s{sMK}, {slot*8192}")
        A.e("s_nop 0")
        A.vmem(f"buffer_load_dwordx4 v{LO}, {srd(SWS)}, s{so} offen sc1 lds", tag)
        A.e(f"s_add_u32 s{sKO}, s{sKO}, 4096")
    def tiny(acc, sp, first): A.e(f"v_mfma_f32_4x4x4_16b_bf16 {v(acc,4)}, {v(ONES,2)}, {v(sp,2)}, {'0' if first else v(acc,4)}")
    def cs_publish(accs, G, imm):
        lb = lab("cp")
        A.e(f"s_cmp_lg_u32 s{sTQ}, 0"); A.e(f"s_cbranch_scc1 {lb}")
        for a in accs: A.e(f"v_permlane32_swap_b32 v{a}, v{a+1}")
        A.e(f"v_mov_b32 v{G+3}, s{sTAG}")
        for i, a in enumerate(accs): A.e(f"v_add_f32 v{G+i}, v{a}, v{a+1}")
        A.e(f"s_add_u32 s{sT3}, s{sCSW}, {imm}")
        A.e("s_mov_b32 exec_hi, 0")
        A.e(f"buffer_store_dwordx4 {v(G,4)}, v{LO}, {srd(SWS)}, s{sT3} offen sc1")
        A.e("s_mov_b64 exec, -1")
        A.label(lb)
    def cs_loads(G): return [f"buffer_load_dwordx4 {v(G+4*q,4)}, v{LO}, {srd(SWS)}, s{sCSR} offen offset:{1024*q} sc1" for q in range(4)]
    def cs_build(G, n):
        o = []
        for u in range(n): o += [f"v_add_f32 v{G+u}, v{G+u}, v{G+4+u}", f"v_add_f32 v{G+8+u}, v{G+8+u}, v{G+12+u}"]
        for u in range(n): o.append(f"v_add_f32 v{G+u}, v{G+u}, v{G+8+u}")
        for u in range(n): o.append(f"v_cvt_pk_bf16_f32 v{G+4+u}, v{G+u}, v{G+u}")
        for u in range(n): o.append(f"v_lshlrev_b32 v{G+4+u}, 16, v{G+4+u}")
        for u in range(n): o.append(f"v_sub_f32 v{G+4+u}, v{G+u}, v{G+4+u}")
        for u in range(n): o.append(f"v_cvt_pk_bf16_f32 v{G+u}, v{G+u}, v{G+4+u}")
        for u in range(n, 4): o.append(f"v_mov_b32 v{G+u}, 0")
        pat = "00m0000m00"
        for i, ch in enumerate(pat):
            if n == 2 and i < 2: continue
            o.append(f"v_mov_b32 v{G+4+i}, {'v%d' % NEGM if ch == 'm' else 0}")
        return o, [G + 6, G + 10, G + 4]

    def passes(typ):
        A.vm, A.lgkm = list(vm0), list(lg0)
        sd = Side(A); dq = Side(A); gq = Side(A)
        def wvm(tag):
            assert not any(getattr(f, "tag", None) == tag for f in dq.q), tag
            assert tag in A.issued, tag
            A.wait(vm=[tag])
        cur = [0]
        def rd1(n, slot, us=(0, 1, 2)):
            t, kk = n >> 2, n & 3
            assert t == cur[0]
            for u in us:
                for p in range(2):
                    if u == 0 or typ == "R": rc, off = RQ, kk*6144 + u*2048 + p*512
                    else: rc, off = RG[u-1], kk*6144 + 2048 + p*512
                    A.lds(f"ds_read_b64_tr_b16 {v(WF[3*slot+u]+2*p,2)}, v{rc} offset:{off}", "w")
        def rd2(n, slot, ts=(0, 1)):
            if n >= 32: return
            st, kk = n >> 3, n & 7
            for t in ts:
                for p in range(2):
                    off = (8 + st - cur[0])*SL + kk*4096 + p*512
                    assert 0 <= off < 65536
                    A.lds(f"ds_read_b64_tr_b16 {v(WF[2*slot+t]+2*p,2)}, v{RG[t]} offset:{off}", "w")
        def adv(regs, g):
            d = SL if (g & 3) != 3 else (-3*SL) & 0xffffffff
            for r in regs: A.e(f"v_add_u32 v{r}, {hex(d)}, v{r}")
        rd1(0, 0); rd1(1, 1)
        A.e(f"s_cmp_lg_u32 s{sKH}, 1"); A.e(f"s_cbranch_scc1 L_off_{typ}")
        A.e("s_barrier")
        A.label(f"L_off_{typ}")
        for t in range(1 if OPT["s1e"] == 2 else 2, 3): dq.add(*issue1_list(typ, t))
        gl = [f"buffer_load_dwordx4 {v(GRAN,4)}, v94, {srd(SWS)}, s{sT3} offen sc1"] + cs_loads(CS1)
        cb1, BX1 = cs_build(CS1, 3)
        for h in range(16):
            t, par = h >> 1, h & 1
            if par == 0:
                stamp(A, f"a{t}")
                if t + 3 < 8: dq.add(*issue1_list(typ, t + 3))
                elif not OPT["jit"]: dq.add(*issue2_list(t - 5))
                elif t == 5: dq.add(*issue2_list(0))
                elif t == 7: dq.add(*issue2_list(1))
            for i in range(2):
                A.lds(f"ds_read_b128 {v(X+4*(2*h+i),4)}, v{XRD+2*par+i}", "x")
            if par:
                adv(([RQ] if t < 7 else []) + RG, t); cur[0] += 1
                if t < 7: adv(range(XRD, XRD + 4), t)
            if h == OPT["sth"]: row_stats(typ)
            if h == 2: cs_publish([CS1, CS1 + 4, CS1 + 8], CG, 0)
            if h == 3 and OPT["tlb"]:
                lb = lab("tl")
                A.e(f"s_cmp_lg_u32 s{sW}, 1"); A.e(f"s_cbranch_scc1 {lb}")
                A.e(f"v_lshlrev_b32 v95, 17, v{LO}")
                A.e("s_mov_b64 exec, 0x1ff")
                A.e(f"buffer_load_dword v92, v95, {srd(SWS)}, 0 offen sc1")
                A.e("s_mov_b64 exec, 1")
                for sr in (SD, SO, SOUT): A.e(f"buffer_load_dword v92, off, {srd(sr)}, 0")
                A.e("s_mov_b64 exec, -1")
                A.label(lb)
            dq.pull(5 if len(dq.q) > 6 else (3 if t < 5 else (1 if (OPT["jit"] and t < 7) else 2)))
            if h == 7: A.e(f"s_lshl_b32 s{sT3}, s{sTB}, 9"); A.e(f"s_add_u32 s{sT3}, s{sT3}, {STT}")
            gsch = {0: (7, 9, 10, 11, 12), 1: (9, 10, 10, 11, 11)}[OPT["gs"]]
            for gi_, hh in enumerate(gsch):
                if hh == h: A.vmem(gl[gi_], "gran")
            if h == OPT["gc"]:
                A.wait(vm=["gran"])
                retry(gl, [GRAN + 3] + [CS1 + 4*q + 3 for q in range(4)], f"L_gr_{typ}", (92, 95))
                A.e(f"v_mul_f32 v{RS}, {hx(-LOG2E)}, v{GRAN+1}"); A.e(f"v_mov_b32 v{SD2}, v{GRAN+2}"); A.e(f"v_mov_b32 v{NEGM}, v{GRAN}")
                if typ == "R": A.lds(f"ds_write_b32 v93, v{GRAN+1}", "x")
                gq.add(*cb1)
            if h == 15: gq.flush()
            A.wait(lgkm="all")
            A.e("s_barrier")
            if h < 2:
                for i in range(2):
                    for p in range(2):
                        for u in range(3): tiny(CS1 + 4*u, WF[3*i+u] + 2*p, h == 0 and i == 0 and p == 0)
            if h == 15:
                for u in range(3):
                    acc = v((ACC1, ACCA, ACCA + 16)[u], 16)
                    if u and typ == "R": A.e(f"{MF} {acc}, {v(BX1[u],4)}, {v(CS1,4)}, {acc}")
                    else: A.e(f"{MF} {acc}, {v(CS1,4)}, {v(BX1[u],4)}, {acc}")
            for i in range(2):
                n = 2*h + i
                x = X + 4*n
                for u in range(3):
                    acc = v((ACC1, ACCA, ACCA + 16)[u], 16)
                    c = "0" if n == 0 else acc
                    w = v(WF[3*i+u], 4)
                    last = (i == 1 and u == 2)
                    if last and par == 0: wvm(("s1", t + 1) if t < 7 else ("s2", 0))
                    if u and typ == "R": A.e(f"{MF} {acc}, {v(x,4)}, {w}, {c}")
                    else: A.e(f"{MF} {acc}, {w}, {v(x,4)}, {c}")
                    if last: A.e("s_barrier")
                    if h < 15:
                        rd1(n + 2, i, (u,))
                        if not last: gq.pull(3)
                    else:
                        fi = 3*i + u
                        rd2(fi >> 1, fi >> 1, (fi & 1,))
        sd.add(f"v_mul_f32 v{T1}, s{sSC}, v{RS}", "s_nop 3")
        for i in range(16): sd.add(f"v_mul_f32 v{ACC1+i}, v{T1}, v{ACC1+i}")
        for i in range(8): sd.add(f"v_cvt_pk_bf16_f32 v{ACC1+i}, v{ACC1+2*i}, v{ACC1+2*i+1}")
        def st(txt, tag, pre=None):
            def f():
                if pre: A.e(pre)
                A.vmem(txt, tag)
            f.store = tag
            return f
        DRAIN = lambda: None
        sd.q.insert(len(sd.q) - 4, st(f"buffer_store_dwordx4 {v(ACC1,4)}, v{LO}, {srd(SWS)}, s{sHSO} offen sc1", "qk"))
        sd.add(st(f"buffer_store_dwordx4 {v(ACC1+4,4)}, v{LO}, {srd(SWS)}, s{sHSO} offen sc1", "qk", f"s_add_u32 s{sHSO}, s{sHSO}, 65536"))
        RVR = [X, X + 4, ACC1 + 8, ACC1 + 12]
        GATE = lambda: None
        sd.add(GATE)
        if typ == "R":
            def rvread():
                for q in range(4): A.lds(f"ds_read_b128 {v(RVR[q],4)}, v{T3} offset:{32*q}", "rv")
            sd.add(lambda: A.wait(lgkm=["rv"]))
            for t in range(2):
                a = ACCA + 16*t
                for f in range(2):
                    for i in range(8): sd.add(f"v_mul_f32 v{a+8*f+i}, v{RVR[2*f+(i>>2)]+(i&3)}, v{a+8*f+i}")
                    for i in range(4): sd.add(f"v_cvt_pk_bf16_f32 v{a+8*f+i}, v{a+8*f+2*i}, v{a+8*f+2*i+1}")
                    sd.add(st(f"buffer_store_dwordx4 {v(a+8*f,4)}, v{T0}, {srd(SWS)}, s{sHS2} offen offset:{256*f} sc1", "qk",
                              f"s_add_u32 s{sHS2}, s{sHS2}, {4*65536}" if (t == 1 and f == 0) else None))
        else:
            for t in range(2):
                sl_ = silu_list(ACCA + 16*t, X, ACCA + 16*t + 8, sHS2, t*1024, "ha")
                sl_[-1].store = "ha"
                sd.add(*sl_)
        sd.add(DRAIN, "s_nop 1")
        V0 = VFR[0][0]
        sd.add(f"v_and_b32 v{V0}, {27*16}, v{LO}", f"v_cmp_eq_u32 vcc, 0x100, v{V0}\ns_nop 1\nv_cndmask_b32 v{V0}, 0, v{ONES}, vcc")
        for i in range(1, 32): sd.add(f"v_mov_b32 v{V0+i}, v{V0}")
        def cost(x): return 8 if (isinstance(x, str) and x.startswith(("v_exp", "v_rcp"))) else (16 if callable(x) else 4)
        curblk = [0]
        stq = []
        def pullc(budget, novm=False):
            while sd.q and budget > 0:
                x = sd.q[0]
                if x is GATE:
                    if curblk[0] < 1: return
                    sd.q.pop(0); continue
                if x is DRAIN:
                    if stq: return
                    sd.q.pop(0); continue
                if getattr(x, "store", False):
                    stq.append(sd.q.pop(0)); continue
                if novm and callable(x): return
                budget -= cost(x); sd.pull(1)
        def pullst(n):
            for _ in range(n):
                if stq: stq.pop(0)()
        def pending(tag): return any(getattr(x, "store", None) == tag for x in sd.q + stq)
        CG2 = X + 12
        G2 = X + 16
        gl2 = cs_loads(G2)
        cb2, BX2 = cs_build(G2, 2)
        fq = OPT["fq"] if typ == "P" else OPT["fqr"]
        for blk in range(11):
            curblk[0] = blk
            ks = list(range(3*blk, min(3*blk + 3, 32)))
            stamp(A, f"b{blk}")
            if blk == 1 and typ == "R":
                while sd.q[0] is not GATE:
                    curblk[0] = 0; pullc(4); curblk[0] = 1
                rvread()
            if blk == 2:
                cs_publish(CS2, CG2, 262144)
                A.e(f"s_add_u32 s{sCSR}, s{sCSR}, 262144")
                A.e(f"v_mov_b32 v{VE}, s{sTAG}"); A.e(f"v_lshlrev_b32 v{PA}, 3, v{LO}")
                A.e(f"v_add_u32 v{RAH}, s{sRAH}, v{LO}"); A.e(f"v_add_u32 v{WD1}, {8192-1024}, v{WD0}")
            if blk == fq + 1: wg_flag(F1, sGI, sRB)
            if blk == OPT["fa"] + 1 and typ == "P": wg_flag(F2, sRB, sGI)
            if OPT["jit"] and blk == 0: dq.add(*issue2_list(2))
            if blk == OPT["i3"]: dq.add(*issue2_list(3))
            if blk == 6:
                for x in gl2: dq.add(lambda x=x: A.vmem(x, "gran2"))
            if 3*blk + 3 < 32 and 8 + ((3*blk + 3) >> 3) > cur[0]:
                adv(RG, cur[0]); cur[0] += 1
            if blk == OPT["pk"] + 1:
                A.vmem(f"buffer_load_dwordx4 {v(Q,4)}, v{LO}, {srd(SWS)}, s{sVO} offen sc1", "q")
                kv_issue(0, ("kv", 0), True)
                dq.add(lambda: A.vmem(f"buffer_load_dwordx4 {v(K01[0],4)}, v{LO}, {srd(SWS)}, s{sKB} offen sc1", "q"))
                dq.add(lambda: None)
                dq.add(lambda: A.vmem(f"buffer_load_dwordx4 {v(K01[1],4)}, v{LO}, {srd(SWS)}, s{sKB} offen offset:1024 sc1", "q"))
                dq.add(lambda: kv_issue(1, ("kv", 1)))
            rvb = OPT["rvb"] if typ == "P" else OPT["rvr"]
            if blk == 0: rvb = OPT["rv0"]
            early = len(stq) > 0
            if early: pullst(1)
            else: dq.pull(1)
            pullc(rvb // 2)
            dq.pull(1)
            pullc(rvb // 2)
            if not early or OPT["spp"] > 1: pullst(1)
            if blk == fq:
                assert not pending("qk")
                A.wait(vm=["qk"])
            if blk == OPT["fa"] and typ == "P":
                assert not pending("ha")
                A.wait(vm=["ha"])
            if blk == 9:
                A.wait(vm=["gran2"])
                retry(gl2, [G2 + 4*q + 3 for q in range(4)], f"L_g2_{typ}", (X + 12, X + 13))
                sd.add(*cb2)
            if blk == OPT["pk"] - 1: one_load(0, [sP0, sP1, sP2], "0xffff")
            if blk == OPT["pk"]:
                stamp(A, "bp1")
                one_check(0, [sP0, sP1, sP2], "0xffff")
                stamp(A, "p1")
            if blk == 10:
                pullc(10000)
                assert not stq
            A.wait(lgkm="all")
            A.e("s_barrier")
            if blk < 2:
                for i in range(3 if blk == 0 else 1):
                    for p in range(2):
                        for t in range(2): tiny(CS2[t], WF[2*i+t] + 2*p, blk == 0 and i == 0 and p == 0)
                        A.e("s_nop 0")
            if blk == 10:
                for t in range(2): A.e(f"{MF} {v(ACCB+16*t,16)}, {v(G2,4)}, {v(BX2[t],4)}, {v(ACCB+16*t,16)}")
            bst = {0: 1, 3: 2, 6: 3}.get(blk)
            for i, n in enumerate(ks):
                x = X + 4*n
                for t in range(2):
                    acc = v(ACCB + 16*t, 16)
                    c = "0" if n == 0 else acc
                    last = (i == len(ks) - 1 and t == 1)
                    if last and bst: wvm(("s2", bst))
                    if last and blk == 10: A.wait(vm=[("kv", 0)])
                    A.e(f"{MF} {acc}, {v(WF[2*i+t],4)}, {v(x,4)}, {c}")
                    if last: A.e("s_barrier")
                    rd2(n + 3, i, (t,))
                    if not last: pullc(OPT["m2b"], True)
        dq.flush()
        assert not sd.q
        stamp(A, "p2end")
        endvm.append(list(A.vm))
        if typ == "P": A.e("s_branch L_A_done")
    endvm = []
    passes("P")
    A.label("L_R"); passes("R")
    assert all(x == endvm[0] for x in endvm), endvm
    A.label("L_A_done")
    if OPT["pk"] == 10:
        A.vmem(f"buffer_load_dwordx4 {v(Q,4)}, v{LO}, {srd(SWS)}, s{sVO} offen sc1", "q")
        A.vmem(f"buffer_load_dwordx4 {v(K01[0],4)}, v{LO}, {srd(SWS)}, s{sKB} offen sc1", "q")
        A.vmem(f"buffer_load_dwordx4 {v(K01[1],4)}, v{LO}, {srd(SWS)}, s{sKB} offen offset:1024 sc1", "q")
        A.e(f"s_lshl_b32 s{sT1}, s{sTQ}, 10")
        A.e(f"s_add_u32 s{sT0}, s{sKB}, s{sT1}")
        A.e(f"s_cmp_eq_u32 s{sKH}, 1"); A.e("s_cbranch_scc1 L_nokv0")
        A.e(f"s_sub_u32 m0, s{sT1}, 0"); A.e(f"s_add_u32 s{sT2}, s{sT0}, 1024")
        A.e(f"buffer_load_dwordx4 v{LO}, {srd(SWS)}, s{sT2} offen sc1 lds")
        A.e(f"s_add_u32 s{sT0}, s{sT0}, {VF - KF - 1024}"); A.e(f"s_add_u32 s{sT2}, s{sKB}, {VF - KF}"); A.e(f"s_max_u32 s{sT0}, s{sT0}, s{sT2}")
        A.e(f"s_add_u32 m0, s{sT1}, 4096"); A.e("s_nop 0")
        A.e(f"buffer_load_dwordx4 v{LO}, {srd(SWS)}, s{sT0} offen sc1 lds")
        A.label("L_nokv0")
        A.e(f"s_add_u32 s{sKO}, s{sKO}, 4096")
        kv_issue(1, ("kv", 1))
    A.e(f"s_lshr_b32 s{sP0}, s{sTM}, 1"); A.e(f"s_lshl_b32 s{sP0}, s{sP0}, 11"); A.e(f"s_add_u32 s{sP0}, s{sP0}, {F2}"); A.e(f"s_add_u32 s{sP1}, s{sP0}, 32768")
    if OPT["ss"] == 3: one_load(4, [sP0], "0xfff")
    for i in range(4): A.e(f"v_mov_b32 v{96+i}, 0")
    A.e("s_nop 2")
    Z = v(96, 4)
    XRES, XA = 28, 19
    sOO = sXO
    A.e(f"s_lshl_b32 s{sT2}, s{sW}, 13")
    A.e(f"v_and_b32 v{T0}, 0x380, v{LO}"); A.e(f"v_and_b32 v{XA}, 0x70, v{LO}")
    A.e(f"v_lshl_add_u32 v{XA}, v{T0}, 3, v{XA}"); A.e(f"v_add_u32 v{XA}, s{sT2}, v{XA}")
    A.e(f"s_lshl_b32 s{sOO}, s{sTM}, 16"); A.e(f"s_lshl_b32 s{sT0}, s{sTN}, 7"); A.e(f"s_add_u32 s{sOO}, s{sOO}, s{sT0}")
    sl = silu_list(ACCB, 112, ACCB + 8, sHS3, 0, "hb") + silu_list(ACCB + 16, 112, ACCB + 24, sHS3, 1024, "hb")
    for k, r in enumerate((128, 144, 160, 176)):
        run(sl[10*k:10*k+10]); A.e(f"{MF} {v(r,16)}, {Z}, {Z}, 0")
    run(sl[40:85])
    A.wait(vm=["q"])
    for b in range(2):
        A.e(f"{MF} {v(S[b],16)}, {v(K01[b],4)}, {v(Q,4)}, 0"); run(sl[85+4*b:89+4*b])
    run(sl[93:])
    A.e(f"v_max_f32 v{T0}, v{S[0]}, v{S[0]+1}")
    for i in range(2, 32, 2): A.e(f"v_max3_f32 v{T0}, v{T0}, v{S[0]+i}, v{S[0]+i+1}")
    A.e(f"v_mov_b32 v{T1}, v{T0}"); A.e(f"s_mov_b32 s{sI}, 0"); A.e("s_nop 0")
    A.e(f"v_permlane32_swap_b32 v{T0}, v{T1}"); A.e("s_nop 0")
    A.e(f"v_max_f32 v{T0}, v{T0}, v{T1}")
    A.e(f"v_sub_f32 v{C}, {hx(-90.0)}, v{T0}")
    for i in range(1, 16): A.e(f"v_mov_b32 v{C+i}, v{C}")
    A.e("s_nop 1")
    A.e(f"{MF} {v(S[0],16)}, {v(K01[0],4)}, {v(Q,4)}, {v(C,16)}")
    if OPT["pk"] == 10: A.e("s_waitcnt vmcnt(3)")
    A.e("s_barrier")
    A.e("s_setprio 3")
    A.e(f"{MF} {v(O,16)}, {Z}, {Z}, 0")
    stamp(A, "BB0")
    A.e("s_setprio 0")

    def w_issue(slot, tag):
        A.e(f"s_add_u32 m0, s{sMW}, {slot*16384}")
        A.e("s_nop 0")
        A.vmem(f"buffer_load_dwordx4 v{WD0}, {srd(SCUR)}, s{sWSO} offen lds", tag)
        A.vmem(f"buffer_load_dwordx4 v{WD1}, {srd(SCUR)}, s{sWSO} offen offset:1024 lds", tag)
        A.e(f"s_add_u32 s{sWSO}, s{sWSO}, {128*1024}")
    def h_issue(slot, tag):
        A.e(f"s_add_u32 m0, s{sMH}, {slot*16384}")
        A.e("s_nop 0")
        A.vmem(f"buffer_load_dwordx4 v{LO}, {srd(SWS)}, s{sAO} offen sc1 lds", tag)
        A.vmem(f"buffer_load_dwordx4 v{LO}, {srd(SWS)}, s{sAO2} offen offset:1024 sc1 lds", tag)
        A.e(f"s_add_u32 s{sAO}, s{sAO}, 8192"); A.e(f"s_add_u32 s{sAO2}, s{sAO2}, 8192")
    def wait_oldest(tags, extra=""):
        n = None
        for tg in tags:
            idx = [k for k, t_ in enumerate(A.vm) if t_ == tg]
            if not idx: continue
            last = idx[0]
            while last + 1 < len(A.vm) and A.vm[last + 1] == tg: last += 1
            n = len(A.vm) - 1 - last
            A.vm = A.vm[last+1:]
        parts = ([f"vmcnt({n})"] if n is not None else []) + ([extra] if extra else [])
        if parts: A.e("s_waitcnt " + " ".join(parts))
    RET = 78 if not INSTR else 98
    RET2 = 100
    SS = OPT["ss"]
    V63 = 88
    def side_reads(pi):
        pp = pi & 3
        for i in range(4):
            for p in range(2): A.e(f"ds_read_b64_tr_b16 {v(DW[i]+2*p,2)}, v{RAW} offset:{pp*16384 + i*2048 + p*1024}")
            A.e(f"ds_read_b128 {v(HF[i],4)}, v{RAH} offset:{pp*16384 + i*2048}")
    def w_next(n):
        if n == SS + 14:
            for i in range(4): A.e(f"s_mov_b32 s{SCUR+i}, s{SO+i}")
            A.e(f"s_lshl_b32 s{sWSO}, s{sW}, 14"); A.e(f"s_lshl_b32 s{sT2}, s{sTN}, 7"); A.e(f"s_add_u32 s{sWSO}, s{sWSO}, s{sT2}")
        w_issue(n & 3, ("w", n))
    def prelude(pi):
        pp = pi & 3
        side = pi >= SS
        def reads():
            for i in range(4): A.e(f"ds_read_b128 {v(KFR[i],4)}, v{LO} offset:{pp*8192 + i*1024}")
            A.e(f"s_mov_b64 exec, s[{sMSK}:{sMSK+1}]")
            for i in range(4):
                for f in range(2): A.e(f"ds_read_b128 {v(VFR[i][f],4)}, v{LO} offset:{pp*8192 + 4096 + i*1024 + f*256}")
            A.e("s_mov_b64 exec, -1")
            if side: side_reads(pi)
        n = pi + 3
        ca = SS - 3
        if pi == ca + 1:
            for q in range(SS, n): h_issue(q & 3, ("h", q))
        reads()
        if pi == ca: one_check(4, [sP0], "0xfff")
        if pi == 2: wg_flag(F2 + 32768, sRB, sGI)
        if pi == SS + 2: one_check(4, [sP1], "0xffff")
        if pi == ca - 1: one_load(4, [sP0], "0xfff")
        if pi == SS + 1: one_load(4, [sP1], "0xffff")
        if pi == 0: kv_issue(2, ("kv", 2))
        if n <= 16: kv_issue(n & 3, ("kv", n))
        if pi > ca and n < SS + 14: h_issue(n & 3, ("h", n))
        if n >= SS: w_next(n)
        if n >= SS + 14:
            A.e(f"s_add_u32 m0, s{sMH}, {(n & 3)*16384}")
            A.e(f"s_add_u32 s{sT0}, s{sWSO}, {128*1024}")
            A.vmem(f"buffer_load_dwordx4 v{WD0}, {srd(SCUR)}, s{sT0} offen lds", ("w", n + 2))
            A.vmem(f"buffer_load_dwordx4 v{WD1}, {srd(SCUR)}, s{sT0} offen offset:1024 lds", ("w", n + 2))
        if pi == 13:
            A.vmem(f"buffer_load_dwordx4 {v(XRES,4)}, v{XA}, {srd(SX)}, s{sOO} offen", "xres")
        if OPT["wow"] and pi in (9, 10, 11):
            m = pi - 8
            if SS + 14 + m > 18:
                A.e(f"s_lshl_b32 s{sT0}, s{sW}, 14"); A.e(f"s_lshl_b32 s{sT1}, s{sTN}, 7"); A.e(f"s_add_u32 s{sT0}, s{sT0}, s{sT1}")
                A.e(f"s_add_u32 s{sT0}, s{sT0}, {m*128*1024}")
                A.vmem(f"buffer_load_dwordx4 {v(68,4)}, v{WD0}, {srd(SO)}, s{sT0} offen", "pf")
                A.vmem(f"buffer_load_dwordx4 {v(68,4)}, v{WD1}, {srd(SO)}, s{sT0} offen offset:1024", "pf")
        if pi == 14: A.wait(vm=[("kv", 16)])
        if pi == 15:
            A.e("s_setprio 3")
            for i in range(8): A.e(f"v_mov_b32 v{V63+i}, v{VFR[0][0]}")
            A.e("s_setprio 0")
            A.e(f"s_mov_b64 exec, s[{sMSK}:{sMSK+1}]")
            for f in range(2): A.e(f"ds_read_b128 {v(V63+4*f,4)}, v{LO} offset:{4096 + f*256}")
            A.e("s_mov_b64 exec, -1")
        need = [("h", pi + 1), ("w", pi + 1)]
        if pi == 1: A.wait(vm=["hb"])
        A.wait(vm=[("kv", pi + 1)] + [t_ for t_ in need if t_ in A.vm[-5:] or pi == 15])
        A.e("s_waitcnt lgkmcnt(0)")
        if pi == 15: A.e(f"s_cmp_eq_u32 s{sKH}, 1")
        else: A.e(f"s_cmp_eq_u32 s{sKH}, 2")
        A.e(f"s_call_b64 s[{RET}:{RET+1}], L_burst")
        A.vm = A.vm[-5:]
        if pi in (0, 1, 2, 3, 7, 11) and INSTR:
            A.e("s_setprio 3"); stamp(A, f"it{pi >> 2}" if pi >= 3 else f"ph{pi}"); A.e("s_setprio 0")
    for pi in range(16): prelude(pi)
    A.e("s_setprio 1")
    stamp(A, "drain")
    for f in range(2): A.e(f"{MF} {v(O,16)}, {v(V63+4*f,4)}, {v(P[1]+4*f,4)}, {v(O,16)}")
    side_reads(16)
    A.e(f"s_mul_i32 s{sT0}, s{sTBq}, 144"); A.e(f"s_add_u32 s{sT0}, s{sT0}, s{sHD}"); A.e(f"s_lshl_b32 s{sT0}, s{sT0}, 10")
    A.e(f"s_add_u32 s{sT0}, s{sT0}, {ACTF + 112*1024}")
    A.e(f"s_bfe_u32 s{sT1}, s{sW}, 0x10001"); A.e(f"s_lshl1_add_u32 s{sT1}, s{sTM}, s{sT1}"); A.e(f"s_mul_i32 s{sAO}, s{sT1}, {144*1024}")
    A.e(f"s_and_b32 s{sT2}, s{sW}, 1")
    A.e(f"v_mov_b32 v{T1}, {hx(2.0**118)}")
    A.e(f"s_mov_b32 s{sFB}, 0")
    A.e(f"v_rcp_f32 v{T3}, v{O+8}")
    A.e(f"v_mov_b32 v{T0}, v{O+8}")
    for i in range(8): A.e(f"v_fma_f32 v{T0}, v{O+i}, 0, v{T0}")
    A.e(f"v_cmp_nlt_f32 vcc, v{T0}, v{T1}")
    A.e(f"v_max3_f32 v{T0}, |v{O}|, |v{O+1}|, |v{O+2}|"); A.e(f"v_max3_f32 v{T1}, |v{O+3}|, |v{O+4}|, |v{O+5}|")
    A.e(f"v_max3_f32 v{T0}, v{T0}, |v{O+6}|, |v{O+7}|"); A.e(f"v_max_f32 v{T0}, v{T0}, v{T1}")
    A.e("s_cbranch_vccnz L_fallback")
    A.e(f"v_cmp_gt_f32 vcc, {hx(2.0**-115)}, v{T0}")
    A.e("s_nop 3")
    A.e("s_cbranch_vccnz L_fallback")
    A.label("L_fin")
    for i in range(8): A.e(f"v_mul_f32 v{O+i}, v{O+i}, v{T3}")
    for i in range(4): A.e(f"v_cvt_pk_bf16_f32 v{P[0]+i}, v{O+2*i}, v{O+2*i+1}")
    A.e(f"v_min_u32 v{P[0]}, -2, v{P[0]}")
    A.e(f"buffer_store_dwordx4 {v(P[0],4)}, v{LO}, {srd(SWS)}, s{sT0} offen sc1")
    assert SS == 3
    OF, WOF, ACC2 = 32, 192, 64
    sO = [sAO, sAO2, sP0, sP1]
    A.e(f"s_lshl1_add_u32 s{sT1}, s{sKH}, s{sT2}"); A.e(f"s_lshl_b32 s{sT1}, s{sT1}, 11"); A.e(f"s_add_u32 s{sAO}, s{sAO}, s{sT1}")
    A.e(f"s_add_u32 s{sAO}, s{sAO}, {ACTF + 112*1024}")
    for m in range(1, 4): A.e(f"s_add_u32 s{sO[m]}, s{sAO}, {m*8192}")
    def oload(k): return f"buffer_load_dwordx4 {v(OF+4*k,4)}, v{LO}, {srd(SWS)}, s{sO[k>>1]} offen offset:{(k&1)*1024} sc1"
    if OPT["ol"] == 0:
        for k in range(8): A.e(oload(k))
    for i in range(4):
        A.e(f"s_waitcnt lgkmcnt({9 - 3*i})")
        A.e(f"{MF} {v(DACC,16)}, {v(DW[i],4)}, {v(HF[i],4)}, {v(DACC,16)}")
    RW = [110, 111, 100, 101]
    A.e(f"s_lshl_b32 s{sT1}, s{sT2}, 12")
    A.e(f"v_add_u32 v{RW[0]}, s{sT1}, v{RAW}"); A.e(f"v_xor_b32 v{RW[1]}, 64, v{RW[0]}")
    A.e(f"v_add_u32 v{RW[2]}, 0x10000, v{RW[0]}"); A.e(f"v_add_u32 v{RW[3]}, 0x10000, v{RW[1]}")
    A.e("s_waitcnt vmcnt(%d)" % (9 if OPT["ol"] == 0 else 1))
    A.e("s_barrier")
    stamp(A, "f3")
    if OPT["ol"] == 1:
        for k in range(8): A.e(oload(k))
    for k in range(8):
        m, e = k >> 1, k & 1
        for tt in range(2):
            for p in range(2):
                A.e(f"ds_read_b64_tr_b16 {v(WOF+8*k+4*tt+2*p,2)}, v{RW[2*(m>>1)+tt]} offset:{((17+(m&1))&3)*16384 + e*2048 + p*1024}")
    if OPT["ol"] == 2:
        for k in range(8): A.e(oload(k))
    L, T2, TK = 102, 103, 99
    A.e(f"v_lshrrev_b32 v{L}, 4, v{LO}")
    A.e(f"v_lshrrev_b32 v{TK}, 10, v{XA}")
    A.e(f"v_and_b32 v{T2}, 7, v{L}")
    A.e(f"v_and_b32 v{T0}, 31, v{L}"); A.e(f"v_lshrrev_b32 v{T1}, 5, v{L}")
    A.e(f"v_xor_b32 v{T1}, v{T1}, v{T2}")
    A.e(f"v_lshlrev_b32 v{T0}, 8, v{T0}")
    A.e(f"s_lshr_b32 s{sT0}, s{sW}, 1"); A.e(f"s_lshl_b32 s{sT0}, s{sT0}, 13")
    A.e(f"s_lshl_b32 s{sT2}, s{sT2}, 7"); A.e(f"s_add_u32 s{sT0}, s{sT0}, s{sT2}")
    A.e(f"v_add_u32 v{T0}, s{sT0}, v{T0}")
    A.e(f"v_lshl_add_u32 v104, v{T1}, 4, v{T0}")
    A.e(f"v_xor_b32 v80, 0x80, v104"); A.e(f"v_add_u32 v80, {81920}, v80")
    for q in range(1, 4): A.e(f"v_xor_b32 v{104+q}, {32*q}, v104"); A.e(f"v_xor_b32 v{80+q}, {32*q}, v80")
    A.e(f"v_and_b32 v{T1}, 7, v{TK}")
    A.e(f"v_lshlrev_b32 v{T2}, 1, v{T2}"); A.e(f"v_xor_b32 v{T2}, v{T2}, v{T1}")
    A.e(f"v_lshlrev_b32 v{T0}, 8, v{TK}")
    A.e(f"v_lshl_add_u32 v108, v{T2}, 4, v{T0}"); A.e("v_xor_b32 v109, 16, v108")
    A.e(f"v_add_u32 v84, {81920}, v108"); A.e(f"v_add_u32 v85, {81920}, v109")
    for i in range(4):
        A.e(f"v_lshlrev_b32 v{112+2*i}, 16, v{XRES+i}"); A.e(f"v_and_b32 v{113+2*i}, 0xffff0000, v{XRES+i}")
    A.e("s_waitcnt lgkmcnt(0)")
    for k in range(8):
        A.e(f"s_waitcnt vmcnt({7-k})")
        A.label(f"L_oc{k}")
        A.e(f"v_cmp_eq_u32 vcc, -1, v{OF+4*k}")
        A.e("s_nop 1")
        A.e(f"s_cbranch_vccz L_ok{k}")
        if OPT["lp"]: A.e(f"s_add_u32 s{sT3}, s{sO[k>>1]}, {(k&1)*1024 + 1008}")
        A.e(f"s_call_b64 s[{RET2}:{RET2+1}], L_refresh")
        A.e(f"s_cbranch_scc0 L_oc{k}")
        A.label(f"L_ok{k}")
        A.e(f"{MF} {v(DACC,16)}, {v(WOF+8*k,4)}, {v(OF+4*k,4)}, {v(DACC,16)}")
        A.e(f"{MF} {v(ACC2,16)}, {v(WOF+8*k+4,4)}, {v(OF+4*k,4)}, {'0' if k == 0 else v(ACC2,16)}")
    stamp(A, "p3")
    A.e("s_nop 10")
    for q in range(4): A.e(f"ds_write_b128 v{104+q}, {v(DACC+4*q,4)}")
    for q in range(4): A.e(f"ds_write_b128 v{80+q}, {v(ACC2+4*q,4)}")
    A.e("s_waitcnt lgkmcnt(0)")
    A.e("s_barrier")
    stamp(A, "cbar")
    for w in range(4):
        a0, a1 = (108, 109) if w < 2 else (84, 85)
        A.e(f"ds_read_b128 {v(32+8*w,4)}, v{a0} offset:{(w&1)*16384}")
        A.e(f"ds_read_b128 {v(36+8*w,4)}, v{a1} offset:{(w&1)*16384}")
    for w in range(4):
        A.e(f"s_waitcnt lgkmcnt({6-2*w})")
        for i in range(8): A.e(f"v_add_f32 v{112+i}, v{112+i}, v{32+8*w+i}")
    for i in range(4): A.e(f"v_cvt_pk_bf16_f32 v{XRES+i}, v{112+2*i}, v{113+2*i}")
    A.e(f"buffer_store_dwordx4 {v(XRES,4)}, v{XA}, {srd(SOUT)}, s{sOO} offen{('', ' sc1', ' nt', ' sc0 sc1')[OPT['ost']]}")
    A.e(f"s_or_b32 s{sT0}, s2, s{sW}"); A.e(f"s_cmp_lg_u32 s{sT0}, 0"); A.e("s_cbranch_scc1 L_noep")
    A.e(f"s_mov_b32 s{sT0}, {EPOCH}")
    flag_store(sT0)
    A.label("L_noep")
    if SPIN:
        A.label("L_spin")
        A.e("s_memrealtime s[76:77]"); A.e("s_waitcnt lgkmcnt(0)")
        A.e("s_sub_u32 s76, s76, s74"); A.e(f"s_cmp_lt_u32 s76, {OPT.get('T', 6000)}"); A.e("s_cbranch_scc1 L_spin")
    if INSTR:
        A.e("s_waitcnt vmcnt(0)")
        stamp(A, "end")
        A.e("s_memrealtime s[98:99]"); A.e("s_waitcnt lgkmcnt(0)")
        A.e(f"s_lshl_b32 s{sT0}, s2, 3"); A.e(f"s_add_u32 s{sT0}, s{sT0}, s{sW}"); A.e(f"s_lshl_b32 s{sT0}, s{sT0}, 8")
        A.e(f"s_add_u32 s{sT0}, s{sT0}, {PROF}")
        A.e("v_writelane_b32 v127, s74, 0"); A.e("v_writelane_b32 v127, s98, 1")
        A.e(f"v_writelane_b32 v127, s{sSPIN}, 2"); A.e(f"v_writelane_b32 v127, s{sFB}, 3")
        A.e(f"v_lshrrev_b32 v{T0}, 2, v{LO}")
        A.e(f"buffer_store_dword v127, v{T0}, {srd(SWS)}, s{sT0} offen")
    A.e("s_endpgm")
    A.raw("    .p2align 6"); A.e("s_nop 0")
    A.label("L_burst")
    A.e("s_barrier")
    for i in range(4):
        b = i & 1; nb = b ^ 1
        e = [f"v_exp_f32 v{S[b]+j}, v{S[b]+j}" for j in range(16)]
        c = [f"v_cvt_pk_bf16_f32 v{P[b]+j}, v{S[b]+2*j}, v{S[b]+2*j+1}" for j in range(8)]
        qk = f"{MF} {v(S[nb],16)}, {v(KFR[i],4)}, {v(Q,4)}, {v(C,16)}"
        pv0 = f"{MF} {v(O,16)}, {v(VFR[i][0],4)}, {v(P[nb],4)}, {v(O,16)}"
        pv1 = f"{MF} {v(O,16)}, {v(VFR[i][1],4)}, {v(P[nb]+4,4)}, {v(O,16)}"
        sm = f"{MF} {v(DACC,16)}, {v(DW[i],4)}, {v(HF[i],4)}, {v(DACC,16)}"
        run(e[0:4] + [qk] + e[4:10] + [pv0] + e[10:16] + [pv1] + c + [sm])
    A.e("s_waitcnt vmcnt(5)")
    A.e("s_cbranch_scc1 L_bret")
    A.e("s_barrier")
    A.label("L_bret")
    A.e(f"s_setpc_b64 s[{RET}:{RET+1}]")
    A.label("L_refresh")
    if OPT["lp"]:
        A.e("s_mov_b64 exec, 1")
        A.label("L_lp")
        A.e(f"buffer_load_dword v{T0}, off, {srd(SWS)}, s{sT3} sc1")
        A.e(f"s_max_u32 s{sSPIN}, s{sSPIN}, 1"); A.e(f"s_sub_u32 s{sSPIN}, s{sSPIN}, 1")
        A.e("s_waitcnt vmcnt(0)")
        A.e(f"v_cmp_eq_u32 vcc, -1, v{T0}")
        A.e(f"s_cmp_eq_u32 s{sSPIN}, 0"); A.e("s_cbranch_scc1 L_lpo")
        A.e("s_cbranch_vccnz L_lp")
        A.label("L_lpo")
        A.e("s_mov_b64 exec, -1")
    else:
        A.e("s_waitcnt vmcnt(0)")
        A.e("s_sleep 1")
    for k in range(8):
        A.e(f"v_cmp_eq_u32 vcc, -1, v{OF+4*k}")
        A.e("s_nop 1")
        A.e(f"s_cbranch_vccz L_rf{k}")
        A.e(oload(k))
        A.label(f"L_rf{k}")
    A.e("s_waitcnt vmcnt(0)")
    A.e(f"s_max_u32 s{sSPIN}, s{sSPIN}, 1"); A.e(f"s_sub_u32 s{sSPIN}, s{sSPIN}, 1")
    A.e(f"s_cmp_eq_u32 s{sSPIN}, 0")
    A.e(f"s_setpc_b64 s[{RET2}:{RET2+1}]")
    A.label("L_fallback")
    A.e(f"s_mov_b32 s{sFB}, 1"); A.e(f"s_mov_b32 s{sI}, 0")
    A.e(f"s_mov_b32 s{sVO}, s{sKB}")
    A.e(f"v_mov_b32 v{T0}, 0xff800000")
    A.label("L_maxloop")
    A.e(f"buffer_load_dwordx4 {v(KFR[0],4)}, v{LO}, {srd(SWS)}, s{sVO} offen sc1"); A.e("s_waitcnt vmcnt(0)")
    A.e(f"{MF} {v(S[0],16)}, {v(KFR[0],4)}, {v(Q,4)}, 0")
    A.e("s_nop 7"); A.e("s_nop 3")
    for i in range(0, 16, 2): A.e(f"v_max3_f32 v{T0}, v{T0}, v{S[0]+i}, v{S[0]+i+1}")
    A.e(f"s_add_u32 s{sVO}, s{sVO}, 1024")
    A.e(f"s_add_u32 s{sI}, s{sI}, 1"); A.e(f"s_cmp_lt_u32 s{sI}, 64"); A.e("s_cbranch_scc1 L_maxloop")
    A.e(f"v_mov_b32 v{T1}, v{T0}"); A.e("s_nop 1")
    A.e(f"v_permlane32_swap_b32 v{T0}, v{T1}"); A.e("s_nop 0")
    A.e(f"v_max_f32 v{T0}, v{T0}, v{T1}")
    for i in range(16): A.e(f"v_sub_f32 v{C+i}, 0, v{T0}")
    for i in range(16): A.e(f"v_mov_b32 v{O+i}, 0")
    A.e(f"s_mov_b32 s{sI}, 0")
    A.label("L_fbloop")
    A.e(f"s_add_u32 s{sVO}, s{sKB}, {VF-KF}")
    A.e(f"buffer_load_dwordx4 {v(KFR[0],4)}, v{LO}, {srd(SWS)}, s{sKB} offen sc1")
    A.e(f"s_mov_b64 exec, s[{sMSK}:{sMSK+1}]")
    A.e(f"buffer_load_dwordx4 {v(VFR[0][0],4)}, v{LO}, {srd(SWS)}, s{sVO} offen sc1")
    A.e(f"buffer_load_dwordx4 {v(VFR[0][1],4)}, v{LO}, {srd(SWS)}, s{sVO} offen offset:256 sc1")
    A.e("s_mov_b64 exec, -1")
    A.e("s_waitcnt vmcnt(0)")
    A.e(f"{MF} {v(S[0],16)}, {v(KFR[0],4)}, {v(Q,4)}, {v(C,16)}")
    A.e("s_nop 7"); A.e("s_nop 3")
    for i in range(16): A.e(f"v_exp_f32 v{S[0]+i}, v{S[0]+i}")
    A.e("s_nop 0")
    for i in range(8): A.e(f"v_cvt_pk_bf16_f32 v{P[0]+i}, v{S[0]+2*i}, v{S[0]+2*i+1}")
    A.e("s_nop 1")
    for f in range(2): A.e(f"{MF} {v(O,16)}, {v(VFR[0][f],4)}, {v(P[0]+4*f,4)}, {v(O,16)}")
    A.e(f"s_add_u32 s{sKB}, s{sKB}, 1024")
    A.e(f"s_add_u32 s{sI}, s{sI}, 1"); A.e(f"s_cmp_lt_u32 s{sI}, 64"); A.e("s_cbranch_scc1 L_fbloop")
    A.e("s_nop 7"); A.e("s_nop 3")
    A.e(f"v_rcp_f32 v{T3}, v{O+8}"); A.e("s_nop 0")
    A.e("s_branch L_fin")
    A.label("L_end")
    A.e("s_endpgm")
    return A

DOC = '''; One persistent launch, one 512-thread workgroup per CU (generated by a script of my own).
;  Phase A  x @ [Wqkv | Wgate | Wup] on raw x; LayerNorm is folded in exactly: (x@W - mean*colsum(W)) / sd,
;           mean*colsum enters through one extra MFMA per tile, 1/sd through the epilogues (q scale, silu).
;           sends a wave to L_fallback (two passes with the true row max) whenever that shift was unsafe.
;  Phase C  O @ Wo, reduction, residual, store.
;  Hand-offs between workgroups: write-through stores + tag words (tag derived from an epoch word in d_ws),
'''
HEADER = open("parallel_sum__softmax_full_mha__swiglu_ffn__prompt.s.ref").read().split("; Override")[0]
def build():
    A = gen()
    body = A.text()
    probs = check_hazards(body)
    out = HEADER + "; @launch grid=(256,1,1) block=(512,1,1) lds=163840\n" + DOC + '.amdgcn_target "amdgcn-amd-amdhsa--gfx950"\n' + body
    out += KD.format(name=NAME, nvgpr=256, nsgpr=102, accum=256)
    return out, probs

if __name__ == "__main__":
    if len(sys.argv) > 2 and sys.argv[2].startswith("spin:"): SPIN = sys.argv[2][5:]
    elif len(sys.argv) > 2 and sys.argv[2] != "0": INSTR = sys.argv[2]
    for kv in sys.argv[3:]:
        k_, v_ = kv.split("="); OPT[k_] = int(v_)
    out, probs = build()
    if INSTR: out += "; STAMPS " + ",".join(STAMPS) + "\n"
    open(sys.argv[1], "w").write(out)
    print("hazards:", len(probs), "chars:", len(out))
```
